```python
import torch

def _softmax(x, axis=-1):
    return torch.softmax(x, dim=axis)
def _gelu(x):
    return torch.nn.functional.gelu(x, approximate="tanh")
def _silu(x):
    return torch.nn.functional.silu(x)
def _sigmoid(x):
    return torch.sigmoid(x)
def _layernorm(x, axis=-1, eps=1e-5):
    m = x.mean(dim=axis, keepdim=True)
    v = x.var(dim=axis, keepdim=True, unbiased=False)
    return (x - m) / torch.sqrt(v + eps)
def _scatter_add(tgt, idx, src, axis=0):
    return tgt.clone().index_add_(axis, idx, src)
def _segment_sum(src, seg, n):
    out = torch.zeros((n,) + src.shape[1:], dtype=src.dtype)
    return out.index_add_(0, seg, src)
def _pad(x, pw):
    flat = tuple(v for pair in reversed(pw) for v in pair)
    return torch.nn.functional.pad(x, flat)

kernel_name = 'recurrent_scan__ssm_conv_h3__dense_activation_silu__prompt'

def setup_inputs():

    _w = (lambda a: (lambda t: t.to(torch.bfloat16) if t.is_floating_point() else t)(torch.as_tensor(a)))
    def _A_setup():
        B, S, D = 1, 2048, 576
        ks = 4
        return {
            "q": _w((lambda *s: torch.randn(*s, dtype=torch.bfloat16) * 0.05)(B, S, D)),
            "k": _w((lambda *s: torch.randn(*s, dtype=torch.bfloat16) * 0.8)(B, S, D)),
            "v": _w((lambda *s: torch.randn(*s, dtype=torch.bfloat16) * 0.8)(B, S, D)),
            "shift_k": _w((lambda *s: torch.randn(*s, dtype=torch.bfloat16) * 0.8)(D, ks) * 0.5),
            "ssm_k": _w((lambda *s: torch.randn(*s, dtype=torch.bfloat16) * 0.8)(D, S) * (1.0 / S ** 0.5)),
            "ssm_D": _w((lambda *s: torch.randn(*s, dtype=torch.bfloat16) * 0.8)(D)),
        }
    _A_in = _A_setup()

    def _B_setup():
        B, S, D, F = 1, 2048, 576, 4608
        return {
            "x": _w((lambda *s: torch.randn(*s, dtype=torch.bfloat16) * 0.05)(B, S, D)),
            "w1": _w((lambda *s: torch.randn(*s, dtype=torch.bfloat16) * 0.8)(D, F) * (D ** -0.5)),
            "w2": _w((lambda *s: torch.randn(*s, dtype=torch.bfloat16) * 0.2)(F, D) * (F ** -0.5)),
        }
    _B_in = _B_setup()

    return {
        "A_q": _A_in["q"],
        "A_k": _A_in["k"],
        "A_v": _A_in["v"],
        "A_shift_k": _A_in["shift_k"],
        "A_ssm_k": _A_in["ssm_k"],
        "A_ssm_D": _A_in["ssm_D"],
        "B_x": _B_in["x"],
        "B_w1": _B_in["w1"],
        "B_w2": _B_in["w2"],
    }

def reference(A_q, A_k, A_v, A_shift_k, A_ssm_k, A_ssm_D, B_x, B_w1, B_w2):
    def _A_ref(q, k, v, shift_k, ssm_k, ssm_D):
        B, S, D = q.shape
        ks = shift_k.shape[-1]
        k_pad = _pad(k, ((0, 0), (ks - 1, 0), (0, 0)))
        k_shift = torch.zeros_like(k)
        for t in range(ks):
            k_shift = k_shift + k_pad[:, t:t + S, :] * shift_k[:, ks - 1 - t][None, None, :]
        kv = k_shift * v
        L = 2 * S
        kv_pad = _pad(kv, ((0, 0), (0, S), (0, 0)))
        kf_pad = _pad(ssm_k, ((0, 0), (0, S)))
        kv_f = (lambda x, axes=(-2,-1): torch.fft.rfft2(x.float(), dim=axes))(kv_pad[:, None, :, :], axes=(1, 2))
        kf_f = (lambda x, axes=(-2,-1): torch.fft.rfft2(x.float(), dim=axes))(kf_pad[:, None, :], axes=(1, 2))
        kf_f = (lambda x, *d: x.permute(*d))(kf_f, 1, 2, 0)
        y_f = kv_f * kf_f[None, :, :, :]
        y = (lambda x, s, axes=(-2,-1): torch.fft.irfft2(x, s=s, dim=axes).to(torch.bfloat16))(y_f, (1, L), axes=(1, 2))[:, 0, :S, :]
        y = y + kv * ssm_D[None, None, :]
        return q * y

    def _B_ref(x, w1, w2):
        h = torch.einsum("bsd,df->bsf", x, w1)
        h = _silu(h)
        out = torch.einsum("bsf,fd->bsd", h, w2)
        return out

    x = A_q
    xn = _layernorm(x, axis=-1)
    s = _A_ref(xn, A_k, A_v, A_shift_k, A_ssm_k, A_ssm_D)
    g = _silu(_B_ref(xn, B_w1, B_w2))
    return x + s * g
```

```python
import re


class Op:
    __slots__ = ("text", "kind", "tag", "cost")

    def __init__(self, text, kind="alu", tag=None, cost=1):
        self.text = text
        self.kind = kind
        self.tag = tag
        self.cost = cost


def alu(t, cost=1):
    return Op(t, "alu", cost=cost)


def trans(t):
    return Op(t, "alu", cost=2)


def mfma(t):
    return Op(t, "mfma")


def lds(t, tag=None):
    return Op(t, "lds", tag)


def vm(t, tag=None):
    return Op(t, "vm", tag)


def wait_lgkm(tag):
    return Op(None, "wait_lgkm", tag)


def wait_vm(tag):
    return Op(None, "wait_vm", tag)


def raw(t):
    return Op(t, "raw")


class Prog:
    def __init__(self):
        self.ops = []

    def add(self, x):
        if isinstance(x, (list, tuple)):
            for y in x:
                self.add(y)
        elif isinstance(x, str):
            for line in x.split("\n"):
                line = line.strip()
                if not line:
                    continue
                self.ops.append(classify(line))
        else:
            self.ops.append(x)

    __call__ = add

    def label(self, name):
        self.ops.append(Op(name + ":", "label"))

    def resolve(self):
        out = []
        lq = []
        vq = []
        for op in self.ops:
            if op.kind == "lds":
                lq.append(op.tag)
                out.append("  " + op.text)
            elif op.kind == "vm":
                vq.append(op.tag)
                out.append("  " + op.text)
            elif op.kind == "wait_lgkm":
                tags = op.tag if isinstance(op.tag, (list, tuple, set)) else [op.tag]
                idx = max([i for i, t in enumerate(lq) if t in tags], default=-1)
                if idx < 0:
                    continue
                n = len(lq) - 1 - idx
                n = min(n, 15)
                out.append(f"  s_waitcnt lgkmcnt({n})")
                lq = lq[len(lq) - n:] if n > 0 else []
            elif op.kind == "wait_vm":
                tags = op.tag if isinstance(op.tag, (list, tuple, set)) else [op.tag]
                idx = max([i for i, t in enumerate(vq) if t in tags], default=-1)
                if idx < 0:
                    continue
                n = len(vq) - 1 - idx
                n = min(n, 63)
                out.append(f"  s_waitcnt vmcnt({n})")
                vq = vq[len(vq) - n:] if n > 0 else []
            elif op.kind == "label":
                out.append(op.text)
            else:
                t = op.text
                m = re.match(r"s_waitcnt\s+(.*)", t)
                if m:
                    a = m.group(1)
                    mm = re.search(r"lgkmcnt\((\d+)\)", a)
                    if mm:
                        n = int(mm.group(1))
                        lq = lq[len(lq) - n:] if 0 < n < len(lq) else ([] if n == 0 else lq)
                    mm = re.search(r"vmcnt\((\d+)\)", a)
                    if mm:
                        n = int(mm.group(1))
                        vq = vq[len(vq) - n:] if 0 < n < len(vq) else ([] if n == 0 else vq)
                out.append("  " + t)
        return "\n".join(out) + "\n"


def classify(line):
    if line.endswith(":"):
        return Op(line, "label")
    w = line.split()[0]
    if w.startswith("v_mfma"):
        return mfma(line)
    if w.startswith("ds_"):
        return lds(line)
    if w.startswith("buffer_") or w.startswith("global_"):
        return vm(line)
    if w in ("v_exp_f32", "v_rcp_f32", "v_sqrt_f32", "v_rsq_f32", "v_log_f32"):
        return trans(line)
    return alu(line)


def interleave(mf, fill, start=0, end=None, per_gap_cap=None):
    n = len(mf)
    end = n if end is None else end
    gaps = end - start
    total = sum(max(f.cost, 0) if f.kind not in ("wait_lgkm", "wait_vm") else 1 for f in fill)
    out = []
    fi = 0
    acc = 0
    for k in range(n):
        out.append(mf[k])
        if k < start or k >= end:
            continue
        target = total * (k - start + 1) / gaps
        while fi < len(fill) and (acc < target - 1e-9 or k == end - 1):
            f = fill[fi]
            c = f.cost if f.kind not in ("wait_lgkm", "wait_vm") else 1
            if acc + c > target + 0.5 * c and k != end - 1:
                break
            out.append(f)
            acc += c
            fi += 1
    assert fi == len(fill)
    return out


def merge_streams(a, b):
    ca = sum(x.cost for x in a) or 1
    cb = sum(x.cost for x in b) or 1
    out = []
    i = j = 0
    pa = pb = 0.0
    while i < len(a) or j < len(b):
        fa = pa / ca if i < len(a) else 2.0
        fb = pb / cb if j < len(b) else 2.0
        if fa <= fb:
            out.append(a[i]); pa += a[i].cost; i += 1
        else:
            out.append(b[j]); pb += b[j].cost; j += 1
    return out


def kernel_descriptor(name, vgpr, sgpr, accum, extra=""):
    return f"""
.section .rodata,"a"
.p2align 6
.amdhsa_kernel {name}
  .amdhsa_next_free_vgpr {vgpr}
  .amdhsa_next_free_sgpr {sgpr}
  .amdhsa_accum_offset {accum}
  .amdhsa_group_segment_fixed_size 0
  .amdhsa_kernarg_size 96
  .amdhsa_user_sgpr_count 2
  .amdhsa_user_sgpr_kernarg_segment_ptr 1
  .amdhsa_system_sgpr_workgroup_id_x 1
{extra}.end_amdhsa_kernel
"""


def kernel_head(name):
    return f""".text
.globl {name}
.p2align 8
.type {name},@function
{name}:
"""


def place(mf, fixed, flow=(), lo=0, hi=None):
    n = len(mf)
    hi = n if hi is None else hi
    cost = lambda o: 1 if o.kind in ("wait_lgkm", "wait_vm") else o.cost
    fc = [sum(cost(o) for o in fixed.get(k, [])) for k in range(n)]
    tot = sum(fc[lo:hi]) + sum(cost(o) for o in flow)
    per = tot / max(hi - lo, 1)
    out = list(fixed.get(-1, []))
    fi = 0
    acc = 0.0
    for k in range(n):
        out.append(mf[k])
        out += fixed.get(k, [])
        if lo <= k < hi:
            acc += fc[k]
            target = per * (k - lo + 1)
            while fi < len(flow) and (acc + 0.5 * cost(flow[fi]) <= target or k == hi - 1):
                out.append(flow[fi]); acc += cost(flow[fi]); fi += 1
    assert fi == len(flow)
    return out


def icost(o):
    if o.kind in ("wait_lgkm", "wait_vm"):
        return 4
    if o.kind == "lds":
        return 16 if o.text.startswith("ds_write") else 8
    if o.kind == "vm":
        return 15
    t = o.text or ""
    if t.startswith(("v_exp", "v_rcp", "v_sqrt", "v_rsq", "v_log")):
        return 8
    return 4 * (t.count("\n") + 1)


def is_valu(o):
    return o.kind == "alu" and (o.text or "").startswith("v_")


def place2(mf, fixed, flow=(), lo=0, hi=None, mcyc=16):
    n = len(mf)
    hi = n if hi is None else hi
    fc = [sum(icost(o) for o in fixed.get(k, [])) for k in range(n)]
    tot = sum(fc[lo:hi]) + sum(icost(o) for o in flow)
    per = max(tot / max(hi - lo, 1), 0)
    out = list(fixed.get(-1, []))
    fi = 0
    acc = 0.0
    deferred = []
    flow = list(flow)
    for k in range(n):
        out.append(mf[k])
        items = list(fixed.get(k, []))
        nonv = [o for o in items if not is_valu(o)]
        val = [o for o in items if is_valu(o)]
        if lo <= k < hi:
            nonv = nonv + deferred if k < hi - 1 else nonv
            tail = deferred if k == hi - 1 else []
            acc += fc[k] + sum(icost(o) for o in deferred)
            pre = list(deferred)
            deferred = []
            target = per * (k - lo + 1)
            while fi < len(flow) and (acc + 0.5 * icost(flow[fi]) <= target or k == hi - 1):
                o = flow[fi]; fi += 1
                if is_valu(o):
                    val.append(o); acc += icost(o)
                elif not val:
                    nonv.append(o); acc += icost(o)
                elif k == hi - 1:
                    val.append(o); acc += icost(o)
                else:
                    deferred.append(o)
            if k == hi - 1:
                nonv = tail + nonv
        out += nonv + val
    assert fi == len(flow) and not deferred
    return out
```

```python
import sys
sys.path.insert(0, 'exp')
from asmgen import *

import os
K1_PREFETCH = os.environ.get('NOK1PF') is None
NAME = 'recurrent_scan__ssm_conv_h3__dense_activation_silu__prompt'
S, D, F = 2048, 576, 4608
NB = S * D * 2
WS_XN = 0
WS_UR = NB
WS_Y = 2 * NB
WS_ST = 3 * NB
WS_P = 3 * NB + 65536
WS_END = WS_P + 8 * NB
LOG2E_NEG = 0xbfb8aa3b

HEADER = open('cdna_kernels/' + NAME + '.s.ref').read().split('; Override launch')[0]


def srd(p, s, lo, size, off=0):
    if off:
        p(f's_add_u32 s{s}, s{lo}, {off}')
        p(f's_addc_u32 s{s+1}, s{lo+1}, 0')
    else:
        p(f's_mov_b32 s{s}, s{lo}')
        p(f's_mov_b32 s{s+1}, s{lo+1}')
    p(f's_mov_b32 s{s+2}, {size}')
    p(f's_mov_b32 s{s+3}, 0x00020000')


def round_bf16(p, dst, src):
    p(f'v_cvt_pk_bf16_f32 v{dst}, v{src}, v{src}')
    p(f'v_lshlrev_b32 v{dst}, 16, v{dst}')


def unpack(p, lo, hi, src):
    assert hi != src or lo != src
    if lo == src:
        p(f'v_and_b32 v{hi}, 0xffff0000, v{src}')
        p(f'v_lshlrev_b32 v{lo}, 16, v{src}')
    else:
        p(f'v_lshlrev_b32 v{lo}, 16, v{src}')
        p(f'v_and_b32 v{hi}, 0xffff0000, v{src}')


def row16_sum(p, r):
    for sh in (8, 4, 2, 1):
        p('s_nop 1')
        p(f'v_add_f32_dpp v{r}, v{r}, v{r} row_ror:{sh} row_mask:0xf bank_mask:0xf')


RT_OFF = WS_END + 4096


def rt_start(p, timing, sreg):
    if timing:
        p(raw(f's_memrealtime s[{sreg}:{sreg+1}]'))


def rt_end(p, timing, sreg, kidx, ws_lo, tmp_srd):
    if not timing:
        return
    p('s_waitcnt vmcnt(0) lgkmcnt(0)')
    p(raw(f's_memrealtime s[{sreg+2}:{sreg+3}]'))
    p('s_waitcnt lgkmcnt(0)')
    srd(p, tmp_srd, ws_lo, RT_OFF + 3 * 8192)
    for i in range(4):
        p(f'v_mov_b32 v{4+i}, s{sreg+i}')
    p('v_mov_b32 v8, 0')
    p(f's_lshl_b32 s{sreg}, s2, 4')
    p(f's_add_u32 s{sreg}, s{sreg}, {RT_OFF + kidx * 8192}')
    p('v_cmp_eq_u32 vcc, 0, v0')
    p(f's_and_saveexec_b64 s[{sreg+2}:{sreg+3}], vcc')
    p(f'buffer_store_dwordx4 v[4:7], v8, s[{tmp_srd}:{tmp_srd+3}], s{sreg} offen')
    p(f's_mov_b64 exec, s[{sreg+2}:{sreg+3}]')

def gen_k1(timing=False):
    p = Prog()
    N_LN = 128
    N_KV = 288
    p(f's_cmp_ge_u32 s2, {N_LN + N_KV}')
    p('s_cbranch_scc1 K1_END')
    rt_start(p, timing, 56)
    p('s_load_dwordx4 s[4:7], s[0:1], 0')
    p('s_load_dwordx4 s[8:11], s[0:1], 16')
    p('s_load_dwordx2 s[12:13], s[0:1], 88')
    p('s_load_dwordx4 s[64:67], s[0:1], 56')
    p('s_load_dwordx2 s[68:69], s[0:1], 32')
    p('v_lshrrev_b32 v1, 6, v0')
    p('v_and_b32 v2, 63, v0')
    p('s_waitcnt lgkmcnt(0)')
    srd(p, 40, 12, WS_END)
    if K1_PREFETCH:
        p('s_cmp_ge_u32 s2, 396')
        p('s_cbranch_scc1 K1_NOPF')
        p(f's_mov_b32 s54, {D*F*2}')
        p('s_mov_b32 s50, s2')
        p('s_mov_b32 s52, s64')
        p('s_mov_b32 s53, s65')
        p('s_cmp_lt_u32 s2, 162')
        p('s_cbranch_scc1 K1_PF_GO')
        p('s_mov_b32 s52, s66')
        p('s_mov_b32 s53, s67')
        p('s_sub_u32 s50, s2, 162')
        p('s_cmp_lt_u32 s2, 324')
        p('s_cbranch_scc1 K1_PF_GO')
        p('s_mov_b32 s52, s68')
        p('s_mov_b32 s53, s69')
        p('s_sub_u32 s50, s2, 324')
        p(f's_mov_b32 s54, {D*S*2}')
        p.label('K1_PF_GO')
        p('s_lshl_b32 s50, s50, 15')
        p('s_mov_b32 s55, 0x00020000')
        p('v_lshlrev_b32 v95, 7, v0')
        p(raw('buffer_load_dword v94, v95, s[52:55], s50 offen'))
        p.label('K1_NOPF')
    p(f's_cmp_ge_u32 s2, {N_LN}')
    p('s_cbranch_scc1 K1_KV')
    srd(p, 16, 4, NB)
    p('v_lshrrev_b32 v3, 4, v2')
    p('v_lshl_add_u32 v3, v1, 2, v3')
    p('v_and_b32 v4, 15, v2')
    p('v_mul_u32_u24 v5, 1152, v3')
    p('v_lshl_add_u32 v5, v4, 3, v5')
    p(f's_mul_i32 s20, s2, {16 * 1152}')
    for jj in range(9):
        p(f'buffer_load_dwordx2 v[{10+2*jj}:{11+2*jj}], v5, s[16:19], s20 offen offset:{jj*128}')
    p('v_lshrrev_b32 v6, 3, v4')
    p('v_lshlrev_b32 v6, 10, v6')
    p('v_bfe_u32 v7, v4, 1, 2')
    p('v_lshl_add_u32 v7, v7, 4, v3')
    p('v_lshl_add_u32 v6, v7, 4, v6')
    p('v_and_b32 v7, 1, v4')
    p('v_lshl_add_u32 v6, v7, 3, v6')
    p('s_waitcnt vmcnt(0)')
    X = 30
    for i in range(18):
        unpack(p, X + 2 * i, X + 2 * i + 1, 10 + i)
    p(f'v_add_f32 v8, v{X}, v{X+1}')
    p(f'v_add_f32 v9, v{X+2}, v{X+3}')
    for i in range(4, 36, 2):
        p(f'v_add_f32 v8, v8, v{X+i}')
        p(f'v_add_f32 v9, v9, v{X+i+1}')
    p('v_add_f32 v8, v8, v9')
    row16_sum(p, 8)
    p(f'v_mul_f32 v8, {hex(f32bits(1.0/576))}, v8')
    p('v_mov_b32 v9, 0')
    p('v_mov_b32 v28, 0')
    for i in range(0, 36, 2):
        p(f'v_sub_f32 v70, v{X+i}, v8')
        p(f'v_sub_f32 v71, v{X+i+1}, v8')
        p('v_fmac_f32 v9, v70, v70')
        p('v_fmac_f32 v28, v71, v71')
    p('v_add_f32 v9, v9, v28')
    row16_sum(p, 9)
    p(f'v_mul_f32 v9, {hex(f32bits(1.0/576))}, v9')
    round_bf16(p, 9, 9)
    p(f'v_add_f32 v9, {hex(f32bits(1e-5))}, v9')
    round_bf16(p, 9, 9)
    p('v_sqrt_f32 v9, v9')
    p('s_nop 0')
    round_bf16(p, 9, 9)
    p('v_rcp_f32 v9, v9')
    round_bf16(p, 8, 8)
    for i in range(18):
        a, b = X + 2 * i, X + 2 * i + 1
        p(f'v_sub_f32 v{a}, v{a}, v8')
        p(f'v_sub_f32 v{b}, v{b}, v8')
        p(f'v_cvt_pk_bf16_f32 v70, v{a}, v{b}')
        unpack(p, a, b, 70)
        p(f'v_mul_f32 v{a}, v{a}, v9')
        p(f'v_mul_f32 v{b}, v{b}, v9')
        p(f'v_cvt_pk_bf16_f32 v{10+i}, v{a}, v{b}')
    p(f's_mul_i32 s20, s2, 18432')
    if WS_XN:
        p(f's_add_u32 s20, s20, {WS_XN}')
    for jj in range(9):
        p(f'buffer_store_dwordx2 v[{10+2*jj}:{11+2*jj}], v6, s[40:43], s20 offen sc1')
        if jj != 8:
            p('s_add_u32 s20, s20, 2048')
    p('v_mov_b32 v72, v8')
    p('v_mov_b32 v73, v9')
    p('v_lshlrev_b32 v7, 3, v3')
    p(f's_lshl_b32 s20, s2, 7')
    p(f's_add_u32 s20, s20, {WS_ST}')
    p('v_cmp_eq_u32 vcc, 0, v4')
    p('s_and_saveexec_b64 s[22:23], vcc')
    p('buffer_store_dwordx2 v[72:73], v7, s[40:43], s20 offen sc1')
    p('s_mov_b64 exec, s[22:23]')
    rt_end(p, timing, 56, 0, 12, 60)
    p('s_endpgm')
    p.label('K1_KV')
    srd(p, 16, 6, NB)
    srd(p, 20, 8, NB)
    srd(p, 24, 10, D * 8)
    p(f's_sub_u32 s28, s2, {N_LN}')
    p('s_mul_i32 s29, s28, 7282')
    p('s_lshr_b32 s29, s29, 16')
    p('s_mul_i32 s30, s29, 9')
    p('s_sub_u32 s30, s28, s30')
    p('v_and_b32 v3, 7, v0')
    p('v_lshrrev_b32 v4, 3, v0')
    p('s_lshl_b32 s31, s29, 6')
    p('v_lshl_add_u32 v5, v4, 1, s31')
    p('s_lshl_b32 s32, s30, 7')
    p('v_lshl_add_u32 v6, v3, 4, s32')
    p('v_mul_u32_u24 v7, 1152, v5')
    p('v_add_u32 v7, v7, v6')
    p('v_bfrev_b32 v9, 1')
    for i in range(5):
        p(f'v_add_u32 v{10+i}, {1152*(i-3) & 0xffffffff}, v7' if i != 3 else f'v_mov_b32 v{10+i}, v7')
    for i in range(3):
        p(f'v_cmp_gt_u32 vcc, {3-i}, v5')
        p('s_nop 1')
        p(f'v_cndmask_b32 v{10+i}, v{10+i}, v9, vcc')
    for i in range(5):
        p(f'buffer_load_dwordx4 v[{20+4*i}:{23+4*i}], v{10+i}, s[16:19], 0 offen')
    p('buffer_load_dwordx4 v[40:43], v7, s[20:23], 0 offen')
    p('buffer_load_dwordx4 v[44:47], v7, s[20:23], 0 offen offset:1152')
    p('v_lshlrev_b32 v8, 2, v6')
    for i in range(4):
        p(f'buffer_load_dwordx4 v[{48+4*i}:{51+4*i}], v8, s[24:27], 0 offen offset:{16*i}')
    p('v_mul_u32_u24 v16, 1152, v3')
    p('v_sub_u32 v17, 31, v4')
    p('v_lshl_add_u32 v16, v17, 2, v16')
    p('s_waitcnt vmcnt(0)')
    for e in range(8):
        sel_hi = e & 1
        def up(dst, src):
            if sel_hi:
                p(f'v_and_b32 v{dst}, 0xffff0000, v{src}')
            else:
                p(f'v_lshlrev_b32 v{dst}, 16, v{src}')
        for i in range(5):
            up(70 + i, 20 + 4 * i + e // 2)
        up(75, 40 + e // 2)
        up(76, 44 + e // 2)
        unpack(p, 77, 78, 48 + 2 * e)
        unpack(p, 79, 80, 49 + 2 * e)
        p('v_mul_f32 v81, v70, v80')
        p('v_mul_f32 v82, v71, v80')
        p('v_fmac_f32 v81, v71, v79')
        p('v_fmac_f32 v82, v72, v79')
        p('v_fmac_f32 v81, v72, v78')
        p('v_fmac_f32 v82, v73, v78')
        p('v_fmac_f32 v81, v73, v77')
        p('v_fmac_f32 v82, v74, v77')
        p('v_cvt_pk_bf16_f32 v81, v81, v82')
        unpack(p, 81, 82, 81)
        p('v_mul_f32 v81, v81, v75')
        p('v_mul_f32 v82, v82, v76')
        p(f'v_cvt_pk_bf16_f32 v83, v82, v81')
        p(f'ds_write_b32 v16, v83 offset:{e*144}')
    p('s_waitcnt lgkmcnt(0)')
    p('s_barrier')
    p('v_lshrrev_b32 v3, 2, v0')
    p('v_and_b32 v4, 3, v0')
    p('v_mul_u32_u24 v5, 144, v3')
    p('v_lshl_add_u32 v5, v4, 5, v5')
    p('ds_read_b128 v[20:23], v5')
    p('ds_read_b128 v[24:27], v5 offset:16')
    p('v_lshlrev_b32 v6, 12, v3')
    p('v_lshl_add_u32 v6, v4, 5, v6')
    p('s_lshl_b32 s33, s30, 18')
    p('s_lshl_b32 s34, s29, 7')
    p('s_sub_u32 s33, s33, s34')
    p(f's_add_u32 s33, s33, {WS_UR + 1984*2}')
    p('s_waitcnt lgkmcnt(0)')
    p('buffer_store_dwordx4 v[20:23], v6, s[40:43], s33 offen sc1')
    p('buffer_store_dwordx4 v[24:27], v6, s[40:43], s33 offen offset:16 sc1')
    rt_end(p, timing, 56, 0, 12, 60)
    p.label('K1_END')
    p('s_endpgm')
    return p


def f32bits(x):
    import struct
    return struct.unpack('<I', struct.pack('<f', x))[0]


def silu_inplace(p, regs, tmp):
    n = len(regs)
    for i in range(n): p(f'v_mul_f32 v{tmp[i]}, {hex(LOG2E_NEG)}, v{regs[i]}')
    for i in range(n): p(f'v_exp_f32 v{tmp[i]}, v{tmp[i]}')
    p('s_nop 0')
    for i in range(n): p(f'v_add_f32 v{tmp[i]}, 1.0, v{tmp[i]}')
    for i in range(n): p(f'v_rcp_f32 v{tmp[i]}, v{tmp[i]}')
    p('s_nop 0')
    for i in range(n): p(f'v_mul_f32 v{regs[i]}, v{regs[i]}, v{tmp[i]}')


def round_pairs(p, regs, tmp):
    for i in range(0, len(regs), 2):
        p(f'v_cvt_pk_bf16_f32 v{tmp}, v{regs[i]}, v{regs[i+1]}')
        unpack(p, regs[i], regs[i + 1], tmp)


def gen_k3(timing=False):
    p = Prog()
    p('s_cmp_ge_u32 s2, 256')
    p('s_cbranch_scc1 K3_END')
    rt_start(p, timing, 56)
    p('s_load_dwordx2 s[4:5], s[0:1], 0')
    p('s_load_dwordx2 s[6:7], s[0:1], 72')
    p('s_load_dwordx2 s[8:9], s[0:1], 88')
    p('v_lshrrev_b32 v1, 6, v0')
    p('v_and_b32 v2, 63, v0')
    p('s_nop 0')
    p('v_readfirstlane_b32 s24, v1')
    p('s_lshr_b32 s25, s2, 3')
    p('s_bfe_u32 s26, s2, 0x20001')
    p('s_and_b32 s27, s2, 1')
    p('s_waitcnt lgkmcnt(0)')
    srd(p, 12, 4, NB)
    srd(p, 16, 6, NB)
    srd(p, 20, 8, WS_END)
    p('s_and_b32 s28, s2, 7')
    p('s_lshl_b32 s29, s25, 3')
    p('s_add_u32 s28, s28, s29')
    p('s_mul_i32 s28, s28, 9216')
    p('s_lshl_b32 s29, s24, 10')
    p('s_add_u32 s28, s28, s29')
    p(f's_add_u32 s28, s28, {WS_P}')
    p('v_lshlrev_b32 v3, 4, v2')
    for j in range(8):
        p(f'buffer_load_dwordx4 v[{20+4*j}:{23+4*j}], v3, s[20:23], s28 offen')
        if j != 7:
            p(f's_add_u32 s28, s28, {NB}')
    p('s_lshl_b32 s29, s26, 7')
    p('s_lshl_b32 s30, s24, 4')
    p('s_add_u32 s29, s29, s30')
    p('s_lshl_b32 s30, s26, 4')
    p('s_add_u32 s30, s30, 512')
    p('s_cmp_lt_u32 s24, 8')
    p('s_cselect_b32 s29, s29, s30')
    p('v_and_b32 v4, 15, v2')
    p('v_lshrrev_b32 v5, 4, v2')
    p('s_lshl_b32 s30, s25, 6')
    p('s_lshl_b32 s31, s27, 5')
    p('s_add_u32 s30, s30, s31')
    p('v_add_u32 v6, s30, v4')
    p('v_lshl_add_u32 v7, v5, 2, s29')
    p('v_mul_u32_u24 v8, 1152, v6')
    p('v_lshl_add_u32 v8, v7, 1, v8')
    p(f'v_add_u32 v9, {16*1152}, v8')
    p('buffer_load_dwordx2 v[52:53], v8, s[12:15], 0 offen')
    p('buffer_load_dwordx2 v[54:55], v9, s[12:15], 0 offen')
    p('v_lshrrev_b32 v10, 2, v7')
    p('v_lshlrev_b32 v10, 14, v10')
    p('v_lshl_add_u32 v10, v6, 3, v10')
    p(f's_mov_b32 s31, {WS_Y}')
    p('buffer_load_dwordx2 v[56:57], v10, s[20:23], s31 offen')
    p('buffer_load_dwordx2 v[58:59], v10, s[20:23], s31 offen offset:128')
    p('v_lshlrev_b32 v11, 3, v6')
    p(f's_mov_b32 s31, {WS_ST}')
    p('buffer_load_dwordx2 v[60:61], v11, s[20:23], s31 offen')
    p('buffer_load_dwordx2 v[62:63], v11, s[20:23], s31 offen offset:128')
    O = list(range(64, 72))
    p('s_waitcnt vmcnt(13)')
    for k in range(4):
        unpack(p, O[2*k], O[2*k+1], 20 + k)
    for j in range(1, 8):
        p(f's_waitcnt vmcnt({13-j})')
        for k in range(4):
            unpack(p, 72, 73, 20 + 4*j + k)
            p(f'v_add_f32 v{O[2*k]}, v{O[2*k]}, v72')
            p(f'v_add_f32 v{O[2*k+1]}, v{O[2*k+1]}, v73')
    round_pairs(p, O, 72)
    silu_inplace(p, O, list(range(74, 82)))
    round_pairs(p, O, 72)
    p('s_waitcnt vmcnt(0)')
    for h in range(2):
        xs = [82, 83, 84, 85]; ys = [86, 87, 88, 89]; xn = [90, 91, 92, 93]
        unpack(p, xs[0], xs[1], 52 + 2*h); unpack(p, xs[2], xs[3], 53 + 2*h)
        unpack(p, ys[0], ys[1], 56 + 2*h); unpack(p, ys[2], ys[3], 57 + 2*h)
        for i in range(4): p(f'v_sub_f32 v{xn[i]}, v{xs[i]}, v{60+2*h}')
        round_pairs(p, xn, 72)
        for i in range(4): p(f'v_mul_f32 v{xn[i]}, v{xn[i]}, v{61+2*h}')
        round_pairs(p, xn, 72)
        for i in range(4): p(f'v_mul_f32 v{xn[i]}, v{xn[i]}, v{ys[i]}')
        round_pairs(p, xn, 72)
        for i in range(4): p(f'v_mul_f32 v{xn[i]}, v{xn[i]}, v{O[4*h+i]}')
        round_pairs(p, xn, 72)
        for i in range(4): p(f'v_add_f32 v{xn[i]}, v{xn[i]}, v{xs[i]}')
        p(f'v_cvt_pk_bf16_f32 v{94+2*h}, v{xn[0]}, v{xn[1]}')
        p(f'v_cvt_pk_bf16_f32 v{95+2*h}, v{xn[2]}, v{xn[3]}')
    p('buffer_store_dwordx2 v[94:95], v8, s[16:19], 0 offen')
    p('buffer_store_dwordx2 v[96:97], v9, s[16:19], 0 offen')
    rt_end(p, timing, 56, 2, 8, 60)
    p.label('K3_END')
    p('s_endpgm')
    return p


import os
PREFETCH = os.environ.get('NOPF') is None
DBG_NODMA = 'NODMA' in os.environ
DBG_NOREAD = 'NOREAD' in os.environ
DBG_NOSILU = 'NOSILU' in os.environ
ORDER2 = [0, 4, 8, 12, 1, 5, 9, 13, 2, 6, 10, 14, 3, 7, 11, 15, 16, 17]
RING = 73728
ACC1 = 112
BSET = 144
ASET = 216
VW1 = 4
VW2 = 13
VT = 22
VA0, VA1 = 31, 32
VH0, VH1 = 33, 34
VL16 = 35
STMP = 40
S_W, S_J, S_M = 24, 25, 26
S_SOFF, S_RING = 27, 28
S_SOFF2 = 31
S_W1B, S_W2B = 29, 30
CONV_STRIDE = 25856
CONV_COPY = 5184
CONV_UR = 4 * CONV_COPY
CONV_YT = 4 * CONV_STRIDE
P0, P1, P2, PU = 112, 132, 152, 172
CACC = 80


def acc1(ct, rt):
    b = ACC1 + (ct * 4 + rt) * 4
    return f'v[{b}:{b+3}]'


def acc2(ct, rt):
    b = (ct * 4 + rt) * 4
    return f'a[{b}:{b+3}]'


S_XG, S_XL, S_XT = 48, 49, 50


def xdma_ops(s0, s1, tag, nop):
    ops = []
    base = None
    for s_ in range(s0, s1):
        if base is None or s_ - base >= 4:
            base = s_
            ops.append(alu(f's_add_u32 s{S_XT}, s{S_XG}, {base*1024}'))
            ops.append(alu(f's_add_u32 m0, s{S_XL}, {base*1024}'))
            if nop: ops.append(alu('s_nop 0'))
        off = f' offset:{1024*(s_-base)}' if s_ != base else ''
        ops.append(vm(f'buffer_load_dwordx4 v{VL16}, s[16:19], s{S_XT} offen{off} lds', tag))
    return ops


def soff_reg(idx):
    return S_SOFF if idx & 1 == 0 else S_SOFF2


def dma_pieces(idx, nop=False):
    slot = idx & 1
    so = soff_reg(idx)
    if idx < 18:
        vw, srd_ = VW1, 's[8:11]'
        setup = alu(f's_add_u32 s{so}, s{S_W1B}, {idx * 32 * 9216}')
    else:
        vw, srd_ = VW2, 's[12:15]'
        setup = alu(f's_add_u32 s{so}, s{S_W2B}, {ORDER2[idx-18] * 32 * 1152}')

    def m0(off):
        r = [alu(f's_add_u32 m0, s{S_RING}, {slot * 9216 + off}')]
        if nop: r.append(alu('s_nop 0'))
        return r

    def ld(u, tag):
        off = f' offset:{1024 * (u & 3)}' if (u & 3) and u < 8 else ''
        return [vm(f'buffer_load_dwordx4 v{vw+u}, {srd_}, s{so} offen{off} lds', tag)]
    te, to = f'W{idx}e', f'W{idx}o'
    even = [setup] + m0(8192) + ld(8, te) + m0(0) + ld(0, te) + ld(2, te) + m0(4096) + ld(4, te) + ld(6, te)
    odd = m0(0) + ld(1, to) + ld(3, to) + m0(4096) + ld(5, to) + ld(7, to)
    return even, odd


def dma_ops(idx):
    e, o = dma_pieces(idx, nop=True)
    return e + o


def split_vm(ops, n):
    c = 0
    for i, o in enumerate(ops):
        if o.kind == 'vm':
            c += 1
            if c == n:
                return ops[:i+1], ops[i+1:]
    raise ValueError


def bread_ops(idx):
    slot = idx & 1
    o = slot * 9216
    first, second = [], []
    b = BSET + 36 * slot + 32
    first.append(lds(f'ds_read_b64_tr_b16 a[{b}:{b+1}], v{VT+8} offset:{o}', f'B{idx}a'))
    first.append(lds(f'ds_read_b64_tr_b16 a[{b+2}:{b+3}], v{VT+8} offset:{o+256}', f'B{idx}a'))
    for t in range(8):
        b = BSET + 36 * slot + 4 * t
        first.append(lds(f'ds_read_b64_tr_b16 a[{b}:{b+1}], v{VT+t} offset:{o}', f'B{idx}a'))
        second.append(lds(f'ds_read_b64_tr_b16 a[{b+2}:{b+3}], v{VT+t} offset:{o+1024}', f'B{idx}b'))
    return first, second


def aread_ops(idx):
    s = idx if idx < 18 else ORDER2[idx - 18]
    st = idx & 1
    ops = []
    for rt in range(4):
        b = ASET + 16 * st + 4 * rt
        va = VA0 if rt < 2 else VA1
        ops.append(lds(f'ds_read_b128 a[{b}:{b+3}], v{va} offset:{((rt & 1) * 18 + s) * 1024}', f'A{idx}'))
    return ops


def mfma_ops(idx):
    st = idx & 1
    ops = []
    for ct in range(9):
        for rt in range(4):
            d = acc1(ct, rt) if idx < 18 else acc2(ct, rt)
            wb = BSET + 36 * st + 4 * ct
            xb = ASET + 16 * st + 4 * rt
            c = '0' if idx in (0, 18) else d
            ops.append(mfma(f'v_mfma_f32_16x16x32_bf16 {d}, a[{wb}:{wb+3}], a[{xb}:{xb+3}], {c}'))
    return ops


_silu_rot = [0]


def silu_tile_ops(ct, rt):
    b = ACC1 + (ct * 4 + rt) * 4
    t = STMP + 8 * (_silu_rot[0] % 4)
    _silu_rot[0] += 1
    ops = []
    for i in range(4): ops.append(alu(f'v_mul_f32 v{t+i}, {hex(LOG2E_NEG)}, v{b+i}'))
    for i in range(4): ops.append(trans(f'v_exp_f32 v{t+i}, v{t+i}'))
    for i in range(4): ops.append(alu(f'v_add_f32 v{t+i}, 1.0, v{t+i}'))
    for i in range(4): ops.append(trans(f'v_rcp_f32 v{t+i}, v{t+i}'))
    for i in range(4): ops.append(alu(f'v_mul_f32 v{t+i}, v{b+i}, v{t+i}'))
    ops.append(alu(f'v_cvt_pk_bf16_f32 v{t+4}, v{t}, v{t+1}'))
    ops.append(alu(f'v_cvt_pk_bf16_f32 v{t+5}, v{t+2}, v{t+3}'))
    if ct < 8:
        ops.append(lds(f'ds_write_b64 v{VH0}, v[{t+4}:{t+5}] offset:{rt*18432 + (ct >> 1)*1024 + (ct & 1)*512}', 'H'))
    else:
        ops.append(lds(f'ds_write_b64 v{VH1}, v[{t+4}:{t+5}] offset:{rt*18432}', 'H'))
    return ops


def silu_group_tiles(g):
    cts = [2 * g, 2 * g + 1] if g < 4 else [8]
    return [(ct, rt) for ct in cts for rt in range(4)]


def stamp(p, n, enable):
    if enable:
        p(raw(f's_memtime s[{60+2*n}:{61+2*n}]'))


def gen_k2(timing=False):
    p = Prog()
    p('s_cmp_ge_u32 s2, 256')
    p('s_cbranch_scc1 K2_END')
    stamp(p, 0, timing)
    rt_start(p, timing, 96)
    p('s_load_dwordx4 s[4:7], s[0:1], 56')
    p('s_load_dwordx2 s[32:33], s[0:1], 88')
    p('s_load_dwordx4 s[36:39], s[0:1], 32')
    p('v_lshrrev_b32 v1, 6, v0')
    p('v_and_b32 v2, 63, v0')
    p('s_nop 0')
    p(f'v_readfirstlane_b32 s{S_W}, v1')
    p(f's_and_b32 s{S_J}, s2, 7')
    p(f's_lshr_b32 s{S_M}, s2, 3')
    p(f'v_lshlrev_b32 v{VL16}, 4, v2')
    p('v_lshrrev_b32 v36, 4, v2')
    p('v_and_b32 v37, 15, v2')

    def voffsets(vw, stride):
        p('v_lshlrev_b32 v38, 1, v36')
        p('v_xor_b32 v38, v37, v38')
        p('v_xor_b32 v39, 8, v38')
        p(f's_lshl_b32 s34, s{S_W}, 8')
        p('v_lshl_add_u32 v38, v38, 4, s34')
        p('v_lshl_add_u32 v39, v39, 4, s34')
        p(f's_mov_b32 s35, {stride}')
        p('v_mul_lo_u32 v40, v36, s35')
        p('v_add_u32 v38, v38, v40')
        p('v_add_u32 v39, v39, v40')
        for u in range(8):
            var = 38 if ((u >> 1) & 1) == 0 else 39
            c = 4 * u * stride - 1024 * (u & 3)
            p(f'v_add_u32 v{vw+u}, {c}, v{var}' if c else f'v_mov_b32 v{vw+u}, v{var}')
        p('v_lshrrev_b32 v41, 1, v2')
        p('v_and_b32 v42, 0x13, v41')
        p('v_bfe_u32 v43, v41, 2, 1')
        p('v_lshl_or_b32 v42, v43, 3, v42')
        p('v_bfe_u32 v43, v41, 3, 1')
        p('v_lshl_or_b32 v42, v43, 2, v42')
        p('v_mul_lo_u32 v42, v42, s35')
        p('v_and_b32 v43, 1, v2')
        p('v_lshl_add_u32 v42, v43, 4, v42')
        p(f's_lshl_b32 s44, s{S_W}, 5')
        p('s_add_u32 s44, s44, 1024')
        p(f'v_add_u32 v{vw+8}, s44, v42')

    voffsets(VW1, 9216)
    p(f's_mul_i32 s{S_W1B}, s{S_J}, 1152')
    p(f's_mul_i32 s{S_W2B}, s{S_J}, {576*1152}')
    p(f's_mul_i32 s{S_RING}, s{S_W}, 18432')
    p(f's_add_u32 s{S_RING}, s{S_RING}, {RING}')
    p(f's_mul_i32 s{S_XG}, s{S_M}, 73728')
    p(f's_mul_i32 s{S_XL}, s{S_W}, 18432')
    p(f's_add_u32 s{S_XG}, s{S_XG}, s{S_XL}')
    if WS_XN:
        p(f's_add_u32 s{S_XG}, s{S_XG}, {WS_XN}')
    p('s_waitcnt lgkmcnt(0)')
    stamp(p, 7, timing)
    srd(p, 16, 32, WS_END)
    p(xdma_ops(0, 3, 'XA', True))
    srd(p, 8, 4, D * F * 2)
    p(dma_ops(0))
    p(dma_ops(1))
    srd(p, 12, 6, D * F * 2)
    srd(p, 20, 36, D * S * 2)
    if PREFETCH:
        p('v_min_u32 v48, 161, v0')
        p('v_mul_u32_u24 v44, 7282, v48')
        p('v_lshrrev_b32 v44, 16, v44')
        p('v_mul_u32_u24 v45, 9, v44')
        p('v_sub_u32 v45, v48, v45')
        p(f's_mul_i32 s35, s{S_M}, 18')
        p('v_add_u32 v44, s35, v44')
        p('s_movk_i32 s44, 0x2400')
        p('v_mul_lo_u32 v44, v44, s44')
        p('v_lshl_add_u32 v44, v45, 7, v44')
        p('v_lshlrev_b32 v45, 7, v48')
        p(f's_mul_i32 s35, s35, 1152')
        p(f's_add_u32 s35, s35, s{S_W2B}')
        p(vm(f'buffer_load_dword v46, v44, s[8:11], s{S_W1B} offen', 'PF'))
        p(vm(f'buffer_load_dword v47, v45, s[12:15], s35 offen', 'PF'))
    stamp(p, 8, timing)
    voffsets(VW2, 1152)
    p('v_lshrrev_b32 v38, 2, v37')
    p('v_and_b32 v39, 3, v2')
    p('v_lshl_add_u32 v40, v36, 3, v38')
    p('v_lshlrev_b32 v40, 8, v40')
    p('v_lshlrev_b32 v41, 3, v39')
    p('v_add_u32 v40, v40, v41')
    p(f'v_add_u32 v40, s{S_RING}, v40')
    p('v_and_b32 v42, 1, v36')
    p('v_lshlrev_b32 v42, 3, v42')
    p('v_lshl_add_u32 v42, v38, 1, v42')
    for t in range(8):
        p(f'v_xor_b32 v43, {2*t}, v42')
        p(f'v_lshl_add_u32 v{VT+t}, v43, 4, v40')
    p('v_lshrrev_b32 v43, 1, v36')
    p('v_lshlrev_b32 v43, 4, v43')
    p('v_and_b32 v44, 1, v36')
    p('v_lshl_add_u32 v43, v44, 2, v43')
    p('v_add_u32 v43, v43, v38')
    p('v_lshl_add_u32 v43, v43, 5, v41')
    p(f's_add_u32 s35, s{S_RING}, 8192')
    p(f'v_add_u32 v{VT+8}, s35, v43')
    p(f'v_mov_b32 v{VA0}, v{VL16}')
    p(f'v_add_u32 v{VA1}, 36864, v{VL16}')
    p('v_lshlrev_b32 v43, 4, v37')
    p('v_lshrrev_b32 v44, 1, v36')
    p('v_lshl_add_u32 v43, v44, 8, v43')
    p('v_and_b32 v44, 1, v36')
    p('v_lshl_add_u32 v43, v44, 3, v43')
    p(f's_lshl_b32 s35, s{S_W}, 12')
    p(f'v_add_u32 v{VH0}, s35, v43')
    p(f's_lshr_b32 s35, s{S_W}, 1')
    p('s_lshl_b32 s35, s35, 10')
    p(f's_and_b32 s44, s{S_W}, 1')
    p('s_lshl_b32 s44, s44, 9')
    p('s_add_u32 s35, s35, s44')
    p('s_add_u32 s35, s35, 16384')
    p(f'v_add_u32 v{VH1}, s35, v43')
    stamp(p, 9, timing)
    p(wait_vm('XA'))
    stamp(p, 10, timing)
    p('s_barrier')
    stamp(p, 1, timing)
    p(aread_ops(0))
    p(wait_vm(['W0e', 'W0o']))
    b1, b2 = bread_ops(0)
    p(b1); p(b2)
    p(wait_lgkm(['A0', 'B0a', 'B0b']))
    p(dma_pieces(2, nop=True)[0])
    p(split_vm(dma_pieces(2, nop=True)[1], 2)[0])
    def put(d, gap, ops):
        d.setdefault(gap, []).extend(ops if isinstance(ops, list) else [ops])

    def place_dma(d, ops, gaps):
        gi = 0
        pend = []
        for o in ops:
            if o.kind == 'vm':
                g = gaps[gi]; gi += 1
                if pend:
                    put(d, g - 1, pend); pend = []
                put(d, g, o)
            else:
                pend.append(o)
        assert not pend

    SPLIT = {1: [2, 2, 2, 2], 2: [3, 2, 2, 1], 3: [3, 2, 2, 1], 4: [2, 1, 1, 0]}
    SPLIT[1] = [3, 2, 2, 1]
    for idx in range(36):
        if idx == 18:
            stamp(p, 2, timing)
        nxt = idx + 1
        mf = mfma_ops(idx)
        fx = {}
        if timing:
            sp = 82 + 2 * (idx % 6)
            if idx >= 3:
                so = 82 + 2 * ((idx - 3) % 6)
                p(raw(f'v_writelane_b32 v78, s{so}, {idx-3}'))
            p(raw(f's_memtime s[{sp}:{sp+1}]'))
        qpos = (idx - 18) % 4 if idx >= 18 else None
        V = []
        late = False
        if idx == 17:
            late = True
        elif 18 <= idx < 34:
            g = (idx - 18) // 4 + 1
            tiles = silu_group_tiles(g)
            lo_ = sum(SPLIT[g][:qpos])
            for (ct, rt) in tiles[lo_:lo_ + SPLIT[g][qpos]]:
                V += silu_tile_ops(ct, rt)
            late = (qpos == 3)
        if DBG_NOSILU: V = []
        if idx + 2 < 36 and not DBG_NODMA:
            place_dma(fx, split_vm(dma_pieces(idx + 2)[1], 2)[1], [1, 5])
        if nxt < 36 and not DBG_NOREAD:
            b1, b2 = bread_ops(nxt)
            put(fx, -1, wait_vm(f'W{nxt}e'))
            for g_, o in zip([0, 0, 2, 2, 3, 3, 4, 4, 6, 6], b1):
                put(fx, g_, o)
            put(fx, 7, wait_vm(f'W{nxt}o'))
            for g_, o in zip([7, 7, 8, 8, 10, 10, 11, 11], b2):
                put(fx, g_, o)
            put(fx, 8, wait_lgkm(f'B{nxt}a'))
            put(fx, 16, wait_lgkm(f'B{nxt}b'))
            if not late:
                for g_, o in zip([12, 14, 15, 16], aread_ops(nxt)):
                    put(fx, g_, o)
                put(fx, 35, wait_lgkm(f'A{nxt}'))
        if idx + 3 < 36 and not DBG_NODMA:
            ev, od = dma_pieces(idx + 3)
            place_dma(fx, ev, [9, 13, 17, 21, 25])
            place_dma(fx, split_vm(od, 2)[0], [29, 33])
        if idx < 4:
            for k_, g_ in enumerate([7, 11, 19, 27]):
                s_ = 3 + 4 * idx + k_
                if s_ < 18:
                    place_dma(fx, xdma_ops(s_, s_ + 1, 'XB' if s_ < 7 else 'XC', False), [g_])
        if idx == 2:
            put(fx, 11, [wait_vm('XB'), alu('s_barrier')])
        if idx == 6:
            put(fx, 11, [wait_vm('XC'), alu('s_barrier')])
        if idx == 17:
            put(fx, 12, alu('s_barrier'))
            sil = []
            for (ct, rt) in silu_group_tiles(0):
                sil += silu_tile_ops(ct, rt)
            nsil = 23 * 4
            p(place2(mf, fx, sil[:nsil], 13, 36))
            p(sil[nsil:])
            p(wait_lgkm('H')); p('s_barrier')
            p(aread_ops(18)); p(wait_lgkm('A18'))
            continue
        if late:
            put(fx, 23, [wait_lgkm('H'), alu('s_barrier')] + aread_ops(nxt))
            put(fx, 35, wait_lgkm(f'A{nxt}'))
            p(place2(mf, fx, V, 0, 23))
            continue
        extra = []
        if idx == 34:
            extra = conv_prefetch_ops(0)
        if idx == 35:
            extra = conv_prefetch_ops(1)
        if extra:
            p(place2(mf, fx, extra, 2, 36))
        else:
            p(place2(mf, fx, V, 0, 36))
    stamp(p, 3, timing)
    if timing:
        p('s_waitcnt lgkmcnt(0)')
        for idx in range(33, 36):
            so = 82 + 2 * (idx % 6)
            p(raw(f'v_writelane_b32 v78, s{so}, {idx}'))
        p(raw('v_writelane_b32 v78, s66, 36'))
        p('v_accvgpr_write_b32 a255, v78')
    p(f's_mul_i32 s31, s{S_J}, {NB}')
    p(f's_lshl_b32 s34, s{S_M}, 2')
    p(f's_add_u32 s34, s34, s{S_W}')
    p(f's_mul_i32 s34, s34, 18432')
    p('s_add_u32 s31, s31, s34')
    p(f's_add_u32 s31, s31, {WS_P}')
    p('s_nop 7')
    k = 0
    for pr in range(2):
        for ct in range(9):
            t = STMP + 12 * (k % 3)
            for hh in range(2):
                b = (ct * 4 + 2 * pr + hh) * 4
                for i in range(4):
                    p(f'v_accvgpr_read_b32 v{t+4*hh+i}, a{b+i}')
            q = t + 8
            p(f'v_cvt_pk_bf16_f32 v{q}, v{t}, v{t+1}')
            p(f'v_cvt_pk_bf16_f32 v{q+1}, v{t+2}, v{t+3}')
            p(f'v_cvt_pk_bf16_f32 v{q+2}, v{t+4}, v{t+5}')
            p(f'v_cvt_pk_bf16_f32 v{q+3}, v{t+6}, v{t+7}')
            if k % 4 == 0:
                p(f's_add_u32 s35, s31, {k*1024}')
            off = f' offset:{1024*(k & 3)}' if k & 3 else ''
            p(vm(f'buffer_store_dwordx4 v[{q}:{q+3}], v{VL16}, s[16:19], s35 offen{off} sc1', 'P'))
            k += 1
    stamp(p, 4, timing)
    p('s_cmp_ge_u32 s2, 144')
    p('s_cbranch_scc1 K2_DONE')
    gen_conv(p, timing)
    p.label('K2_DONE')
    if timing:
        stamp(p, 5, True)
        p('s_waitcnt vmcnt(0) lgkmcnt(0)')
        stamp(p, 6, True)
        p('s_waitcnt lgkmcnt(0)')
        rt_end(p, True, 96, 1, 32, 48)
        p('s_load_dwordx2 s[44:45], s[0:1], 80')
        p('s_waitcnt lgkmcnt(0)')
        srd(p, 48, 44, 256)
        srd(p, 56, 32, WS_END + 4096)
        p(f's_cmp_lg_u32 s{S_W}, 0')
        p('s_cbranch_scc1 K2_END')
        p('s_mov_b32 s52, 0')
        p('s_cmp_eq_u32 s2, 0')
        p('s_cbranch_scc1 K2_STAMP')
        p('s_mov_b32 s52, 64')
        p('s_cmp_eq_u32 s2, 200')
        p('s_cbranch_scc0 K2_END')
        p.label('K2_STAMP')
        p('v_accvgpr_read_b32 v3, a255')
        p('s_nop 1')
        p('v_subrev_u32 v3, s60, v3')
        p('v_and_b32 v4, 63, v0')
        p('v_lshlrev_b32 v4, 2, v4')
        p(f's_lshl_b32 s54, s52, 2')
        p(f's_add_u32 s54, s54, {WS_END}')
        p('buffer_store_dword v3, v4, s[56:59], s54 offen')
        for n in range(1, 11):
            p(f's_sub_u32 s53, s{60+2*n}, s60')
            p('v_mov_b32 v1, s53')
            p(f'v_mov_b32 v2, {4*n}')
            p('buffer_store_dword v1, v2, s[48:51], s52 offen')
    p.label('K2_END')
    p('s_endpgm')
    return p


def conv_prefetch_ops(part):
    ops = []
    if part == 0:
        ops.append(alu('s_lshl_b32 s40, s2, 2'))
        ops.append(alu(f's_add_u32 s40, s40, s{S_W}'))
        ops.append(alu('s_min_u32 s40, s40, 575'))
        ops.append(alu('s_lshl_b32 s41, s40, 12'))
        ops.append(alu(f'v_add_u32 v38, s41, v{VL16}'))
        ops.append(alu('v_subrev_u32 v39, 32, v38'))
        ops.append(alu('v_max_i32 v39, 0, v39'))
        ops.append(alu('v_add_u32 v38, 992, v38'))
        for d, base in ((0, P0), (4, P1), (8, P2)):
            ops.append(vm(f'buffer_load_dwordx4 v[{base}:{base+3}], v39, s[20:23], 0 offen offset:{d}', 'CP'))
            for q in range(1, 5):
                ops.append(vm(f'buffer_load_dwordx4 v[{base+4*q}:{base+4*q+3}], v38, s[20:23], 0 offen offset:{1024*(q-1)+d}', 'CP'))
    else:
        ops.append(alu(f's_add_u32 s42, s41, {WS_UR}'))
        for q in range(4):
            off = f' offset:{1024*q}' if q else ''
            ops.append(vm(f'buffer_load_dwordx4 v[{PU+4*q}:{PU+4*q+3}], v{VL16}, s[16:19], s42 offen{off}', 'CP'))
    return ops


def gen_conv(p, timing):
    p('s_and_b32 s43, s40, 0xfffe')
    p('s_lshl_b32 s43, s43, 1')
    p('s_load_dword s44, s[38:39], s43')
    p('s_barrier')
    p(f's_mul_i32 s45, s{S_W}, {CONV_STRIDE}')
    p(wait_vm('CP'))
    p(f'v_readlane_b32 s46, v{P0}, 2')
    p(f'v_readlane_b32 s47, v{P0+1}, 2')
    p('s_mov_b64 exec, 3')
    for base in (P0, P1, P2):
        for i in range(4):
            p(f'v_mov_b32 v{base+i}, 0')
    p('s_mov_b64 exec, -1')
    p(f'v_writelane_b32 v{P1+3}, s46, 1')
    p(f'v_writelane_b32 v{P2+2}, s46, 1')
    p(f'v_writelane_b32 v{P2+3}, s47, 1')
    p(f'v_add_u32 v38, s45, v{VL16}')
    T = 40
    for q in range(5):
        p(f'ds_write_b128 v38, v[{P0+4*q}:{P0+4*q+3}] offset:{1024*q}')
        p(f'ds_write_b128 v38, v[{P1+4*q}:{P1+4*q+3}] offset:{2*CONV_COPY + 1024*q}')
        t = T + 8 * (q % 2)
        for i in range(4):
            p(f'v_alignbit_b32 v{t+i}, v{P1+4*q+i}, v{P0+4*q+i}, 16')
        p(f'ds_write_b128 v38, v[{t}:{t+3}] offset:{CONV_COPY + 1024*q}')
        for i in range(4):
            p(f'v_alignbit_b32 v{t+4+i}, v{P2+4*q+i}, v{P1+4*q+i}, 16')
        p(f'ds_write_b128 v38, v[{t+4}:{t+7}] offset:{3*CONV_COPY + 1024*q}')
    for q in range(4):
        p(f'ds_write_b128 v38, v[{PU+4*q}:{PU+4*q+3}] offset:{CONV_UR + 1024*q}')
    for i in range(4):
        p(f'v_mov_b32 v{60+i}, 0')
    p(f'ds_write_b128 v38, v[60:63] offset:{CONV_UR + 4096}')
    p('v_add_u32 v39, 1, v37')
    p('v_and_b32 v56, 3, v39')
    p(f'v_mul_u32_u24 v56, {CONV_COPY}, v56')
    p('v_and_b32 v57, 0x1c, v39')
    p('v_lshl_add_u32 v56, v57, 1, v56')
    p('v_lshl_add_u32 v56, v36, 4, v56')
    p('v_add_u32 v56, s45, v56')
    p('v_lshlrev_b32 v57, 5, v37')
    p('v_lshlrev_b32 v58, 4, v36')
    p('v_sub_u32 v57, v58, v57')
    p(f's_add_u32 s46, s45, {CONV_UR + 4064 - 3584}')
    p('v_add_u32 v57, s46, v57')
    for r in range(32):
        p(f'v_mov_b32 v{CACC+r}, 0')
    p('s_waitcnt lgkmcnt(0)')

    def reads(r):
        st = r & 1
        ops = []
        for k in range(8):
            a = 64 * st + 4 * k
            b = 64 * st + 32 + 4 * k
            ops.append(lds(f'ds_read_b64 a[{a}:{a+1}], v56 offset:{512*k + 64*r}', f'C{r}'))
            ops.append(lds(f'ds_read_b64 a[{a+2}:{a+3}], v56 offset:{512*k + 64*r + 8}', f'C{r}'))
            ops.append(lds(f'ds_read_b128 a[{b}:{b+3}], v57 offset:{512*(7-k) + 64*r}', f'C{r}'))
        return ops

    p(reads(0))
    for r in range(8):
        st = r & 1
        mf = []
        for nt in range(8):
            for ap in range(nt + 1):
                a = 64 * st + 4 * ap
                b = 64 * st + 32 + 4 * (nt - ap)
                d = CACC + 4 * nt
                mf.append((nt, ap, mfma(f'v_mfma_f32_16x16x32_bf16 v[{d}:{d+3}], a[{a}:{a+3}], a[{b}:{b+3}], v[{d}:{d+3}]')))
        mf.sort(key=lambda x: (x[1], x[0]))
        mf = [x[2] for x in mf]
        p(wait_lgkm(f'C{r}'))
        if r < 7:
            p(interleave(mf, reads(r + 1), 0, 30))
        else:
            p(mf)
    p('s_waitcnt lgkmcnt(0)')
    p('s_and_b32 s43, s40, 1')
    p('s_lshl_b32 s43, s43, 4')
    p('s_lshr_b32 s44, s44, s43')
    p('s_lshl_b32 s44, s44, 16')
    p('v_lshlrev_b32 v58, 5, v37')
    p('v_lshl_add_u32 v58, v36, 3, v58')
    p(f's_add_u32 s46, s45, {CONV_UR + 4088 - 512*7}')
    p('v_sub_u32 v59, s46, v58')
    for nt in range(8):
        p(lds(f'ds_read_b64 v[{112+2*nt}:{113+2*nt}], v59 offset:{512*(7-nt)}', 'U'))
    p(f's_mul_i32 s46, s{S_W}, 4160')
    p(f's_add_u32 s46, s46, {CONV_YT}')
    p('v_add_u32 v59, s46, v58')
    p('s_nop 7')
    p(wait_lgkm('U'))
    for nt in range(8):
        d = CACC + 4 * nt
        u0, u1 = 112 + 2 * nt, 113 + 2 * nt
        y = [d, d + 1, d + 2, d + 3]
        round_pairs(p, y, 60)
        t = [64, 65, 66, 67]
        p(f'v_and_b32 v{t[0]}, 0xffff0000, v{u1}')
        p(f'v_lshlrev_b32 v{t[1]}, 16, v{u1}')
        p(f'v_and_b32 v{t[2]}, 0xffff0000, v{u0}')
        p(f'v_lshlrev_b32 v{t[3]}, 16, v{u0}')
        for i in range(4): p(f'v_mul_f32 v{t[i]}, s44, v{t[i]}')
        round_pairs(p, t, 60)
        for i in range(4): p(f'v_add_f32 v{y[i]}, v{y[i]}, v{t[i]}')
        o = 68 + 2 * (nt % 2)
        p(f'v_cvt_pk_bf16_f32 v{o}, v{y[0]}, v{y[1]}')
        p(f'v_cvt_pk_bf16_f32 v{o+1}, v{y[2]}, v{y[3]}')
        p(f'ds_write_b64 v59, v[{o}:{o+1}] offset:{512*nt}')
    p('s_waitcnt lgkmcnt(0)')
    p('s_barrier')
    p('v_lshrrev_b32 v58, 2, v37')
    p('v_mul_u32_u24 v58, 4160, v58')
    p('v_and_b32 v59, 3, v2')
    p('v_lshl_add_u32 v58, v59, 3, v58')
    p('v_lshl_add_u32 v58, v36, 5, v58')
    p(f's_lshl_b32 s46, s{S_W}, 10')
    p(f's_add_u32 s46, s46, {CONV_YT}')
    p('v_add_u32 v58, s46, v58')
    for k in range(8):
        p(lds(f'ds_read_b64_tr_b16 v[{112+2*k}:{113+2*k}], v58 offset:{128*k}', 'YT'))
    p('v_lshlrev_b32 v59, 3, v2')
    p('s_lshl_b32 s46, s2, 14')
    p(f's_lshl_b32 s47, s{S_W}, 12')
    p('s_add_u32 s46, s46, s47')
    p(f's_add_u32 s46, s46, {WS_Y}')
    p(wait_lgkm('YT'))
    for k in range(8):
        p(f'buffer_store_dwordx2 v[{112+2*k}:{113+2*k}], v59, s[16:19], s46 offen offset:{512*k}')


def build(timing=False):
    k1, k2, k3 = gen_k1(timing), gen_k2(timing), gen_k3(timing)
    txt = HEADER
    txt += '; @launch kernel=k1_prep_kernel grid=(416,1,1) block=(256,1,1) lds=9216\n'
    txt += '; @launch kernel=k2_main_kernel grid=(256,1,1) block=(256,1,1) lds=163840\n'
    txt += '; @launch kernel=k3_final_kernel grid=(256,1,1) block=(576,1,1) lds=0\n'
    txt += '.amdgcn_target "amdgcn-amd-amdhsa--gfx950"\n'
    txt += kernel_head('k1_prep_kernel') + k1.resolve()
    txt += kernel_head('k2_main_kernel') + k2.resolve()
    txt += kernel_head('k3_final_kernel') + k3.resolve()
    txt += kernel_descriptor('k1_prep_kernel', 96, 72, 96)
    txt += kernel_descriptor('k2_main_kernel', 512, 102, 256)
    txt += kernel_descriptor('k3_final_kernel', 104, 72, 104)
    return txt


if __name__ == '__main__':
    timing = '--timing' in sys.argv
    out = [a for a in sys.argv[1:] if not a.startswith('--')]
    txt = build(timing)
    open(out[0] if out else 'cdna_kernels/' + NAME + '.s', 'w').write(txt)
```

```python
import re


class Op:
    __slots__ = ("text", "kind", "tag", "cost")

    def __init__(self, text, kind="alu", tag=None, cost=1):
        self.text = text
        self.kind = kind
        self.tag = tag
        self.cost = cost


def alu(t, cost=1):
    return Op(t, "alu", cost=cost)


def trans(t):
    return Op(t, "alu", cost=2)


def mfma(t):
    return Op(t, "mfma")


def lds(t, tag=None):
    return Op(t, "lds", tag)


def vm(t, tag=None):
    return Op(t, "vm", tag)


def wait_lgkm(tag):
    return Op(None, "wait_lgkm", tag)


def wait_vm(tag):
    return Op(None, "wait_vm", tag)


def raw(t):
    return Op(t, "raw")


def opaque(t):
    return Op(t, "opaque")


class Prog:
    def __init__(self):
        self.ops = []

    def add(self, x):
        if isinstance(x, (list, tuple)):
            for y in x:
                self.add(y)
        elif isinstance(x, str):
            for line in x.split("\n"):
                line = line.strip()
                if not line:
                    continue
                self.ops.append(classify(line))
        else:
            self.ops.append(x)

    __call__ = add

    def label(self, name):
        self.ops.append(Op(name + ":", "label"))

    def resolve(self):
        out = []
        lq = []
        vq = []
        stack = []
        for op in self.ops:
            if op.kind == "push":
                stack.append((list(lq), list(vq)))
            elif op.kind == "pop":
                lq, vq = stack.pop()
            elif op.kind == "lds":
                lq.append(op.tag)
                out.append("  " + op.text)
            elif op.kind == "vm":
                vq.append(op.tag)
                out.append("  " + op.text)
            elif op.kind == "wait_lgkm":
                tags = op.tag if isinstance(op.tag, (list, tuple, set)) else [op.tag]
                idx = max([i for i, t in enumerate(lq) if t in tags], default=-1)
                if idx < 0:
                    continue
                n = len(lq) - 1 - idx
                n = min(n, 15)
                out.append(f"  s_waitcnt lgkmcnt({n})")
                lq = lq[len(lq) - n:] if n > 0 else []
            elif op.kind == "wait_vm":
                tags = op.tag if isinstance(op.tag, (list, tuple, set)) else [op.tag]
                idx = max([i for i, t in enumerate(vq) if t in tags], default=-1)
                if idx < 0:
                    continue
                n = len(vq) - 1 - idx
                n = min(n, 63)
                out.append(f"  s_waitcnt vmcnt({n})")
                vq = vq[len(vq) - n:] if n > 0 else []
            elif op.kind == "label":
                out.append(op.text)
            elif op.kind == "opaque":
                out.append("  " + op.text)
            else:
                t = op.text
                m = re.match(r"s_waitcnt\s+(.*)", t)
                if m:
                    a = m.group(1)
                    mm = re.search(r"lgkmcnt\((\d+)\)", a)
                    if mm:
                        n = int(mm.group(1))
                        lq = lq[len(lq) - n:] if 0 < n < len(lq) else ([] if n == 0 else lq)
                    mm = re.search(r"vmcnt\((\d+)\)", a)
                    if mm:
                        n = int(mm.group(1))
                        vq = vq[len(vq) - n:] if 0 < n < len(vq) else ([] if n == 0 else vq)
                out.append("  " + t)
        return "\n".join(out) + "\n"


def classify(line):
    if line.endswith(":"):
        return Op(line, "label")
    w = line.split()[0]
    if w.startswith("v_mfma"):
        return mfma(line)
    if w.startswith("ds_"):
        return lds(line)
    if w.startswith("buffer_") or w.startswith("global_"):
        return vm(line)
    if w in ("v_exp_f32", "v_rcp_f32", "v_sqrt_f32", "v_rsq_f32", "v_log_f32"):
        return trans(line)
    return alu(line)


def interleave(mf, fill, start=0, end=None, per_gap_cap=None):
    n = len(mf)
    end = n if end is None else end
    gaps = end - start
    total = sum(max(f.cost, 0) if f.kind not in ("wait_lgkm", "wait_vm") else 1 for f in fill)
    out = []
    fi = 0
    acc = 0
    for k in range(n):
        out.append(mf[k])
        if k < start or k >= end:
            continue
        target = total * (k - start + 1) / gaps
        while fi < len(fill) and (acc < target - 1e-9 or k == end - 1):
            f = fill[fi]
            c = f.cost if f.kind not in ("wait_lgkm", "wait_vm") else 1
            if acc + c > target + 0.5 * c and k != end - 1:
                break
            out.append(f)
            acc += c
            fi += 1
    assert fi == len(fill)
    return out


def merge_streams(a, b):
    ca = sum(x.cost for x in a) or 1
    cb = sum(x.cost for x in b) or 1
    out = []
    i = j = 0
    pa = pb = 0.0
    while i < len(a) or j < len(b):
        fa = pa / ca if i < len(a) else 2.0
        fb = pb / cb if j < len(b) else 2.0
        if fa <= fb:
            out.append(a[i]); pa += a[i].cost; i += 1
        else:
            out.append(b[j]); pb += b[j].cost; j += 1
    return out


def kernel_descriptor(name, vgpr, sgpr, accum, extra=""):
    return f"""
.section .rodata,"a"
.p2align 6
.amdhsa_kernel {name}
  .amdhsa_next_free_vgpr {vgpr}
  .amdhsa_next_free_sgpr {sgpr}
  .amdhsa_accum_offset {accum}
  .amdhsa_group_segment_fixed_size 0
  .amdhsa_kernarg_size 96
  .amdhsa_user_sgpr_count 2
  .amdhsa_user_sgpr_kernarg_segment_ptr 1
  .amdhsa_system_sgpr_workgroup_id_x 1
{extra}.end_amdhsa_kernel
"""


def kernel_head(name):
    return f""".text
.globl {name}
.p2align 8
.type {name},@function
{name}:
"""


def place(mf, fixed, flow=(), lo=0, hi=None):
    n = len(mf)
    hi = n if hi is None else hi
    cost = lambda o: 1 if o.kind in ("wait_lgkm", "wait_vm") else o.cost
    fc = [sum(cost(o) for o in fixed.get(k, [])) for k in range(n)]
    tot = sum(fc[lo:hi]) + sum(cost(o) for o in flow)
    per = tot / max(hi - lo, 1)
    out = list(fixed.get(-1, []))
    fi = 0
    acc = 0.0
    for k in range(n):
        out.append(mf[k])
        out += fixed.get(k, [])
        if lo <= k < hi:
            acc += fc[k]
            target = per * (k - lo + 1)
            while fi < len(flow) and (acc + 0.5 * cost(flow[fi]) <= target or k == hi - 1):
                out.append(flow[fi]); acc += cost(flow[fi]); fi += 1
    assert fi == len(flow)
    return out


def icost(o):
    if o.kind in ("wait_lgkm", "wait_vm"):
        return 4
    if o.kind == "lds":
        return 16 if o.text.startswith("ds_write") else 8
    if o.kind == "vm":
        return 15
    t = o.text or ""
    if t.startswith(("v_exp", "v_rcp", "v_sqrt", "v_rsq", "v_log")):
        return 8
    return 4 * (t.count("\n") + 1)


def is_valu(o):
    return o.kind == "alu" and (o.text or "").startswith("v_")


def place2(mf, fixed, flow=(), lo=0, hi=None, mcyc=16):
    n = len(mf)
    hi = n if hi is None else hi
    fc = [sum(icost(o) for o in fixed.get(k, [])) for k in range(n)]
    tot = sum(fc[lo:hi]) + sum(icost(o) for o in flow)
    per = max(tot / max(hi - lo, 1), 0)
    out = list(fixed.get(-1, []))
    fi = 0
    acc = 0.0
    deferred = []
    flow = list(flow)
    for k in range(n):
        out.append(mf[k])
        items = list(fixed.get(k, []))
        nonv = [o for o in items if not is_valu(o)]
        val = [o for o in items if is_valu(o)]
        if lo <= k < hi:
            nonv = nonv + deferred if k < hi - 1 else nonv
            tail = deferred if k == hi - 1 else []
            acc += fc[k] + sum(icost(o) for o in deferred)
            pre = list(deferred)
            deferred = []
            target = per * (k - lo + 1)
            while fi < len(flow) and (acc + 0.5 * icost(flow[fi]) <= target or k == hi - 1):
                o = flow[fi]; fi += 1
                if is_valu(o):
                    val.append(o); acc += icost(o)
                elif not val:
                    nonv.append(o); acc += icost(o)
                elif k == hi - 1:
                    val.append(o); acc += icost(o)
                else:
                    deferred.append(o)
            if k == hi - 1:
                nonv = tail + nonv
        out += nonv + val
    assert fi == len(flow) and not deferred
    return out
```

```python
import os
import sys
sys.path.insert(0, 'exp')
from asmgen import *

NAME = 'recurrent_scan__ssm_conv_h3__dense_activation_silu__prompt'
KNAME = NAME + '_kernel'
S, D, F = 2048, 576, 4608
NB = S * D * 2
WS_UR = 0
WS_Y = NB
WS_FL = 2 * NB
FL_UR, FL_P, FL_Y = 0, 1024, 1024 + 4096
WS_P = 2 * NB + 65536
WS_END = WS_P + 8 * NB
WS_DBG = WS_END
LOG2E_NEG = 0xbfb8aa3b
HEADER = open('cdna_kernels/' + NAME + '.s.ref').read().split('; Override launch')[0]

ORDER2 = [0, 4, 8, 12, 1, 5, 9, 13, 2, 6, 10, 14, 3, 7, 11, 15, 16, 17]
RING = 73728
SPARE = 147456
LDS_T = SPARE
LDS_ST = SPARE + 12288
ACC1 = 112
BSET = 144
ASET = 216
VW1, VW2, VT = 4, 13, 22
VA0, VA1 = 31, 32
VH0, VH1 = 33, 34
VL16 = 35
VG, VN = 36, 37
VX = 80
STMP = 40
S_W, S_J, S_M = 24, 25, 26
S_SOFF, S_RING, S_W1B, S_W2B, S_SOFF2 = 27, 28, 29, 30, 31
S_NONCE = 94
S_PF2 = 92
S_MI = 23 + 70
PST = os.environ.get('PST', 'sc1')
PLD = os.environ.get('PLD', 'sc1')
KVPF = os.environ.get('KVPF', '1') == '1'
NSH = int(os.environ.get('NSH', '1'))
KR, VR, SK = 0, 28, 44
VTW = 84
CONV_STRIDE = 25856
CONV_COPY = 5184
CONV_UR = 4 * CONV_COPY
CONV_YT = 4 * CONV_STRIDE
P0, P1, P2, PU = 112, 132, 152, 172
CACC = 80
SPIN_MAX = 1 << 20

DBG_NOSILU = 'NOSILU' in os.environ


def f32bits(x):
    import struct
    return struct.unpack('<I', struct.pack('<f', x))[0]


def srd(p, s, lo, size):
    p(f's_mov_b32 s{s}, s{lo}')
    p(f's_mov_b32 s{s+1}, s{lo+1}')
    p(f's_mov_b32 s{s+2}, {size}')
    p(f's_mov_b32 s{s+3}, 0x00020000')


def round_bf16(p, dst, src):
    p(f'v_cvt_pk_bf16_f32 v{dst}, v{src}, v{src}')
    p(f'v_lshlrev_b32 v{dst}, 16, v{dst}')


def unpack(p, lo, hi, src):
    if lo == src:
        p(f'v_and_b32 v{hi}, 0xffff0000, v{src}')
        p(f'v_lshlrev_b32 v{lo}, 16, v{src}')
    else:
        p(f'v_lshlrev_b32 v{lo}, 16, v{src}')
        p(f'v_and_b32 v{hi}, 0xffff0000, v{src}')


def round_pairs(p, regs, tmp):
    for i in range(0, len(regs), 2):
        p(f'v_cvt_pk_bf16_f32 v{tmp}, v{regs[i]}, v{regs[i+1]}')
        unpack(p, regs[i], regs[i + 1], tmp)


def silu_inplace(p, regs, tmp):
    n = len(regs)
    for i in range(n): p(f'v_mul_f32 v{tmp[i]}, {hex(LOG2E_NEG)}, v{regs[i]}')
    for i in range(n): p(f'v_exp_f32 v{tmp[i]}, v{tmp[i]}')
    p('s_nop 0')
    for i in range(n): p(f'v_add_f32 v{tmp[i]}, 1.0, v{tmp[i]}')
    for i in range(n): p(f'v_rcp_f32 v{tmp[i]}, v{tmp[i]}')
    p('s_nop 0')
    for i in range(n): p(f'v_mul_f32 v{regs[i]}, v{regs[i]}, v{tmp[i]}')


def acc1(ct, rt):
    b = ACC1 + (ct * 4 + rt) * 4
    return f'v[{b}:{b+3}]'


def acc2(ct, rt):
    b = (ct * 4 + rt) * 4
    return f'a[{b}:{b+3}]'


def soff_reg(idx):
    return S_SOFF if idx & 1 == 0 else S_SOFF2


def dma_pieces(idx, nop=False):
    slot = idx & 1
    so = soff_reg(idx)
    if idx < 18:
        vw, srd_ = VW1, 's[8:11]'
        setup = alu(f's_add_u32 s{so}, s{S_W1B}, {idx * 32 * 9216}')
    else:
        vw, srd_ = VW2, 's[12:15]'
        setup = alu(f's_add_u32 s{so}, s{S_W2B}, {ORDER2[idx-18] * 32 * 1152}')

    def m0(off):
        r = [alu(f's_add_u32 m0, s{S_RING}, {slot * 9216 + off}')]
        if nop: r.append(alu('s_nop 0'))
        return r

    def ld(u, tag):
        off = f' offset:{1024 * (u & 3)}' if (u & 3) and u < 8 else ''
        return [vm(f'buffer_load_dwordx4 v{vw+u}, {srd_}, s{so} offen{off} lds', tag)]
    te, to = f'W{idx}e', f'W{idx}o'
    even = [setup] + m0(8192) + ld(8, te) + m0(0) + ld(0, te) + ld(2, te) + m0(4096) + ld(4, te) + ld(6, te)
    odd = m0(0) + ld(1, to) + ld(3, to) + m0(4096) + ld(5, to) + ld(7, to)
    return even, odd


def dma_ops(idx):
    e, o = dma_pieces(idx, nop=True)
    return e + o


def split_vm(ops, n):
    c = 0
    for i, o in enumerate(ops):
        if o.kind == 'vm':
            c += 1
            if c == n:
                return ops[:i+1], ops[i+1:]
    raise ValueError


def bread_ops(idx):
    slot = idx & 1
    o = slot * 9216
    first, second = [], []
    b = BSET + 36 * slot + 32
    first.append(lds(f'ds_read_b64_tr_b16 a[{b}:{b+1}], v{VT+8} offset:{o}', f'B{idx}a'))
    first.append(lds(f'ds_read_b64_tr_b16 a[{b+2}:{b+3}], v{VT+8} offset:{o+256}', f'B{idx}a'))
    for t in range(8):
        b = BSET + 36 * slot + 4 * t
        first.append(lds(f'ds_read_b64_tr_b16 a[{b}:{b+1}], v{VT+t} offset:{o}', f'B{idx}a'))
        second.append(lds(f'ds_read_b64_tr_b16 a[{b+2}:{b+3}], v{VT+t} offset:{o+1024}', f'B{idx}b'))
    return first, second


def aread_ops(idx):
    s = idx if idx < 18 else ORDER2[idx - 18]
    st = idx & 1
    ops = []
    for rt in range(4):
        b = ASET + 16 * st + 4 * rt
        if idx < 18:
            va = VX + (s & 1) + (2 if rt >= 2 else 0)
        else:
            va = VA0 if rt < 2 else VA1
        ops.append(lds(f'ds_read_b128 a[{b}:{b+3}], v{va} offset:{((rt & 1) * 18 + s) * 1024}', f'A{idx}'))
    return ops


def mfma_ops(idx):
    st = idx & 1
    ops = []
    for ct in range(9):
        for rt in range(4):
            d = acc1(ct, rt) if idx < 18 else acc2(ct, rt)
            wb = BSET + 36 * st + 4 * ct
            xb = ASET + 16 * st + 4 * rt
            c = '0' if idx in (0, 18) else d
            ops.append(mfma(f'v_mfma_f32_16x16x32_bf16 {d}, a[{wb}:{wb+3}], a[{xb}:{xb+3}], {c}'))
    return ops


_silu_rot = [0]


def silu_tile_ops(ct, rt):
    b = ACC1 + (ct * 4 + rt) * 4
    t = STMP + 8 * (_silu_rot[0] % 4)
    _silu_rot[0] += 1
    ops = []
    for i in range(4): ops.append(alu(f'v_mul_f32 v{t+i}, {hex(LOG2E_NEG)}, v{b+i}'))
    for i in range(4): ops.append(trans(f'v_exp_f32 v{t+i}, v{t+i}'))
    for i in range(4): ops.append(alu(f'v_add_f32 v{t+i}, 1.0, v{t+i}'))
    for i in range(4): ops.append(trans(f'v_rcp_f32 v{t+i}, v{t+i}'))
    for i in range(4): ops.append(alu(f'v_mul_f32 v{t+i}, v{b+i}, v{t+i}'))
    ops.append(alu(f'v_cvt_pk_bf16_f32 v{t+4}, v{t}, v{t+1}'))
    ops.append(alu(f'v_cvt_pk_bf16_f32 v{t+5}, v{t+2}, v{t+3}'))
    if ct < 8:
        ops.append(lds(f'ds_write_b64 v{VH0}, v[{t+4}:{t+5}] offset:{rt*18432 + (ct >> 1)*1024 + (ct & 1)*512}', 'H'))
    else:
        ops.append(lds(f'ds_write_b64 v{VH1}, v[{t+4}:{t+5}] offset:{rt*18432}', 'H'))
    return ops


def kv_pair_ops(e):
    ops = []
    R = list(range(40, 55))
    for i in range(7): ops.append(alu(f'v_accvgpr_read_b32 v{R[i]}, a{KR + 4*i + e//2}'))
    for i in range(4): ops.append(alu(f'v_accvgpr_read_b32 v{R[7+i]}, a{VR + 4*i + e//2}'))
    for i in range(4): ops.append(alu(f'v_accvgpr_read_b32 v{R[11+i]}, a{SK + 2*e + i}'))
    for hi in range(2):
        def up(dst, src):
            ops.append(alu(f'v_and_b32 v{dst}, 0xffff0000, v{src}' if hi else f'v_lshlrev_b32 v{dst}, 16, v{src}'))
        kf = list(range(55, 62)); vf = list(range(62, 66)); sk = [66, 67, 68, 69]; ks = [70, 71, 72, 73]
        for i in range(7): up(kf[i], R[i])
        for i in range(4): up(vf[i], R[7 + i])
        for i in range(2):
            src = R[11 + 2 * hi + i]
            ops.append(alu(f'v_lshlrev_b32 v{sk[2*i]}, 16, v{src}'))
            ops.append(alu(f'v_and_b32 v{sk[2*i+1]}, 0xffff0000, v{src}'))
        for t in range(4): ops.append(alu(f'v_mul_f32 v{ks[t]}, v{kf[t]}, v{sk[3]}'))
        for jx in (2, 1, 0):
            for t in range(4): ops.append(alu(f'v_fmac_f32 v{ks[t]}, v{kf[3+t-jx]}, v{sk[jx]}'))
        for i in (0, 2):
            ops.append(alu(f'v_cvt_pk_bf16_f32 v74, v{ks[i]}, v{ks[i+1]}'))
            ops.append(alu(f'v_lshlrev_b32 v{ks[i]}, 16, v74'))
            ops.append(alu(f'v_and_b32 v{ks[i+1]}, 0xffff0000, v74'))
        for t in range(4): ops.append(alu(f'v_mul_f32 v{ks[t]}, v{ks[t]}, v{vf[t]}'))
        o = 76 + 2 * hi
        ops.append(alu(f'v_cvt_pk_bf16_f32 v{o}, v{ks[3]}, v{ks[2]}'))
        ops.append(alu(f'v_cvt_pk_bf16_f32 v{o+1}, v{ks[1]}, v{ks[0]}'))
        ops.append(lds(f'ds_write_b64 v{VTW}, v[{o}:{o+1}] offset:{144*(e+hi)}', 'T'))
    return ops


def ur_addr_ops():
    ops = []
    ops.append(alu(f's_mul_i32 s95, s{S_J}, {72*4096}'))
    ops.append(alu(f's_lshl_b32 s35, s{S_M}, 7'))
    ops.append(alu('s_sub_u32 s95, s95, s35'))
    ops.append(alu(f's_add_u32 s95, s95, {WS_UR + 1984*2}'))
    for r in range(3):
        ops.append(alu(f'v_add_u32 v60, {256*r}, v0'))
        if r == 2: ops.append(alu('v_min_u32 v60, 575, v60'))
        ops.append(alu('v_lshrrev_b32 v61, 3, v60'))
        ops.append(alu('v_and_b32 v62, 7, v60'))
        ops.append(alu(f'v_mul_u32_u24 v{98+r}, 144, v61'))
        ops.append(alu(f'v_lshl_add_u32 v{98+r}, v62, 4, v{98+r}'))
        ops.append(alu(f'v_add_u32 v{98+r}, {LDS_T}, v{98+r}'))
        ops.append(alu(f'v_lshlrev_b32 v{101+r}, 12, v61'))
        ops.append(alu(f'v_lshl_add_u32 v{101+r}, v62, 4, v{101+r}'))
    return ops


def silu_group_tiles(g):
    cts = [2 * g, 2 * g + 1] if g < 4 else [8]
    return [(ct, rt) for ct in cts for rt in range(4)]


class Stamps:
    def __init__(self, on): self.on = on
    def __call__(self, p, n):
        if self.on: p(raw(f's_memtime s[{68+2*n}:{69+2*n}]'))


_lab = [0]


def poll(p, vdst, vaddr, soff, name):
    _lab[0] += 1
    L = f'POLL{_lab[0]}_{name}'
    p(f's_mov_b32 s47, {SPIN_MAX}')
    p.label(L)
    p(raw(f'buffer_load_dword v{vdst}, v{vaddr}, s[16:19], {soff} offen sc1'))
    p('s_waitcnt vmcnt(0)')
    p(f'v_cmp_ne_u32 vcc, s{S_NONCE}, v{vdst}')
    p('s_nop 3')
    p('s_cmp_eq_u64 vcc, 0')
    p(f's_cbranch_scc1 {L}_X')
    p('s_sub_u32 s47, s47, 1')
    p(f's_cbranch_scc1 {L}_X')
    p('s_sleep 1')
    p(f's_branch {L}')
    p.label(f'{L}_X')


def nonce_check(p, sfx):
    p('s_nop 0')
    p(f'v_readfirstlane_b32 s{S_NONCE}, v89')
    p(f's_cmp_lg_u32 s{S_NONCE}, 0')
    p(f's_cbranch_scc1 K_HAVE_NONCE{sfx}')
    p(f's_mov_b32 s34, {SPIN_MAX}')
    p.label(f'K_NONCE_SPIN{sfx}')
    p('v_mov_b32 v89, 0')
    p(opaque('buffer_load_dword v89, v89, s[44:47], 0 offen sc1'))
    p(opaque('s_waitcnt vmcnt(0)'))
    p(f'v_readfirstlane_b32 s{S_NONCE}, v89')
    p('s_sub_u32 s34, s34, 1')
    p(f's_cbranch_scc1 K_HAVE_NONCE{sfx}')
    p(f's_cmp_lg_u32 s{S_NONCE}, 0')
    p(f's_cbranch_scc1 K_HAVE_NONCE{sfx}')
    p('s_sleep 1')
    p(f's_branch K_NONCE_SPIN{sfx}')
    p.label(f'K_HAVE_NONCE{sfx}')


def publish_ur(p):
    p(f's_cmp_lg_u32 s{S_W}, 0')
    p('s_cbranch_scc1 K_NOFL1')
    p(f's_lshl_b32 s34, s{S_J}, 7')
    p(f's_lshl_b32 s35, s{S_M}, 2')
    p('s_add_u32 s34, s34, s35')
    p(f's_add_u32 s34, s34, {WS_FL + FL_UR}')
    p(f'v_mov_b32 v38, s{S_NONCE}')
    p('v_mov_b32 v39, 0')
    p('s_mov_b64 exec, 1')
    p(raw('buffer_store_dword v38, v39, s[16:19], s34 offen sc1'))
    p('s_mov_b64 exec, -1')
    p.label('K_NOFL1')


KA, VA_, SA = 0, 44, 76


def kv_addr_ops():
    T = []
    A = lambda t: T.append(alu(t))
    A('s_sub_u32 s100, s2, 144')
    A('v_mul_u32_u24 v40, 911, v0')
    A('v_lshrrev_b32 v40, 16, v40')
    A('v_mul_u32_u24 v41, 72, v40')
    A('v_sub_u32 v41, v0, v41')
    A('v_mul_u32_u24 v42, 112, v40')
    A('v_add_u32 v42, s100, v42')
    A('v_cmp_lt_u32 vcc, 255, v42')
    A('v_mov_b32 v43, s100')
    A('v_mul_u32_u24 v44, 7282, v41')
    A('v_cndmask_b32 v42, v42, v43, vcc')
    A('v_cndmask_b32 v40, v40, 0, vcc')
    A('v_lshrrev_b32 v43, 16, v44')
    A('v_mul_u32_u24 v44, 9, v43')
    A('v_sub_u32 v44, v41, v44')
    A('v_lshrrev_b32 v45, 3, v42')
    A('v_lshlrev_b32 v45, 6, v45')
    A('v_lshl_add_u32 v45, v43, 3, v45')
    A('v_and_b32 v46, 7, v42')
    A('v_mul_u32_u24 v46, 144, v46')
    A('v_lshl_add_u32 v46, v44, 4, v46')
    A('v_mul_u32_u24 v47, 1152, v45')
    A('v_add_u32 v47, v47, v46')
    A('v_add_u32 v48, 4608, v47')
    A('v_bfrev_b32 v49, 1')
    for i in range(3):
        A(f'v_add_u32 v{50+i}, {(1152*(i-3)) & 0xffffffff}, v47')
        A(f'v_cmp_gt_u32 vcc, {3-i}, v45')
        A(f'v_mov_b32 v53, v53')
        A(f'v_mov_b32 v53, v53')
        A(f'v_cndmask_b32 v{50+i}, v{50+i}, v49, vcc')
    A('v_lshlrev_b32 v46, 2, v46')
    A('v_mul_u32_u24 v99, 10368, v40')
    A('v_mul_u32_u24 v53, 1152, v44')
    A('v_add_u32 v99, v99, v53')
    A('v_lshlrev_b32 v53, 4, v43')
    A('v_sub_u32 v99, v99, v53')
    A('v_add_u32 v99, 112, v99')
    for r in range(3):
        A(f'v_add_u32 v53, {256*r}, v0')
        if r == 2: A('v_min_u32 v53, 575, v53')
        A('v_lshrrev_b32 v54, 3, v53')
        A('v_and_b32 v53, 7, v53')
        A(f'v_mul_u32_u24 v{100+r}, 144, v54')
        A(f'v_lshl_add_u32 v{100+r}, v53, 4, v{100+r}')
        A(f'v_lshlrev_b32 v{103+r}, 12, v54')
        A(f'v_lshl_add_u32 v{103+r}, v53, 4, v{103+r}')
    return T


def kv_srd_text():
    L = []
    for s_, lo, size in ((56, 6, NB), (60, 40, NB), (64, 42, D * 8)):
        L += [f's_mov_b32 s{s_}, s{lo}', f's_mov_b32 s{s_+1}, s{lo+1}', f's_mov_b32 s{s_+2}, {size}', f's_mov_b32 s{s_+3}, 0x00020000']
    return L


def kv_load_list():
    L = []
    for i in range(3):
        L.append(f'buffer_load_dwordx4 a[{KA+4*i}:{KA+4*i+3}], v{50+i}, s[56:59], 0 offen')
    for i in range(8):
        o = f' offset:{1152*(i&3)}' if i & 3 else ''
        L.append(f'buffer_load_dwordx4 a[{KA+12+4*i}:{KA+12+4*i+3}], v{47 + (i>>2)}, s[56:59], 0 offen{o}')
    for i in range(8):
        o = f' offset:{1152*(i&3)}' if i & 3 else ''
        L.append(f'buffer_load_dwordx4 a[{VA_+4*i}:{VA_+4*i+3}], v{47 + (i>>2)}, s[60:63], 0 offen{o} nt')
    for i in range(4):
        o = f' offset:{16*i}' if i else ''
        L.append(f'buffer_load_dwordx4 a[{SA+4*i}:{SA+4*i+3}], v46, s[64:67], 0 offen{o}')
    return L


def kv_load_block(n):
    L = kv_load_list()[3*n:3*n+3]
    t = ['s_cmp_lt_u32 s2, 144', f's_cbranch_scc1 KVL{n}'] + L
    return Op('\n  '.join(t) + f'\nKVL{n}:', 'opaque')


def gen_kvprep(p):
    p(opaque('s_waitcnt vmcnt(18)'))
    R = list(range(55, 78))
    for e in range(0, 8, 2):
        for i in range(11): p(f'v_accvgpr_read_b32 v{R[i]}, a{KA + 4*i + e//2}')
        for i in range(8): p(f'v_accvgpr_read_b32 v{R[11+i]}, a{VA_ + 4*i + e//2}')
        for i in range(4): p(f'v_accvgpr_read_b32 v{R[19+i]}, a{SA + 2*e + i}')
        for hi in range(2):
            sk = [40, 41, 42, 43]; ks = list(range(184, 192)); o = 196 if hi else 192
            for i in range(2):
                src = R[19 + 2 * hi + i]
                if hi:
                    p(f'v_lshlrev_b32 v{sk[2*i]}, 16, v{src}')
                    p(f'v_and_b32 v{sk[2*i+1]}, 0xffff0000, v{src}')
                else:
                    p(f'v_and_b32 v{sk[2*i]}, 0xffff, v{src}')
                    p(f'v_lshrrev_b32 v{sk[2*i+1]}, 16, v{src}')
            for t in range(8): p(f'v_dot2_f32_bf16 v{ks[t]}, v{R[t]}, v{sk[3]}, 0')
            for jx in (2, 1, 0):
                for t in range(8): p(f'v_dot2_f32_bf16 v{ks[t]}, v{R[3+t-jx]}, v{sk[jx]}, v{ks[t]}')
            for t in range(8):
                p(f'v_and_b32 v{44+t}, 0xffff0000, v{R[11+t]}' if hi else f'v_lshlrev_b32 v{44+t}, 16, v{R[11+t]}')
            for t in range(8): p(f'v_mul_f32 v{ks[t]}, v{ks[t]}, v{44+t}')
            for q in range(4):
                p(f'v_cvt_pk_bf16_f32 v{o+q}, v{ks[7-2*q]}, v{ks[6-2*q]}')
            p(f'ds_write_b128 v99, v[{o}:{o+3}] offset:{144*(e+hi)}')
    p('s_waitcnt lgkmcnt(0)')
    p('s_barrier')
    for k in range(3):
        if k == 2:
            p('s_cmp_ge_u32 s2, 176')
            p('s_cbranch_scc1 KV_NO3')
        p(f's_add_u32 s101, s100, {112*k}')
        p('s_and_b32 s34, s101, 7')
        p(f's_mul_i32 s34, s34, {72*4096}')
        p('s_lshr_b32 s35, s101, 3')
        p('s_lshl_b32 s35, s35, 7')
        p('s_sub_u32 s34, s34, s35')
        p(f's_add_u32 s34, s34, {WS_UR + 1984*2}')
        for r in range(3):
            b = 55 + 1 + 4 * r + 12 * (k & 1)
            p(lds(f'ds_read_b128 v[{b}:{b+3}], v{100+r} offset:{10368*k}', f'T{k}{r}'))
        for r in range(3):
            b = 55 + 1 + 4 * r + 12 * (k & 1)
            p(wait_lgkm(f'T{k}{r}'))
            p(vm(f'buffer_store_dwordx4 v[{b}:{b+3}], v{103+r}, s[16:19], s34 offen sc1', 'UR'))
    p.label('KV_NO3')


def kv_flags(p):
    p('s_cmp_lt_u32 s2, 144')
    p('s_cbranch_scc1 KV_DONE')
    p(f's_cmp_lg_u32 s{S_W}, 0')
    p('s_cbranch_scc1 KV_DONE')
    p('v_mul_u32_u24 v38, 112, v2')
    p('v_add_u32 v38, s100, v38')
    p('v_cmp_lt_u32 vcc, 255, v38')
    p('v_mov_b32 v39, s100')
    p('s_nop 0')
    p('v_cndmask_b32 v38, v38, v39, vcc')
    p('v_and_b32 v39, 7, v38')
    p('v_lshlrev_b32 v39, 7, v39')
    p('v_lshrrev_b32 v38, 3, v38')
    p('v_lshl_add_u32 v38, v38, 2, v39')
    p(f'v_mov_b32 v39, s{S_NONCE}')
    p(f's_mov_b32 s34, {WS_FL + FL_UR}')
    p('s_mov_b64 exec, 7')
    p(raw('buffer_store_dword v39, v38, s[16:19], s34 offen sc1'))
    p('s_mov_b64 exec, -1')
    p.label('KV_DONE')


def gen(timing=False):
    p = Prog()
    st = Stamps(timing)
    p('s_cmp_ge_u32 s2, 256')
    p('s_cbranch_scc1 K_END')
    st(p, 0)
    if timing: p(raw('s_memrealtime s[96:97]'))
    p('s_load_dwordx4 s[4:7], s[0:1], 0')
    p('s_load_dwordx4 s[40:43], s[0:1], 16')
    p('s_load_dwordx4 s[36:39], s[0:1], 32')
    p('s_load_dwordx4 s[44:47], s[0:1], 56')
    p('s_load_dwordx4 s[48:51], s[0:1], 72')
    p('s_load_dwordx2 s[32:33], s[0:1], 88')
    p('v_lshrrev_b32 v1, 6, v0')
    p('v_and_b32 v2, 63, v0')
    p('s_nop 0')
    p(f'v_readfirstlane_b32 s{S_W}, v1')
    lg = {1: 0, 2: 1, 4: 2}[NSH]
    p('s_and_b32 s34, s2, 7')
    p('s_lshr_b32 s35, s2, 3')
    p(f's_lshr_b32 s{S_MI}, s35, {lg}')
    if NSH == 1:
        p(f's_mov_b32 s{S_J}, s34')
        p(f's_mov_b32 s{S_M}, s35')
    else:
        p(f's_lshr_b32 s{S_J}, s34, {lg}')
        p(f's_lshl_b32 s{S_J}, s{S_J}, {lg}')
        p(f's_and_b32 s35, s35, {NSH-1}')
        p(f's_add_u32 s{S_J}, s{S_J}, s35')
        p(f's_and_b32 s34, s34, {NSH-1}')
        p(f's_mul_i32 s{S_M}, s34, {32//NSH}')
        p(f's_add_u32 s{S_M}, s{S_M}, s{S_MI}')
    p(f'v_lshlrev_b32 v{VL16}, 4, v2')
    p(f'v_lshrrev_b32 v{VG}, 4, v2')
    p(f'v_and_b32 v{VN}, 15, v2')
    p('v_and_b32 v106, 7, v2')
    p('v_lshrrev_b32 v107, 3, v2')
    p(f's_lshl_b32 s34, s{S_W}, 4')
    p('v_add_u32 v109, s34, v107')
    p('v_mul_u32_u24 v109, 1152, v109')
    p('v_lshl_add_u32 v109, v106, 4, v109')
    p(f's_mul_i32 s34, s{S_M}, {64*1152}')

    def voffsets(vw, stride):
        p(f'v_lshlrev_b32 v70, 1, v{VG}')
        p(f'v_xor_b32 v70, v{VN}, v70')
        p('v_xor_b32 v71, 8, v70')
        p(f's_lshl_b32 s95, s{S_W}, 8')
        p('v_lshl_add_u32 v70, v70, 4, s95')
        p('v_lshl_add_u32 v71, v71, 4, s95')
        p(f's_mov_b32 s35, {stride}')
        p(f'v_mul_lo_u32 v72, v{VG}, s35')
        p('v_add_u32 v70, v70, v72')
        p('v_add_u32 v71, v71, v72')
        for u in range(8):
            var = 70 if ((u >> 1) & 1) == 0 else 71
            c = 4 * u * stride - 1024 * (u & 3)
            p(f'v_add_u32 v{vw+u}, {c}, v{var}' if c else f'v_mov_b32 v{vw+u}, v{var}')
        p('v_lshrrev_b32 v73, 1, v2')
        p('v_and_b32 v74, 0x13, v73')
        p('v_bfe_u32 v75, v73, 2, 1')
        p('v_lshl_or_b32 v74, v75, 3, v74')
        p('v_bfe_u32 v75, v73, 3, 1')
        p('v_lshl_or_b32 v74, v75, 2, v74')
        p('v_mul_lo_u32 v74, v74, s35')
        p('v_and_b32 v75, 1, v2')
        p('v_lshl_add_u32 v74, v75, 4, v74')
        p(f's_lshl_b32 s95, s{S_W}, 5')
        p('s_add_u32 s95, s95, 1024')
        p(f'v_add_u32 v{vw+8}, s95, v74')

    voffsets(VW1, 9216)
    p(f's_mul_i32 s{S_W1B}, s{S_J}, 1152')
    p(f's_mul_i32 s{S_W2B}, s{S_J}, {576*1152}')
    p(f's_mul_i32 s{S_RING}, s{S_W}, 18432')
    p(f's_add_u32 s{S_RING}, s{S_RING}, {RING}')
    NPF = 162 * NSH
    PFR = (NPF + 255) // 256
    for r in range(PFR):
        p(f'v_add_u32 v58, {256*r}, v0')
        p(f'v_min_u32 v58, {NPF-1}, v58')
        p('v_mul_u32_u24 v55, 7282, v58')
        p('v_lshrrev_b32 v55, 16, v55')
        p('v_mul_u32_u24 v56, 9, v55')
        p('v_sub_u32 v56, v58, v56')
        p(f's_mul_i32 s35, s{S_MI}, {18*NSH}')
        p('v_add_u32 v55, s35, v55')
        p('v_mul_u32_u24 v55, 9216, v55')
        p(f'v_lshl_add_u32 v{92+r}, v56, 7, v55')
        p(f'v_lshlrev_b32 v{95+r}, 7, v58')
    p('s_mul_i32 s35, s35, 1152')
    p(f's_add_u32 s{S_PF2}, s35, s{S_W2B}')
    p('s_waitcnt lgkmcnt(0)')
    st(p, 1)
    srd(p, 8, 44, D * F * 2)
    srd(p, 12, 46, D * F * 2)
    srd(p, 44, 50, 256)
    p('v_mov_b32 v89, 0')
    p(f's_or_b32 s35, s2, s{S_W}')
    p('s_cmp_lg_u32 s35, 0')
    p('s_cbranch_scc1 K_NONONCE')
    p(raw('s_memrealtime s[100:101]'))
    p(opaque('s_waitcnt lgkmcnt(0)'))
    p('s_or_b32 s100, s100, 1')
    p('v_mov_b32 v60, s100')
    p('s_mov_b64 exec, 1')
    p(raw('buffer_store_dword v60, v89, s[44:47], 0 offen sc1'))
    p('s_mov_b64 exec, -1')
    p.label('K_NONONCE')
    p(kv_addr_ops())
    p('\n'.join(kv_srd_text()))
    p('s_cmp_lt_u32 s2, 144')
    p('s_cbranch_scc1 K_NOKVL')
    for t in kv_load_list(): p(raw(t))
    p.label('K_NOKVL')
    srd(p, 52, 4, NB)
    XR = 112
    for ps in range(2):
        if ps: p('s_add_u32 s34, s34, 9216')
        for jj in range(9):
            o = f' offset:{128*jj}' if jj else ''
            b = XR + 36 * ps + 4 * jj
            p(vm(f'buffer_load_dwordx4 v[{b}:{b+3}], v109, s[52:55], s34 offen{o}', f'X{ps}'))
    srd(p, 16, 32, WS_END + (65536 if timing else 0))
    srd(p, 20, 36, D * S * 2)
    voffsets(VW2, 1152)
    p(f'v_lshrrev_b32 v70, 2, v{VN}')
    p('v_and_b32 v71, 3, v2')
    p(f'v_lshl_add_u32 v72, v{VG}, 3, v70')
    p('v_lshlrev_b32 v72, 8, v72')
    p('v_lshlrev_b32 v73, 3, v71')
    p('v_add_u32 v72, v72, v73')
    p(f'v_add_u32 v72, s{S_RING}, v72')
    p(f'v_and_b32 v74, 1, v{VG}')
    p('v_lshlrev_b32 v74, 3, v74')
    p('v_lshl_add_u32 v74, v70, 1, v74')
    for t in range(8):
        p(f'v_xor_b32 v75, {2*t}, v74')
        p(f'v_lshl_add_u32 v{VT+t}, v75, 4, v72')
    p(f'v_lshrrev_b32 v75, 1, v{VG}')
    p('v_lshlrev_b32 v75, 4, v75')
    p(f'v_and_b32 v76, 1, v{VG}')
    p('v_lshl_add_u32 v75, v76, 2, v75')
    p('v_add_u32 v75, v75, v70')
    p('v_lshl_add_u32 v75, v75, 5, v73')
    p(f's_add_u32 s35, s{S_RING}, 8192')
    p(f'v_add_u32 v{VT+8}, s35, v75')
    p(f'v_mov_b32 v{VA0}, v{VL16}')
    p(f'v_add_u32 v{VA1}, 36864, v{VL16}')
    p(f'v_lshlrev_b32 v70, 1, v{VG}')
    p(f'v_xor_b32 v71, v{VN}, v70')
    p(f'v_lshl_add_u32 v71, v{VG}, 4, v71')
    p(f'v_lshlrev_b32 v{VX}, 4, v71')
    p(f'v_xor_b32 v{VX+1}, 16, v{VX}')
    p(f'v_add_u32 v{VX+2}, 36864, v{VX}')
    p(f'v_add_u32 v{VX+3}, 36864, v{VX+1}')
    p(f'v_lshlrev_b32 v75, 4, v{VN}')
    p(f'v_lshrrev_b32 v76, 1, v{VG}')
    p('v_lshl_add_u32 v75, v76, 8, v75')
    p(f'v_and_b32 v76, 1, v{VG}')
    p('v_lshl_add_u32 v75, v76, 3, v75')
    p(f's_lshl_b32 s35, s{S_W}, 12')
    p(f'v_add_u32 v{VH0}, s35, v75')
    p(f's_lshr_b32 s35, s{S_W}, 1')
    p('s_lshl_b32 s35, s35, 10')
    p(f's_and_b32 s34, s{S_W}, 1')
    p('s_lshl_b32 s34, s34, 9')
    p('s_add_u32 s35, s35, s34')
    p('s_add_u32 s35, s35, 16384')
    p(f'v_add_u32 v{VH1}, s35, v75')
    p('v_and_b32 v60, 3, v106')
    p('v_lshrrev_b32 v61, 2, v106')
    p('v_lshl_add_u32 v90, v60, 1, v61')
    p('v_xor_b32 v90, v107, v90')
    p('v_lshlrev_b32 v90, 4, v90')
    p('v_lshl_add_u32 v90, v60, 8, v90')
    p('v_lshl_add_u32 v90, v61, 10, v90')
    p(f's_mul_i32 s34, s{S_W}, 18432')
    p('v_add_u32 v90, s34, v90')
    p(f's_lshl_b32 s34, s{S_W}, 7')
    p(f's_add_u32 s34, s34, {LDS_ST}')
    p('v_lshl_add_u32 v91, v107, 3, s34')
    st(p, 2)
    p('s_cmp_lt_u32 s2, 144')
    p('s_cbranch_scc1 K_NOKV')
    p.ops.append(Op(None, 'push'))
    gen_kvprep(p)
    p('s_waitcnt lgkmcnt(0)')
    p('s_barrier')
    p.ops.append(Op(None, 'pop'))
    p.label('K_NOKV')
    p(dma_ops(0))
    st(p, 3)
    for ps in range(2):
        b0 = XR + 36 * ps
        if ps == 1:
            p(dma_ops(1))
            for r in range(PFR):
                p(vm(f'buffer_load_dword v98, v{92+r}, s[8:11], s{S_W1B} offen', 'PF'))
            for r in range(PFR):
                p(vm(f'buffer_load_dword v98, v{95+r}, s[12:15], s{S_PF2} offen', 'PF'))
            p(vm('buffer_load_dword v89, v89, s[44:47], 0 offen sc1', 'NONCE'))
            st(p, 4)
        p(wait_vm(f'X{ps}'))
        p('s_mov_b32 s35, 0x3f803f80')
        p('v_mov_b32 v64, 0'); p('v_mov_b32 v65, 0'); p('v_mov_b32 v66, 0'); p('v_mov_b32 v67, 0')
        for i in range(36):
            a = 64 + (i & 1)
            p(f'v_dot2_f32_bf16 v{a}, v{b0+i}, s35, v{a}')
            p(f'v_dot2_f32_bf16 v{a+2}, v{b0+i}, v{b0+i}, v{a+2}')
        p('s_nop 2')
        p('v_add_f32 v64, v64, v65')
        p('v_add_f32 v66, v66, v67')
        for ctl in ('quad_perm:[1,0,3,2]', 'quad_perm:[2,3,0,1]', 'row_half_mirror'):
            p('s_nop 1')
            p(f'v_add_f32_dpp v64, v64, v64 {ctl} row_mask:0xf bank_mask:0xf')
            p(f'v_add_f32_dpp v66, v66, v66 {ctl} row_mask:0xf bank_mask:0xf')
        p(f'v_mul_f32 v64, {hex(f32bits(1.0/576))}, v64')
        p(f'v_mul_f32 v66, {hex(f32bits(1.0/576))}, v66')
        p('v_fma_f32 v66, -v64, v64, v66')
        p('v_max_f32 v66, 0, v66')
        round_bf16(p, 66, 66)
        p(f'v_add_f32 v66, {hex(f32bits(1e-5))}, v66')
        round_bf16(p, 66, 66)
        p('v_sqrt_f32 v66, v66')
        p('s_nop 0')
        round_bf16(p, 66, 66)
        p('v_rcp_f32 v68, v66')
        round_bf16(p, 64, 64)
        p('v_mul_f32 v69, v64, v68')
        p('v_sub_f32 v69, 0, v69')
        for jj in range(9):
            for i in range(4):
                r = b0 + 4 * jj + i
                t0 = 70 + 2 * (i & 1)
                p(f'v_lshlrev_b32 v{t0}, 16, v{r}')
                p(f'v_and_b32 v{t0+1}, 0xffff0000, v{r}')
                p(f'v_fma_f32 v{t0}, v{t0}, v68, v69')
                p(f'v_fma_f32 v{t0+1}, v{t0+1}, v68, v69')
                p(f'v_cvt_pk_bf16_f32 v{r}, v{t0}, v{t0+1}')
            p(f'ds_write_b128 v90, v[{b0+4*jj}:{b0+4*jj+3}] offset:{jj*2048 + ps*128}')
        p('v_cmp_eq_u32 vcc, 0, v106')
        p('s_and_saveexec_b64 s[34:35], vcc')
        p(f'ds_write_b64 v91, v[68:69] offset:{64*ps}')
        p('s_mov_b64 exec, s[34:35]')
    st(p, 5)
    p('s_waitcnt lgkmcnt(0)')
    p('s_barrier')
    p(aread_ops(0))
    p(wait_vm(['W0e', 'W0o']))
    b1, b2 = bread_ops(0)
    p(b1); p(b2)
    p(wait_lgkm(['A0', 'B0a', 'B0b']))
    p(dma_pieces(2, nop=True)[0])
    p(split_vm(dma_pieces(2, nop=True)[1], 2)[0])
    st(p, 6)

    def put(d, gap, ops):
        d.setdefault(gap, []).extend(ops if isinstance(ops, list) else [ops])

    def place_dma(d, ops, gaps):
        gi = 0
        pend = []
        for o in ops:
            if o.kind == 'vm':
                g = gaps[gi]; gi += 1
                if pend:
                    put(d, g - 1, pend); pend = []
                put(d, g, o)
            else:
                pend.append(o)
        assert not pend

    SPLIT = {1: [3, 2, 2, 1], 2: [3, 2, 2, 1], 3: [3, 2, 2, 1], 4: [2, 1, 1, 0]}
    for idx in range(36):
        nxt = idx + 1
        mf = mfma_ops(idx)
        fx = {}
        if timing:
            sp = 82 + 2 * (idx % 6)
            if idx >= 3:
                so = 82 + 2 * ((idx - 3) % 6)
                p(raw(f'v_writelane_b32 v88, s{so}, {idx-3}'))
            p(raw(f's_memtime s[{sp}:{sp+1}]'))
            if idx == 4:
                for n in range(7): p(raw(f'v_writelane_b32 v88, s{68+2*n}, {40+n}'))
        qpos = (idx - 18) % 4 if idx >= 18 else None
        V = []
        late = False
        if idx == 17:
            late = True
        elif 18 <= idx < 34:
            g = (idx - 18) // 4 + 1
            tiles = silu_group_tiles(g)
            lo_ = sum(SPLIT[g][:qpos])
            for (ct, rt) in tiles[lo_:lo_ + SPLIT[g][qpos]]:
                V += silu_tile_ops(ct, rt)
            late = (qpos == 3)
        if DBG_NOSILU: V = []
        if idx + 2 < 36:
            place_dma(fx, split_vm(dma_pieces(idx + 2)[1], 2)[1], [1, 5])
        if nxt < 36:
            b1, b2 = bread_ops(nxt)
            put(fx, -1, wait_vm(f'W{nxt}e'))
            for g_, o in zip([0, 0, 2, 2, 3, 3, 4, 4, 6, 6], b1):
                put(fx, g_, o)
            put(fx, 7, wait_vm(f'W{nxt}o'))
            for g_, o in zip([7, 7, 8, 8, 10, 10, 11, 11], b2):
                put(fx, g_, o)
            put(fx, 8, wait_lgkm(f'B{nxt}a'))
            put(fx, 16, wait_lgkm(f'B{nxt}b'))
            if not late:
                for g_, o in zip([12, 14, 15, 16], aread_ops(nxt)):
                    put(fx, g_, o)
                put(fx, 35, wait_lgkm(f'A{nxt}'))
        if idx + 3 < 36:
            ev, od = dma_pieces(idx + 3)
            place_dma(fx, ev, [9, 13, 17, 21, 25])
            place_dma(fx, split_vm(od, 2)[0], [29, 33])
        if idx == 17:
            put(fx, 12, alu('s_barrier'))
            sil = []
            for (ct, rt) in silu_group_tiles(0):
                sil += silu_tile_ops(ct, rt)
            nsil = 23 * 4
            p(place2(mf, fx, sil[:nsil], 13, 36))
            p(sil[nsil:])
            p(raw('s_waitcnt vmcnt(9)'))
            p(wait_lgkm('H')); p('s_barrier')
            kv_flags(p)
            p(aread_ops(18)); p(wait_lgkm('A18'))
            continue
        if late:
            put(fx, 23, [wait_lgkm('H'), alu('s_barrier')] + aread_ops(nxt))
            put(fx, 35, wait_lgkm(f'A{nxt}'))
            p(place2(mf, fx, V, 0, 23))
            continue
        extra = conv_prefetch_ops() if idx == 34 else []
        if extra:
            p(place2(mf, fx, extra, 8, 36))
        else:
            p(place2(mf, fx, V, 0, 36))
        if idx == 9:
            p(wait_vm('NONCE'))
            nonce_check(p, 'M')
    st(p, 7)
    if timing:
        p('s_waitcnt lgkmcnt(0)')
        for idx in range(33, 36):
            so = 82 + 2 * (idx % 6)
            p(raw(f'v_writelane_b32 v88, s{so}, {idx}'))
        p(raw('v_writelane_b32 v88, s82, 36'))
        p('v_accvgpr_write_b32 a255, v88')
    p(f's_mul_i32 s31, s{S_J}, {NB}')
    p(f's_lshl_b32 s34, s{S_M}, 2')
    p(f's_add_u32 s34, s34, s{S_W}')
    p('s_mul_i32 s34, s34, 18432')
    p('s_add_u32 s31, s31, s34')
    p(f's_add_u32 s31, s31, {WS_P}')
    p('s_cmp_lt_u32 s2, 144')
    p('s_cbranch_scc1 K_CONV')
    p.ops.append(Op(None, 'push'))
    p('s_nop 7')
    p(partial_store_ops())
    p.ops.append(Op(None, 'pop'))
    if timing: p(raw('s_memtime s[70:71]'))
    p('s_branch K_NOCONV')
    p.label('K_CONV')
    gen_conv(p, timing)
    p.label('K_NOCONV')
    p('s_waitcnt vmcnt(0) lgkmcnt(0)')
    p('s_barrier')
    p(f's_cmp_lg_u32 s{S_W}, 0')
    p('s_cbranch_scc1 K_NOFL2')
    p(f's_lshl_b32 s34, s{S_M}, 7')
    p(f's_lshl_b32 s35, s{S_J}, 2')
    p('s_add_u32 s34, s34, s35')
    p(f's_add_u32 s34, s34, {WS_FL + FL_P}')
    p(f'v_mov_b32 v38, s{S_NONCE}')
    p('v_mov_b32 v39, 0')
    p('s_mov_b64 exec, 1')
    p(raw('buffer_store_dword v38, v39, s[16:19], s34 offen sc1'))
    p('s_cmp_ge_u32 s2, 144')
    p('s_cbranch_scc1 K_NOFL2Y')
    p('s_lshl_b32 s34, s2, 2')
    p(f's_add_u32 s34, s34, {WS_FL + FL_Y}')
    p(raw('buffer_store_dword v38, v39, s[16:19], s34 offen sc1'))
    p.label('K_NOFL2Y')
    p('s_mov_b64 exec, -1')
    p.label('K_NOFL2')
    if timing:
        p(raw('s_memtime s[72:73]'))
        p(raw('s_memrealtime s[78:79]'))
    gen_final(p, timing)
    if timing:
        p('s_waitcnt vmcnt(0) lgkmcnt(0)')
        p(raw('s_memtime s[76:77]'))
        p(raw('s_memrealtime s[98:99]'))
        p('s_waitcnt lgkmcnt(0)')
        p('v_mov_b32 v4, s96'); p('v_mov_b32 v5, s78'); p('v_mov_b32 v6, s80'); p('v_mov_b32 v7, s98')
        p('v_mov_b32 v8, 0')
        p('s_lshl_b32 s34, s2, 4')
        p(f's_add_u32 s34, s34, {WS_DBG + 4096}')
        p(f's_cmp_lg_u32 s{S_W}, 0')
        p('s_cbranch_scc1 K_END')
        p('s_mov_b64 exec, 1')
        p('buffer_store_dwordx4 v[4:7], v8, s[16:19], s34 offen')
        p('s_mov_b64 exec, -1')
        p('s_mov_b32 s52, 0')
        p('s_cmp_eq_u32 s2, 0')
        p('s_cbranch_scc1 K_STAMP')
        p('s_mov_b32 s52, 512')
        p('s_cmp_eq_u32 s2, 200')
        p('s_cbranch_scc0 K_END')
        p.label('K_STAMP')
        p(f's_add_u32 s52, s52, {WS_DBG}')
        p('v_accvgpr_read_b32 v3, a255')
        p('s_nop 1')
        p('v_subrev_u32 v3, s68, v3')
        p('v_and_b32 v4, 63, v0')
        p('v_lshlrev_b32 v4, 2, v4')
        p('buffer_store_dword v3, v4, s[16:19], s52 offen')
        for n in range(1, 8):
            p(f's_sub_u32 s53, s{68+2*n}, s68')
            p('v_mov_b32 v1, s53')
            p(f'v_mov_b32 v2, {256+4*n}')
            p('buffer_store_dword v1, v2, s[16:19], s52 offen')
    p.label('K_END')
    p('s_endpgm')
    return p


def partial_store_ops():
    ops = []
    k = 0
    for pr in range(2):
        for ct in range(9):
            t = STMP + 12 * (k % 3)
            for hh in range(2):
                b = (ct * 4 + 2 * pr + hh) * 4
                for i in range(4):
                    ops.append(alu(f'v_accvgpr_read_b32 v{t+4*hh+i}, a{b+i}'))
            q = t + 8
            ops.append(alu(f'v_cvt_pk_bf16_f32 v{q}, v{t}, v{t+1}'))
            ops.append(alu(f'v_cvt_pk_bf16_f32 v{q+1}, v{t+2}, v{t+3}'))
            ops.append(alu(f'v_cvt_pk_bf16_f32 v{q+2}, v{t+4}, v{t+5}'))
            ops.append(alu(f'v_cvt_pk_bf16_f32 v{q+3}, v{t+6}, v{t+7}'))
            if k % 4 == 0:
                ops.append(alu(f's_add_u32 s35, s31, {k*1024}'))
            off = f' offset:{1024*(k & 3)}' if k & 3 else ''
            ops.append(vm(f'buffer_store_dwordx4 v[{q}:{q+3}], v{VL16}, s[16:19], s35 offen{off} {PST}', 'P'))
            k += 1
    return ops


def conv_prefetch_ops():
    ops = []
    ops.append(alu('s_mul_i32 s42, s2, 3641'))
    ops.append(alu('s_lshr_b32 s42, s42, 16'))
    ops.append(alu('s_lshl_b32 s42, s42, 7'))
    ops.append(alu(f's_add_u32 s42, s42, {WS_FL + FL_UR}'))
    ops.append(alu('v_and_b32 v86, 31, v2'))
    ops.append(alu('v_lshlrev_b32 v86, 2, v86'))
    ops.append(vm('buffer_load_dword v87, v86, s[16:19], s42 offen sc1', 'URF'))
    ops.append(alu('s_lshl_b32 s40, s2, 2'))
    ops.append(alu(f's_add_u32 s40, s40, s{S_W}'))
    ops.append(alu('s_min_u32 s40, s40, 575'))
    ops.append(alu('s_lshl_b32 s41, s40, 12'))
    ops.append(alu(f'v_add_u32 v38, s41, v{VL16}'))
    ops.append(alu('v_subrev_u32 v39, 32, v38'))
    ops.append(alu('v_max_i32 v39, 0, v39'))
    ops.append(alu('v_add_u32 v38, 992, v38'))
    for d, base in ((0, P0), (4, P1), (8, P2)):
        ops.append(vm(f'buffer_load_dwordx4 v[{base}:{base+3}], v39, s[20:23], 0 offen offset:{d}', 'CP'))
        for q in range(1, 5):
            ops.append(vm(f'buffer_load_dwordx4 v[{base+4*q}:{base+4*q+3}], v38, s[20:23], 0 offen offset:{1024*(q-1)+d}', 'CP'))
    return ops


CA, CB = 144, 188
VQA, VQB = 76, 77


def gen_conv(p, timing):
    p(wait_vm('URF'))
    p(f'v_cmp_ne_u32 vcc, s{S_NONCE}, v87')
    p('s_nop 3')
    p('s_cmp_eq_u64 vcc, 0')
    p('s_cbranch_scc1 K_UR_OK')
    p.ops.append(Op(None, 'push'))
    poll(p, 87, 86, 's42', 'UR')
    p.ops.append(Op(None, 'pop'))
    p.label('K_UR_OK')
    p(f's_add_u32 s42, s41, {WS_UR}')
    for q in range(4):
        off = f' offset:{1024*q}' if q else ''
        p(vm(f'buffer_load_dwordx4 v[{PU+4*q}:{PU+4*q+3}], v{VL16}, s[16:19], s42 offen{off} sc1', 'CU'))
    p('s_and_b32 s43, s40, 0xfffe')
    p('s_lshl_b32 s43, s43, 1')
    p('s_load_dword s44, s[38:39], s43')
    p('s_barrier')
    p(f's_mul_i32 s45, s{S_W}, {CONV_STRIDE}')
    p(wait_vm('CP'))
    p(f'v_readlane_b32 s46, v{P0}, 2')
    p(f'v_readlane_b32 s47, v{P0+1}, 2')
    p('s_mov_b64 exec, 3')
    for base in (P0, P1, P2):
        for i in range(4):
            p(f'v_mov_b32 v{base+i}, 0')
    p('s_mov_b64 exec, -1')
    p(f'v_writelane_b32 v{P1+3}, s46, 1')
    p(f'v_writelane_b32 v{P2+2}, s46, 1')
    p(f'v_writelane_b32 v{P2+3}, s47, 1')
    p(f'v_add_u32 v38, s45, v{VL16}')
    T = 40
    for q in range(5):
        p(f'ds_write_b128 v38, v[{P0+4*q}:{P0+4*q+3}] offset:{1024*q}')
        t = T + 8 * (q % 2)
        for i in range(4):
            p(f'v_alignbit_b32 v{t+i}, v{P1+4*q+i}, v{P0+4*q+i}, 16')
        p(f'ds_write_b128 v38, v[{P1+4*q}:{P1+4*q+3}] offset:{2*CONV_COPY + 1024*q}')
        for i in range(4):
            p(f'v_alignbit_b32 v{t+4+i}, v{P2+4*q+i}, v{P1+4*q+i}, 16')
        p(f'ds_write_b128 v38, v[{t}:{t+3}] offset:{CONV_COPY + 1024*q}')
        p(f'ds_write_b128 v38, v[{t+4}:{t+7}] offset:{3*CONV_COPY + 1024*q}')
    for i in range(4):
        p(f'v_mov_b32 v{60+i}, 0')
    p(f'ds_write_b128 v38, v[60:63] offset:{CONV_UR + 4096}')
    p(f'v_add_u32 v39, 1, v{VN}')
    p(f'v_and_b32 v{VQA}, 3, v39')
    p(f'v_mul_u32_u24 v{VQA}, {CONV_COPY}, v{VQA}')
    p('v_and_b32 v57, 0x1c, v39')
    p(f'v_lshl_add_u32 v{VQA}, v57, 1, v{VQA}')
    p(f'v_lshl_add_u32 v{VQA}, v{VG}, 4, v{VQA}')
    p(f'v_add_u32 v{VQA}, s45, v{VQA}')
    p(f'v_lshlrev_b32 v{VQB}, 5, v{VN}')
    p(f'v_lshlrev_b32 v58, 4, v{VG}')
    p(f'v_sub_u32 v{VQB}, v58, v{VQB}')
    p(f's_add_u32 s46, s45, {CONV_UR + 4064 - 3584}')
    p(f'v_add_u32 v{VQB}, s46, v{VQB}')
    p(wait_vm('CU'))
    for q in range(4):
        p(f'ds_write_b128 v38, v[{PU+4*q}:{PU+4*q+3}] offset:{CONV_UR + 1024*q}')
    p('s_waitcnt lgkmcnt(0)')
    if timing: p(raw('s_memtime s[70:71]'))

    def reads(r):
        st_ = r & 1
        ops = []
        for k in range(8):
            a = CA + 32 * st_ + 4 * k
            b = CB + 32 * st_ + 4 * k
            ops.append(lds(f'ds_read_b64 a[{a}:{a+1}], v{VQA} offset:{512*k + 64*r}', f'C{r}'))
            ops.append(lds(f'ds_read_b64 a[{a+2}:{a+3}], v{VQA} offset:{512*k + 64*r + 8}', f'C{r}'))
            ops.append(lds(f'ds_read_b128 v[{b}:{b+3}], v{VQB} offset:{512*(7-k) + 64*r}', f'C{r}'))
        return ops

    pst = partial_store_ops()
    per = (len(pst) + 5) // 6
    p(reads(0))
    for r in range(8):
        st_ = r & 1
        mf = []
        for nt in range(8):
            for ap in range(nt + 1):
                a = CA + 32 * st_ + 4 * ap
                b = CB + 32 * st_ + 4 * (nt - ap)
                d = CACC + 4 * nt
                c = '0' if (r == 0 and ap == 0) else f'v[{d}:{d+3}]'
                mf.append((nt, ap, mfma(f'v_mfma_f32_16x16x32_bf16 v[{d}:{d+3}], a[{a}:{a+3}], v[{b}:{b+3}], {c}')))
        mf.sort(key=lambda x: (x[1], x[0]))
        mf = [x[2] for x in mf]
        p(wait_lgkm(f'C{r}'))
        fx = {}
        if r < 7:
            for i, o in enumerate(reads(r + 1)):
                fx.setdefault(i, []).append(o)
        fl = pst[r * per:(r + 1) * per]
        p(place2(mf, fx, fl, 0, 36))
    p('s_waitcnt lgkmcnt(0)')
    p('s_and_b32 s43, s40, 1')
    p('s_lshl_b32 s43, s43, 4')
    p('s_lshr_b32 s44, s44, s43')
    p('s_lshl_b32 s44, s44, 16')
    p(f'v_lshlrev_b32 v58, 5, v{VN}')
    p(f'v_lshl_add_u32 v58, v{VG}, 3, v58')
    p(f's_add_u32 s46, s45, {CONV_UR + 4088 - 512*7}')
    p('v_sub_u32 v59, s46, v58')
    for nt in range(8):
        p(lds(f'ds_read_b64 v[{112+2*nt}:{113+2*nt}], v59 offset:{512*(7-nt)}', 'U'))
    p(f's_mul_i32 s46, s{S_W}, 4160')
    p(f's_add_u32 s46, s46, {CONV_YT}')
    p('v_add_u32 v59, s46, v58')
    p('s_nop 7')
    p(wait_lgkm('U'))
    for nt in range(8):
        d = CACC + 4 * nt
        u0, u1 = 112 + 2 * nt, 113 + 2 * nt
        t = [64, 65, 66, 67]
        p(f'v_and_b32 v{t[0]}, 0xffff0000, v{u1}')
        p(f'v_lshlrev_b32 v{t[1]}, 16, v{u1}')
        p(f'v_and_b32 v{t[2]}, 0xffff0000, v{u0}')
        p(f'v_lshlrev_b32 v{t[3]}, 16, v{u0}')
        for i in range(4): p(f'v_fma_f32 v{d+i}, v{t[i]}, s44, v{d+i}')
        o = 68 + 2 * (nt % 2)
        p(f'v_cvt_pk_bf16_f32 v{o}, v{d}, v{d+1}')
        p(f'v_cvt_pk_bf16_f32 v{o+1}, v{d+2}, v{d+3}')
        p(f'ds_write_b64 v59, v[{o}:{o+1}] offset:{512*nt}')
    p(f'v_lshrrev_b32 v58, 2, v{VN}')
    p('v_mul_u32_u24 v58, 4160, v58')
    p('v_and_b32 v59, 3, v2')
    p('v_lshl_add_u32 v58, v59, 3, v58')
    p(f'v_lshl_add_u32 v58, v{VG}, 5, v58')
    p(f's_lshl_b32 s46, s{S_W}, 10')
    p(f's_add_u32 s46, s46, {CONV_YT}')
    p('v_add_u32 v58, s46, v58')
    p('v_lshlrev_b32 v59, 3, v2')
    p('s_lshl_b32 s46, s2, 14')
    p(f's_lshl_b32 s47, s{S_W}, 12')
    p('s_add_u32 s46, s46, s47')
    p(f's_add_u32 s46, s46, {WS_Y}')
    p('s_waitcnt lgkmcnt(0)')
    p('s_barrier')
    for k in range(8):
        p(lds(f'ds_read_b64_tr_b16 v[{112+2*k}:{113+2*k}], v58 offset:{128*k}', f'YT{k}'))
    for k in range(8):
        p(wait_lgkm(f'YT{k}'))
        p(f'buffer_store_dwordx2 v[{112+2*k}:{113+2*k}], v59, s[16:19], s46 offen offset:{512*k} sc1')


def gen_final(p, timing):
    srd(p, 52, 4, NB)
    srd(p, 56, 48, NB)
    p(f's_lshr_b32 s60, s{S_J}, 1')
    p(f's_and_b32 s61, s{S_J}, 1')
    p(f's_lshl_b32 s62, s{S_M}, 7')
    p(f's_add_u32 s62, s62, {FL_P}')
    p('v_lshlrev_b32 v40, 2, v2')
    p('v_add_u32 v41, s62, v40')
    p('s_lshl_b32 s63, s60, 7')
    p(f's_add_u32 s63, s63, {FL_Y - 32}')
    p('v_add_u32 v42, s63, v40')
    p('s_lshl_b32 s63, s60, 4')
    p(f's_add_u32 s63, s63, {FL_Y + 512 - 160}')
    p('v_add_u32 v43, s63, v40')
    p('v_cmp_gt_u32 vcc, 8, v2')
    p('s_nop 1')
    p('v_cndmask_b32 v42, v42, v41, vcc')
    p('v_cmp_lt_u32 vcc, 39, v2')
    p('s_nop 1')
    p('v_cndmask_b32 v42, v42, v43, vcc')
    p('v_mov_b32 v43, s62')
    p('v_cmp_lt_u32 vcc, 43, v2')
    p('s_nop 1')
    p('v_cndmask_b32 v42, v42, v43, vcc')
    p(f's_mov_b32 s63, {WS_FL}')
    p(f's_lshl_b32 s34, s{S_M}, 6')
    p('s_lshl_b32 s35, s61, 5')
    p('s_add_u32 s34, s34, s35')
    p(f'v_add_u32 v6, s34, v{VN}')
    p('s_lshl_b32 s35, s61, 8')
    p(f's_add_u32 s35, s35, {LDS_ST}')
    p(f'v_lshl_add_u32 v7, v{VN}, 3, s35')
    p(lds('ds_read_b64 v[60:61], v7', 'ST'))
    p(lds('ds_read_b64 v[62:63], v7 offset:128', 'ST'))
    p(f's_lshl_b32 s34, s{S_M}, 3')
    p(f's_add_u32 s34, s34, s{S_J}')
    p('s_mul_i32 s34, s34, 9216')
    p(f's_add_u32 s34, s34, {WS_P}')
    NR = 3
    XA, YA, PA = 112, 124, 136
    for r in range(NR):
        p(f's_add_u32 s{64+r}, s{S_W}, {4*r}')
        p(f's_min_u32 s{64+r}, s{64+r}, 8')
        p('s_lshl_b32 s35, s60, 7')
        p(f's_lshl_b32 s40, s{64+r}, 4')
        p('s_add_u32 s35, s35, s40')
        p('s_lshl_b32 s40, s60, 4')
        p('s_add_u32 s40, s40, 512')
        p(f's_cmp_lt_u32 s{64+r}, 8')
        p('s_cselect_b32 s35, s35, s40')
        p(f'v_lshl_add_u32 v{8+r}, v{VG}, 2, s35')
        p(f'v_mul_u32_u24 v{12+r}, 1152, v6')
        p(f'v_lshl_add_u32 v{12+r}, v{8+r}, 1, v{12+r}')
        p(f'v_add_u32 v{16+r}, {16*1152}, v{12+r}')
        p(vm(f'buffer_load_dwordx2 v[{XA+4*r}:{XA+4*r+1}], v{12+r}, s[52:55], 0 offen', f'FX{r}'))
        p(vm(f'buffer_load_dwordx2 v[{XA+4*r+2}:{XA+4*r+3}], v{16+r}, s[52:55], 0 offen', f'FX{r}'))
        p(f'v_lshrrev_b32 v{20+r}, 2, v{8+r}')
        p(f'v_lshlrev_b32 v{20+r}, 14, v{20+r}')
        p(f'v_lshl_add_u32 v{20+r}, v6, 3, v{20+r}')
    p(f's_cmp_lg_u32 s{S_W}, 0')
    p('s_cbranch_scc1 K_FIN_GO')
    p.ops.append(Op(None, 'push'))
    poll(p, 44, 42, 's63', 'FIN')
    p.ops.append(Op(None, 'pop'))
    p.label('K_FIN_GO')
    p('s_barrier')
    if timing:
        p(raw('s_memtime s[74:75]'))
        p(raw('s_memrealtime s[80:81]'))
    p(f's_mov_b32 s41, {WS_Y}')
    for r in range(NR):
        p(f's_lshl_b32 s35, s{64+r}, 10')
        p('s_add_u32 s35, s35, s34')
        for j in range(8):
            b = PA + 32 * r + 4 * j
            p(vm(f'buffer_load_dwordx4 v[{b}:{b+3}], v{VL16}, s[16:19], s35 offen {PLD}', f'FP{r}_{j}'))
            if j != 7:
                p(f's_add_u32 s35, s35, {NB}')
        p(vm(f'buffer_load_dwordx2 v[{YA+4*r}:{YA+4*r+1}], v{20+r}, s[16:19], s41 offen sc1', f'FY{r}'))
        p(vm(f'buffer_load_dwordx2 v[{YA+4*r+2}:{YA+4*r+3}], v{20+r}, s[16:19], s41 offen offset:128 sc1', f'FY{r}'))
        if r == 1:
            p(f's_cmp_lg_u32 s{S_W}, 0')
            p('s_cbranch_scc1 K_FIN_L2')
            p.ops.append(Op(None, 'push'))
        if r == 2:
            p.ops.append(Op(None, 'pop'))
            p.label('K_FIN_L2')
    p('s_mov_b32 s40, 0x00003f80')
    p('s_mov_b32 s41, 0x3f800000')
    p(wait_lgkm('ST'))
    O = list(range(64, 72))
    for r in range(NR):
        if r == 2:
            p(f's_cmp_lg_u32 s{S_W}, 0')
            p('s_cbranch_scc1 K_FIN_DONE')
            p(opaque('s_waitcnt vmcnt(0)'))
        b0 = PA + 32 * r
        p(wait_vm(f'FP{r}_0'))
        for k in range(4):
            unpack(p, O[2*k], O[2*k+1], b0 + k)
        for j in range(1, 8):
            p(wait_vm(f'FP{r}_{j}'))
            for k in range(4):
                p(f'v_dot2_f32_bf16 v{O[2*k]}, v{b0+4*j+k}, s40, v{O[2*k]}')
                p(f'v_dot2_f32_bf16 v{O[2*k+1]}, v{b0+4*j+k}, s41, v{O[2*k+1]}')
        p('s_nop 2')
        silu_inplace(p, O, list(range(74, 82)))
        p(wait_vm([f'FY{r}', f'FX{r}']))
        for h in range(2):
            xs = [82, 83, 84, 85]; ys = [86, 87, 88, 89]; xn = [90, 91, 92, 93]
            unpack(p, xs[0], xs[1], XA + 4 * r + 2 * h); unpack(p, xs[2], xs[3], XA + 4 * r + 2 * h + 1)
            unpack(p, ys[0], ys[1], YA + 4 * r + 2 * h); unpack(p, ys[2], ys[3], YA + 4 * r + 2 * h + 1)
            for i in range(4): p(f'v_fma_f32 v{xn[i]}, v{xs[i]}, v{60+2*h}, v{61+2*h}')
            for i in range(4): p(f'v_mul_f32 v{xn[i]}, v{xn[i]}, v{ys[i]}')
            for i in range(4): p(f'v_fma_f32 v{xn[i]}, v{xn[i]}, v{O[4*h+i]}, v{xs[i]}')
            o = 94 + 2 * h
            p(f'v_cvt_pk_bf16_f32 v{o}, v{xn[0]}, v{xn[1]}')
            p(f'v_cvt_pk_bf16_f32 v{o+1}, v{xn[2]}, v{xn[3]}')
            p(raw(f'buffer_store_dwordx2 v[{o}:{o+1}], v{(12 if h == 0 else 16)+r}, s[56:59], 0 offen'))
    p.label('K_FIN_DONE')


def build(timing=False):
    _silu_rot[0] = 0
    k = gen(timing)
    txt = HEADER
    txt += '; @launch grid=(256,1,1) block=(256,1,1) lds=163840\n'
    txt += '.amdgcn_target "amdgcn-amd-amdhsa--gfx950"\n'
    txt += kernel_head(KNAME) + k.resolve()
    txt += kernel_descriptor(KNAME, 512, 102, 256)
    return txt


if __name__ == '__main__':
    timing = '--timing' in sys.argv
    out = [a for a in sys.argv[1:] if not a.startswith('--')]
    open(out[0] if out else 'cdna_kernels/' + NAME + '.s', 'w').write(build(timing))
```

```python
import os
import sys
sys.path.insert(0, 'exp')
from asmgen import *

NAME = 'recurrent_scan__ssm_conv_h3__dense_activation_silu__prompt'
KNAME = NAME + '_kernel'
S, D, F = 2048, 576, 4608
NB = S * D * 2
WS_UR = 0
WS_Y = NB
WS_FL = 2 * NB
FL_UR, FL_P, FL_Y = 0, 1024, 1024 + 4096
WS_P = 2 * NB + 65536
WS_END = WS_P + 8 * NB
WS_DBG = WS_END
LOG2E_NEG = 0xbfb8aa3b
HEADER = open('cdna_kernels/' + NAME + '.s.ref').read().split('; Override launch')[0]

ORDER2 = [0, 4, 8, 12, 1, 5, 9, 13, 2, 6, 10, 14, 3, 7, 11, 15, 16, 17]
RING = 73728
SPARE = 147456
LDS_T = SPARE
LDS_ST = SPARE + 12288
ACC1 = 112
BSET = 144
ASET = 216
VW1, VW2, VT = 4, 13, 22
VA0, VA1 = 31, 32
VH0, VH1 = 33, 34
VL16 = 35
VG, VN = 36, 37
VX = 80
STMP = 40
S_W, S_J, S_M = 24, 25, 26
S_SOFF, S_RING, S_W1B, S_W2B, S_SOFF2 = 27, 28, 29, 30, 31
S_NONCE = 94
S_PF2 = 92
S_MI = 23 + 70
PST = os.environ.get('PST', 'sc1')
PLD = os.environ.get('PLD', 'sc1')
KVPF = os.environ.get('KVPF', '1') == '1'
NSH = int(os.environ.get('NSH', '1'))
KR, VR, SK = 0, 28, 44
VTW = 84
CONV_STRIDE = 25856
CONV_COPY = 5184
CONV_UR = 4 * CONV_COPY
CONV_YT = 4 * CONV_STRIDE
P0, P1, P2, PU = 112, 132, 152, 172
CACC = 80
SPIN_MAX = 1 << 20

DBG_NOSILU = 'NOSILU' in os.environ


def f32bits(x):
    import struct
    return struct.unpack('<I', struct.pack('<f', x))[0]


def srd(p, s, lo, size):
    p(f's_mov_b32 s{s}, s{lo}')
    p(f's_mov_b32 s{s+1}, s{lo+1}')
    p(f's_mov_b32 s{s+2}, {size}')
    p(f's_mov_b32 s{s+3}, 0x00020000')


def round_bf16(p, dst, src):
    p(f'v_cvt_pk_bf16_f32 v{dst}, v{src}, v{src}')
    p(f'v_lshlrev_b32 v{dst}, 16, v{dst}')


def unpack(p, lo, hi, src):
    if lo == src:
        p(f'v_and_b32 v{hi}, 0xffff0000, v{src}')
        p(f'v_lshlrev_b32 v{lo}, 16, v{src}')
    else:
        p(f'v_lshlrev_b32 v{lo}, 16, v{src}')
        p(f'v_and_b32 v{hi}, 0xffff0000, v{src}')


def round_pairs(p, regs, tmp):
    for i in range(0, len(regs), 2):
        p(f'v_cvt_pk_bf16_f32 v{tmp}, v{regs[i]}, v{regs[i+1]}')
        unpack(p, regs[i], regs[i + 1], tmp)


def silu_inplace(p, regs, tmp):
    n = len(regs)
    for i in range(n): p(f'v_mul_f32 v{tmp[i]}, {hex(LOG2E_NEG)}, v{regs[i]}')
    for i in range(n): p(f'v_exp_f32 v{tmp[i]}, v{tmp[i]}')
    p('s_nop 0')
    for i in range(n): p(f'v_add_f32 v{tmp[i]}, 1.0, v{tmp[i]}')
    for i in range(n): p(f'v_rcp_f32 v{tmp[i]}, v{tmp[i]}')
    p('s_nop 0')
    for i in range(n): p(f'v_mul_f32 v{regs[i]}, v{regs[i]}, v{tmp[i]}')


def acc1(ct, rt):
    b = ACC1 + (ct * 4 + rt) * 4
    return f'v[{b}:{b+3}]'


def acc2(ct, rt):
    b = (ct * 4 + rt) * 4
    return f'a[{b}:{b+3}]'


def soff_reg(idx):
    return S_SOFF if idx & 1 == 0 else S_SOFF2


def dma_pieces(idx, nop=False):
    slot = idx & 1
    so = soff_reg(idx)
    if idx < 18:
        vw, srd_ = VW1, 's[8:11]'
        setup = alu(f's_add_u32 s{so}, s{S_W1B}, {idx * 32 * 9216}')
    else:
        vw, srd_ = VW2, 's[12:15]'
        setup = alu(f's_add_u32 s{so}, s{S_W2B}, {ORDER2[idx-18] * 32 * 1152}')

    def m0(off):
        r = [alu(f's_add_u32 m0, s{S_RING}, {slot * 9216 + off}')]
        if nop: r.append(alu('s_nop 0'))
        return r

    def ld(u, tag):
        off = f' offset:{1024 * (u & 3)}' if (u & 3) and u < 8 else ''
        return [vm(f'buffer_load_dwordx4 v{vw+u}, {srd_}, s{so} offen{off} lds', tag)]
    te, to = f'W{idx}e', f'W{idx}o'
    even = [setup] + m0(8192) + ld(8, te) + m0(0) + ld(0, te) + ld(2, te) + m0(4096) + ld(4, te) + ld(6, te)
    odd = m0(0) + ld(1, to) + ld(3, to) + m0(4096) + ld(5, to) + ld(7, to)
    return even, odd


def dma_ops(idx):
    e, o = dma_pieces(idx, nop=True)
    return e + o


def split_vm(ops, n):
    c = 0
    for i, o in enumerate(ops):
        if o.kind == 'vm':
            c += 1
            if c == n:
                return ops[:i+1], ops[i+1:]
    raise ValueError


def bread_ops(idx):
    slot = idx & 1
    o = slot * 9216
    first, second = [], []
    b = BSET + 36 * slot + 32
    first.append(lds(f'ds_read_b64_tr_b16 a[{b}:{b+1}], v{VT+8} offset:{o}', f'B{idx}a'))
    first.append(lds(f'ds_read_b64_tr_b16 a[{b+2}:{b+3}], v{VT+8} offset:{o+256}', f'B{idx}a'))
    for t in range(8):
        b = BSET + 36 * slot + 4 * t
        first.append(lds(f'ds_read_b64_tr_b16 a[{b}:{b+1}], v{VT+t} offset:{o}', f'B{idx}a'))
        second.append(lds(f'ds_read_b64_tr_b16 a[{b+2}:{b+3}], v{VT+t} offset:{o+1024}', f'B{idx}b'))
    return first, second


def aread_ops(idx):
    s = idx if idx < 18 else ORDER2[idx - 18]
    st = idx & 1
    ops = []
    for rt in range(4):
        b = ASET + 16 * st + 4 * rt
        if idx < 18:
            va = VX + (s & 1) + (2 if rt >= 2 else 0)
        else:
            va = VA0 if rt < 2 else VA1
        ops.append(lds(f'ds_read_b128 a[{b}:{b+3}], v{va} offset:{((rt & 1) * 18 + s) * 1024}', f'A{idx}'))
    return ops


def mfma_ops(idx):
    st = idx & 1
    ops = []
    for ct in range(9):
        for rt in range(4):
            d = acc1(ct, rt) if idx < 18 else acc2(ct, rt)
            wb = BSET + 36 * st + 4 * ct
            xb = ASET + 16 * st + 4 * rt
            c = '0' if idx in (0, 18) else d
            ops.append(mfma(f'v_mfma_f32_16x16x32_bf16 {d}, a[{wb}:{wb+3}], a[{xb}:{xb+3}], {c}'))
    return ops


_silu_rot = [0]


def silu_tile_ops(ct, rt):
    b = ACC1 + (ct * 4 + rt) * 4
    t = STMP + 8 * (_silu_rot[0] % 4)
    _silu_rot[0] += 1
    ops = []
    for i in range(4): ops.append(alu(f'v_mul_f32 v{t+i}, {hex(LOG2E_NEG)}, v{b+i}'))
    for i in range(4): ops.append(trans(f'v_exp_f32 v{t+i}, v{t+i}'))
    for i in range(4): ops.append(alu(f'v_add_f32 v{t+i}, 1.0, v{t+i}'))
    for i in range(4): ops.append(trans(f'v_rcp_f32 v{t+i}, v{t+i}'))
    for i in range(4): ops.append(alu(f'v_mul_f32 v{t+i}, v{b+i}, v{t+i}'))
    ops.append(alu(f'v_cvt_pk_bf16_f32 v{t+4}, v{t}, v{t+1}'))
    ops.append(alu(f'v_cvt_pk_bf16_f32 v{t+5}, v{t+2}, v{t+3}'))
    if ct < 8:
        ops.append(lds(f'ds_write_b64 v{VH0}, v[{t+4}:{t+5}] offset:{rt*18432 + (ct >> 1)*1024 + (ct & 1)*512}', 'H'))
    else:
        ops.append(lds(f'ds_write_b64 v{VH1}, v[{t+4}:{t+5}] offset:{rt*18432}', 'H'))
    return ops


def kv_pair_ops(e):
    ops = []
    R = list(range(40, 55))
    for i in range(7): ops.append(alu(f'v_accvgpr_read_b32 v{R[i]}, a{KR + 4*i + e//2}'))
    for i in range(4): ops.append(alu(f'v_accvgpr_read_b32 v{R[7+i]}, a{VR + 4*i + e//2}'))
    for i in range(4): ops.append(alu(f'v_accvgpr_read_b32 v{R[11+i]}, a{SK + 2*e + i}'))
    for hi in range(2):
        def up(dst, src):
            ops.append(alu(f'v_and_b32 v{dst}, 0xffff0000, v{src}' if hi else f'v_lshlrev_b32 v{dst}, 16, v{src}'))
        kf = list(range(55, 62)); vf = list(range(62, 66)); sk = [66, 67, 68, 69]; ks = [70, 71, 72, 73]
        for i in range(7): up(kf[i], R[i])
        for i in range(4): up(vf[i], R[7 + i])
        for i in range(2):
            src = R[11 + 2 * hi + i]
            ops.append(alu(f'v_lshlrev_b32 v{sk[2*i]}, 16, v{src}'))
            ops.append(alu(f'v_and_b32 v{sk[2*i+1]}, 0xffff0000, v{src}'))
        for t in range(4): ops.append(alu(f'v_mul_f32 v{ks[t]}, v{kf[t]}, v{sk[3]}'))
        for jx in (2, 1, 0):
            for t in range(4): ops.append(alu(f'v_fmac_f32 v{ks[t]}, v{kf[3+t-jx]}, v{sk[jx]}'))
        for i in (0, 2):
            ops.append(alu(f'v_cvt_pk_bf16_f32 v74, v{ks[i]}, v{ks[i+1]}'))
            ops.append(alu(f'v_lshlrev_b32 v{ks[i]}, 16, v74'))
            ops.append(alu(f'v_and_b32 v{ks[i+1]}, 0xffff0000, v74'))
        for t in range(4): ops.append(alu(f'v_mul_f32 v{ks[t]}, v{ks[t]}, v{vf[t]}'))
        o = 76 + 2 * hi
        ops.append(alu(f'v_cvt_pk_bf16_f32 v{o}, v{ks[3]}, v{ks[2]}'))
        ops.append(alu(f'v_cvt_pk_bf16_f32 v{o+1}, v{ks[1]}, v{ks[0]}'))
        ops.append(lds(f'ds_write_b64 v{VTW}, v[{o}:{o+1}] offset:{144*(e+hi)}', 'T'))
    return ops


def ur_addr_ops():
    ops = []
    ops.append(alu(f's_mul_i32 s95, s{S_J}, {72*4096}'))
    ops.append(alu(f's_lshl_b32 s35, s{S_M}, 7'))
    ops.append(alu('s_sub_u32 s95, s95, s35'))
    ops.append(alu(f's_add_u32 s95, s95, {WS_UR + 1984*2}'))
    for r in range(3):
        ops.append(alu(f'v_add_u32 v60, {256*r}, v0'))
        if r == 2: ops.append(alu('v_min_u32 v60, 575, v60'))
        ops.append(alu('v_lshrrev_b32 v61, 3, v60'))
        ops.append(alu('v_and_b32 v62, 7, v60'))
        ops.append(alu(f'v_mul_u32_u24 v{98+r}, 144, v61'))
        ops.append(alu(f'v_lshl_add_u32 v{98+r}, v62, 4, v{98+r}'))
        ops.append(alu(f'v_add_u32 v{98+r}, {LDS_T}, v{98+r}'))
        ops.append(alu(f'v_lshlrev_b32 v{101+r}, 12, v61'))
        ops.append(alu(f'v_lshl_add_u32 v{101+r}, v62, 4, v{101+r}'))
    return ops


def silu_group_tiles(g):
    cts = [2 * g, 2 * g + 1] if g < 4 else [8]
    return [(ct, rt) for ct in cts for rt in range(4)]


class Stamps:
    def __init__(self, on): self.on = on
    def __call__(self, p, n):
        if self.on: p(raw(f's_memtime s[{68+2*n}:{69+2*n}]'))


_lab = [0]


def poll(p, vdst, vaddr, soff, name):
    _lab[0] += 1
    L = f'POLL{_lab[0]}_{name}'
    p(f's_mov_b32 s47, {SPIN_MAX}')
    p.label(L)
    p(raw(f'buffer_load_dword v{vdst}, v{vaddr}, s[16:19], {soff} offen sc1'))
    p('s_waitcnt vmcnt(0)')
    p(f'v_cmp_ne_u32 vcc, s{S_NONCE}, v{vdst}')
    p('s_nop 3')
    p('s_cmp_eq_u64 vcc, 0')
    p(f's_cbranch_scc1 {L}_X')
    p('s_sub_u32 s47, s47, 1')
    p(f's_cbranch_scc1 {L}_X')
    p('s_sleep 1')
    p(f's_branch {L}')
    p.label(f'{L}_X')


def nonce_check(p, sfx):
    p('s_nop 0')
    p(f'v_readfirstlane_b32 s{S_NONCE}, v89')
    p(f's_cmp_lg_u32 s{S_NONCE}, 0')
    p(f's_cbranch_scc1 K_HAVE_NONCE{sfx}')
    p(f's_mov_b32 s34, {SPIN_MAX}')
    p.label(f'K_NONCE_SPIN{sfx}')
    p('v_mov_b32 v89, 0')
    p(opaque('buffer_load_dword v89, v89, s[44:47], 0 offen sc1'))
    p(opaque('s_waitcnt vmcnt(0)'))
    p(f'v_readfirstlane_b32 s{S_NONCE}, v89')
    p('s_sub_u32 s34, s34, 1')
    p(f's_cbranch_scc1 K_HAVE_NONCE{sfx}')
    p(f's_cmp_lg_u32 s{S_NONCE}, 0')
    p(f's_cbranch_scc1 K_HAVE_NONCE{sfx}')
    p('s_sleep 1')
    p(f's_branch K_NONCE_SPIN{sfx}')
    p.label(f'K_HAVE_NONCE{sfx}')


def publish_ur(p):
    p(f's_cmp_lg_u32 s{S_W}, 0')
    p('s_cbranch_scc1 K_NOFL1')
    p(f's_lshl_b32 s34, s{S_J}, 7')
    p(f's_lshl_b32 s35, s{S_M}, 2')
    p('s_add_u32 s34, s34, s35')
    p(f's_add_u32 s34, s34, {WS_FL + FL_UR}')
    p(f'v_mov_b32 v38, s{S_NONCE}')
    p('v_mov_b32 v39, 0')
    p('s_mov_b64 exec, 1')
    p(raw('buffer_store_dword v38, v39, s[16:19], s34 offen sc1'))
    p('s_mov_b64 exec, -1')
    p.label('K_NOFL1')


KA, VA_, SA = 0, 44, 76


def kv_addr_ops():
    T = []
    A = lambda t: T.append(alu(t))
    A('s_sub_u32 s100, s2, 144')
    A('v_mul_u32_u24 v40, 911, v0')
    A('v_lshrrev_b32 v40, 16, v40')
    A('v_mul_u32_u24 v41, 72, v40')
    A('v_sub_u32 v41, v0, v41')
    A('v_mul_u32_u24 v42, 112, v40')
    A('v_add_u32 v42, s100, v42')
    A('v_cmp_lt_u32 vcc, 255, v42')
    A('v_mov_b32 v43, s100')
    A('v_mul_u32_u24 v44, 7282, v41')
    A('v_cndmask_b32 v42, v42, v43, vcc')
    A('v_cndmask_b32 v40, v40, 0, vcc')
    A('v_lshrrev_b32 v43, 16, v44')
    A('v_mul_u32_u24 v44, 9, v43')
    A('v_sub_u32 v44, v41, v44')
    A('v_lshrrev_b32 v45, 3, v42')
    A('v_lshlrev_b32 v45, 6, v45')
    A('v_lshl_add_u32 v45, v43, 3, v45')
    A('v_and_b32 v46, 7, v42')
    A('v_mul_u32_u24 v46, 144, v46')
    A('v_lshl_add_u32 v46, v44, 4, v46')
    A('v_mul_u32_u24 v47, 1152, v45')
    A('v_add_u32 v47, v47, v46')
    A('v_add_u32 v48, 4608, v47')
    A('v_bfrev_b32 v49, 1')
    for i in range(3):
        A(f'v_add_u32 v{50+i}, {(1152*(i-3)) & 0xffffffff}, v47')
        A(f'v_cmp_gt_u32 vcc, {3-i}, v45')
        A(f'v_mov_b32 v53, v53')
        A(f'v_mov_b32 v53, v53')
        A(f'v_cndmask_b32 v{50+i}, v{50+i}, v49, vcc')
    A('v_lshlrev_b32 v46, 2, v46')
    A('v_mul_u32_u24 v99, 10368, v40')
    A('v_mul_u32_u24 v53, 1152, v44')
    A('v_add_u32 v99, v99, v53')
    A('v_lshlrev_b32 v53, 4, v43')
    A('v_sub_u32 v99, v99, v53')
    A('v_add_u32 v99, 112, v99')
    for r in range(3):
        A(f'v_add_u32 v53, {256*r}, v0')
        if r == 2: A('v_min_u32 v53, 575, v53')
        A('v_lshrrev_b32 v54, 3, v53')
        A('v_and_b32 v53, 7, v53')
        A(f'v_mul_u32_u24 v{100+r}, 144, v54')
        A(f'v_lshl_add_u32 v{100+r}, v53, 4, v{100+r}')
        A(f'v_lshlrev_b32 v{103+r}, 12, v54')
        A(f'v_lshl_add_u32 v{103+r}, v53, 4, v{103+r}')
    return T


def kv_srd_text():
    L = []
    for s_, lo, size in ((56, 6, NB), (60, 40, NB), (64, 42, D * 8)):
        L += [f's_mov_b32 s{s_}, s{lo}', f's_mov_b32 s{s_+1}, s{lo+1}', f's_mov_b32 s{s_+2}, {size}', f's_mov_b32 s{s_+3}, 0x00020000']
    return L


def kv_load_list():
    L = []
    for i in range(3):
        L.append(f'buffer_load_dwordx4 a[{KA+4*i}:{KA+4*i+3}], v{50+i}, s[56:59], 0 offen')
    for i in range(8):
        o = f' offset:{1152*(i&3)}' if i & 3 else ''
        L.append(f'buffer_load_dwordx4 a[{KA+12+4*i}:{KA+12+4*i+3}], v{47 + (i>>2)}, s[56:59], 0 offen{o}')
    for i in range(8):
        o = f' offset:{1152*(i&3)}' if i & 3 else ''
        L.append(f'buffer_load_dwordx4 a[{VA_+4*i}:{VA_+4*i+3}], v{47 + (i>>2)}, s[60:63], 0 offen{o} nt')
    for i in range(4):
        o = f' offset:{16*i}' if i else ''
        L.append(f'buffer_load_dwordx4 a[{SA+4*i}:{SA+4*i+3}], v46, s[64:67], 0 offen{o}')
    return L


def kv_load_block(n):
    L = kv_load_list()[3*n:3*n+3]
    t = ['s_cmp_lt_u32 s2, 144', f's_cbranch_scc1 KVL{n}'] + L
    return Op('\n  '.join(t) + f'\nKVL{n}:', 'opaque')


def gen_kvprep(p):
    p(opaque('s_waitcnt vmcnt(18)'))
    R = list(range(55, 78))
    for e in range(0, 8, 2):
        for i in range(11): p(f'v_accvgpr_read_b32 v{R[i]}, a{KA + 4*i + e//2}')
        for i in range(8): p(f'v_accvgpr_read_b32 v{R[11+i]}, a{VA_ + 4*i + e//2}')
        for i in range(4): p(f'v_accvgpr_read_b32 v{R[19+i]}, a{SA + 2*e + i}')
        for hi in range(2):
            sk = [40, 41, 42, 43]; ks = list(range(184, 192)); o = 196 if hi else 192
            for i in range(2):
                src = R[19 + 2 * hi + i]
                if hi:
                    p(f'v_lshlrev_b32 v{sk[2*i]}, 16, v{src}')
                    p(f'v_and_b32 v{sk[2*i+1]}, 0xffff0000, v{src}')
                else:
                    p(f'v_and_b32 v{sk[2*i]}, 0xffff, v{src}')
                    p(f'v_lshrrev_b32 v{sk[2*i+1]}, 16, v{src}')
            for t in range(8): p(f'v_dot2_f32_bf16 v{ks[t]}, v{R[t]}, v{sk[3]}, 0')
            for jx in (2, 1, 0):
                for t in range(8): p(f'v_dot2_f32_bf16 v{ks[t]}, v{R[3+t-jx]}, v{sk[jx]}, v{ks[t]}')
            for t in range(8):
                p(f'v_and_b32 v{44+t}, 0xffff0000, v{R[11+t]}' if hi else f'v_lshlrev_b32 v{44+t}, 16, v{R[11+t]}')
            for t in range(8): p(f'v_mul_f32 v{ks[t]}, v{ks[t]}, v{44+t}')
            for q in range(4):
                p(f'v_cvt_pk_bf16_f32 v{o+q}, v{ks[7-2*q]}, v{ks[6-2*q]}')
            p(f'ds_write_b128 v99, v[{o}:{o+3}] offset:{144*(e+hi)}')
    p('s_waitcnt lgkmcnt(0)')
    p('s_barrier')
    for k in range(3):
        if k == 2:
            p('s_cmp_ge_u32 s2, 176')
            p('s_cbranch_scc1 KV_NO3')
        p(f's_add_u32 s101, s100, {112*k}')
        p('s_and_b32 s34, s101, 7')
        p(f's_mul_i32 s34, s34, {72*4096}')
        p('s_lshr_b32 s35, s101, 3')
        p('s_lshl_b32 s35, s35, 7')
        p('s_sub_u32 s34, s34, s35')
        p(f's_add_u32 s34, s34, {WS_UR + 1984*2}')
        for r in range(3):
            b = 55 + 1 + 4 * r + 12 * (k & 1)
            p(lds(f'ds_read_b128 v[{b}:{b+3}], v{100+r} offset:{10368*k}', f'T{k}{r}'))
        for r in range(3):
            b = 55 + 1 + 4 * r + 12 * (k & 1)
            p(wait_lgkm(f'T{k}{r}'))
            p(vm(f'buffer_store_dwordx4 v[{b}:{b+3}], v{103+r}, s[16:19], s34 offen sc1', 'UR'))
    p.label('KV_NO3')


def kv_flags(p):
    p('s_cmp_lt_u32 s2, 144')
    p('s_cbranch_scc1 KV_DONE')
    p(f's_cmp_lg_u32 s{S_W}, 0')
    p('s_cbranch_scc1 KV_DONE')
    p('v_mul_u32_u24 v38, 112, v2')
    p('v_add_u32 v38, s100, v38')
    p('v_cmp_lt_u32 vcc, 255, v38')
    p('v_mov_b32 v39, s100')
    p('s_nop 0')
    p('v_cndmask_b32 v38, v38, v39, vcc')
    p('v_and_b32 v39, 7, v38')
    p('v_lshlrev_b32 v39, 7, v39')
    p('v_lshrrev_b32 v38, 3, v38')
    p('v_lshl_add_u32 v38, v38, 2, v39')
    p(f'v_mov_b32 v39, s{S_NONCE}')
    p(f's_mov_b32 s34, {WS_FL + FL_UR}')
    p('s_mov_b64 exec, 7')
    p(raw('buffer_store_dword v39, v38, s[16:19], s34 offen sc1'))
    p('s_mov_b64 exec, -1')
    p.label('KV_DONE')


def gen(timing=False):
    p = Prog()
    st = Stamps(timing)
    p('s_cmp_ge_u32 s2, 256')
    p('s_cbranch_scc1 K_END')
    st(p, 0)
    if timing: p(raw('s_memrealtime s[96:97]'))
    p('s_load_dwordx4 s[4:7], s[0:1], 0')
    p('s_load_dwordx4 s[40:43], s[0:1], 16')
    p('s_load_dwordx4 s[36:39], s[0:1], 32')
    p('s_load_dwordx4 s[44:47], s[0:1], 56')
    p('s_load_dwordx4 s[48:51], s[0:1], 72')
    p('s_load_dwordx2 s[32:33], s[0:1], 88')
    p('s_getpc_b64 s[84:85]')
    p.label('K_PC')
    p('v_lshrrev_b32 v1, 6, v0')
    p('v_and_b32 v2, 63, v0')
    p('s_lshr_b32 s86, s2, 3')
    p('s_lshl_b32 s86, s86, 2')
    p('v_add_u32 v3, s86, v1')
    p('s_mov_b32 s87, (K_CODE_END - K_PC + 8191) / 8192')
    p('v_cvt_f32_u32 v4, v3')
    p('v_cvt_f32_u32 v5, s87')
    p('v_rcp_f32 v5, v5')
    p('v_add_f32 v4, 0.5, v4')
    p('v_mul_f32 v4, v4, v5')
    p('v_cvt_u32_f32 v4, v4')
    p('v_mul_lo_u32 v4, v4, s87')
    p('v_sub_u32 v3, v3, v4')
    p('v_lshlrev_b32 v3, 13, v3')
    p('v_lshl_add_u32 v3, v2, 7, v3')
    p('v_min_u32 v3, K_CODE_END - K_PC - 4, v3')
    p(raw('global_load_dword v98, v3, s[84:85]'))
    p('s_nop 0')
    p(f'v_readfirstlane_b32 s{S_W}, v1')
    lg = {1: 0, 2: 1, 4: 2}[NSH]
    p('s_and_b32 s34, s2, 7')
    p('s_lshr_b32 s35, s2, 3')
    p(f's_lshr_b32 s{S_MI}, s35, {lg}')
    if NSH == 1:
        p(f's_mov_b32 s{S_J}, s34')
        p(f's_mov_b32 s{S_M}, s35')
    else:
        p(f's_lshr_b32 s{S_J}, s34, {lg}')
        p(f's_lshl_b32 s{S_J}, s{S_J}, {lg}')
        p(f's_and_b32 s35, s35, {NSH-1}')
        p(f's_add_u32 s{S_J}, s{S_J}, s35')
        p(f's_and_b32 s34, s34, {NSH-1}')
        p(f's_mul_i32 s{S_M}, s34, {32//NSH}')
        p(f's_add_u32 s{S_M}, s{S_M}, s{S_MI}')
    p(f'v_lshlrev_b32 v{VL16}, 4, v2')
    p(f'v_lshrrev_b32 v{VG}, 4, v2')
    p(f'v_and_b32 v{VN}, 15, v2')
    p('v_and_b32 v106, 7, v2')
    p('v_lshrrev_b32 v107, 3, v2')
    p(f's_lshl_b32 s34, s{S_W}, 4')
    p('v_add_u32 v109, s34, v107')
    p('v_mul_u32_u24 v109, 1152, v109')
    p('v_lshl_add_u32 v109, v106, 4, v109')
    p(f's_mul_i32 s34, s{S_M}, {64*1152}')

    def voffsets(vw, stride):
        p(f'v_lshlrev_b32 v70, 1, v{VG}')
        p(f'v_xor_b32 v70, v{VN}, v70')
        p('v_xor_b32 v71, 8, v70')
        p(f's_lshl_b32 s95, s{S_W}, 8')
        p('v_lshl_add_u32 v70, v70, 4, s95')
        p('v_lshl_add_u32 v71, v71, 4, s95')
        p(f's_mov_b32 s35, {stride}')
        p(f'v_mul_lo_u32 v72, v{VG}, s35')
        p('v_add_u32 v70, v70, v72')
        p('v_add_u32 v71, v71, v72')
        for u in range(8):
            var = 70 if ((u >> 1) & 1) == 0 else 71
            c = 4 * u * stride - 1024 * (u & 3)
            p(f'v_add_u32 v{vw+u}, {c}, v{var}' if c else f'v_mov_b32 v{vw+u}, v{var}')
        p('v_lshrrev_b32 v73, 1, v2')
        p('v_and_b32 v74, 0x13, v73')
        p('v_bfe_u32 v75, v73, 2, 1')
        p('v_lshl_or_b32 v74, v75, 3, v74')
        p('v_bfe_u32 v75, v73, 3, 1')
        p('v_lshl_or_b32 v74, v75, 2, v74')
        p('v_mul_lo_u32 v74, v74, s35')
        p('v_and_b32 v75, 1, v2')
        p('v_lshl_add_u32 v74, v75, 4, v74')
        p(f's_lshl_b32 s95, s{S_W}, 5')
        p('s_add_u32 s95, s95, 1024')
        p(f'v_add_u32 v{vw+8}, s95, v74')

    voffsets(VW1, 9216)
    p(f's_mul_i32 s{S_W1B}, s{S_J}, 1152')
    p(f's_mul_i32 s{S_W2B}, s{S_J}, {576*1152}')
    p(f's_mul_i32 s{S_RING}, s{S_W}, 18432')
    p(f's_add_u32 s{S_RING}, s{S_RING}, {RING}')
    NPF = 162 * NSH
    PFR = (NPF + 255) // 256
    for r in range(PFR):
        p(f'v_add_u32 v58, {256*r}, v0')
        p(f'v_min_u32 v58, {NPF-1}, v58')
        p('v_mul_u32_u24 v55, 7282, v58')
        p('v_lshrrev_b32 v55, 16, v55')
        p('v_mul_u32_u24 v56, 9, v55')
        p('v_sub_u32 v56, v58, v56')
        p(f's_mul_i32 s35, s{S_MI}, {18*NSH}')
        p('v_add_u32 v55, s35, v55')
        p('v_mul_u32_u24 v55, 9216, v55')
        p(f'v_lshl_add_u32 v{92+r}, v56, 7, v55')
        p(f'v_lshlrev_b32 v{95+r}, 7, v58')
    p('s_mul_i32 s35, s35, 1152')
    p(f's_add_u32 s{S_PF2}, s35, s{S_W2B}')
    p('s_waitcnt lgkmcnt(0)')
    st(p, 1)
    srd(p, 8, 44, D * F * 2)
    srd(p, 12, 46, D * F * 2)
    srd(p, 44, 50, 256)
    p('v_mov_b32 v89, 0')
    p(f's_or_b32 s35, s2, s{S_W}')
    p('s_cmp_lg_u32 s35, 0')
    p('s_cbranch_scc1 K_NONONCE')
    p(raw('s_memrealtime s[100:101]'))
    p(opaque('s_waitcnt lgkmcnt(0)'))
    p('s_or_b32 s100, s100, 1')
    p('v_mov_b32 v60, s100')
    p('s_mov_b64 exec, 1')
    p(raw('buffer_store_dword v60, v89, s[44:47], 0 offen sc1'))
    p('s_mov_b64 exec, -1')
    p.label('K_NONONCE')
    p(kv_addr_ops())
    p('\n'.join(kv_srd_text()))
    p('s_cmp_lt_u32 s2, 144')
    p('s_cbranch_scc1 K_NOKVL')
    for r in range(PFR):
        p(raw(f'buffer_load_dword v98, v{92+r}, s[8:11], s{S_W1B} offen'))
    for r in range(PFR):
        p(raw(f'buffer_load_dword v98, v{95+r}, s[12:15], s{S_PF2} offen'))
    for t in kv_load_list(): p(raw(t))
    p.label('K_NOKVL')
    srd(p, 52, 4, NB)
    XR = 112
    for ps in range(2):
        if ps: p('s_add_u32 s34, s34, 9216')
        for jj in range(9):
            o = f' offset:{128*jj}' if jj else ''
            b = XR + 36 * ps + 4 * jj
            p(vm(f'buffer_load_dwordx4 v[{b}:{b+3}], v109, s[52:55], s34 offen{o}', f'X{ps}'))
    srd(p, 16, 32, WS_END + (65536 if timing else 0))
    srd(p, 20, 36, D * S * 2)
    voffsets(VW2, 1152)
    p(f'v_lshrrev_b32 v70, 2, v{VN}')
    p('v_and_b32 v71, 3, v2')
    p(f'v_lshl_add_u32 v72, v{VG}, 3, v70')
    p('v_lshlrev_b32 v72, 8, v72')
    p('v_lshlrev_b32 v73, 3, v71')
    p('v_add_u32 v72, v72, v73')
    p(f'v_add_u32 v72, s{S_RING}, v72')
    p(f'v_and_b32 v74, 1, v{VG}')
    p('v_lshlrev_b32 v74, 3, v74')
    p('v_lshl_add_u32 v74, v70, 1, v74')
    for t in range(8):
        p(f'v_xor_b32 v75, {2*t}, v74')
        p(f'v_lshl_add_u32 v{VT+t}, v75, 4, v72')
    p(f'v_lshrrev_b32 v75, 1, v{VG}')
    p('v_lshlrev_b32 v75, 4, v75')
    p(f'v_and_b32 v76, 1, v{VG}')
    p('v_lshl_add_u32 v75, v76, 2, v75')
    p('v_add_u32 v75, v75, v70')
    p('v_lshl_add_u32 v75, v75, 5, v73')
    p(f's_add_u32 s35, s{S_RING}, 8192')
    p(f'v_add_u32 v{VT+8}, s35, v75')
    p(f'v_mov_b32 v{VA0}, v{VL16}')
    p(f'v_add_u32 v{VA1}, 36864, v{VL16}')
    p(f'v_lshlrev_b32 v70, 1, v{VG}')
    p(f'v_xor_b32 v71, v{VN}, v70')
    p(f'v_lshl_add_u32 v71, v{VG}, 4, v71')
    p(f'v_lshlrev_b32 v{VX}, 4, v71')
    p(f'v_xor_b32 v{VX+1}, 16, v{VX}')
    p(f'v_add_u32 v{VX+2}, 36864, v{VX}')
    p(f'v_add_u32 v{VX+3}, 36864, v{VX+1}')
    p(f'v_lshlrev_b32 v75, 4, v{VN}')
    p(f'v_lshrrev_b32 v76, 1, v{VG}')
    p('v_lshl_add_u32 v75, v76, 8, v75')
    p(f'v_and_b32 v76, 1, v{VG}')
    p('v_lshl_add_u32 v75, v76, 3, v75')
    p(f's_lshl_b32 s35, s{S_W}, 12')
    p(f'v_add_u32 v{VH0}, s35, v75')
    p(f's_lshr_b32 s35, s{S_W}, 1')
    p('s_lshl_b32 s35, s35, 10')
    p(f's_and_b32 s34, s{S_W}, 1')
    p('s_lshl_b32 s34, s34, 9')
    p('s_add_u32 s35, s35, s34')
    p('s_add_u32 s35, s35, 16384')
    p(f'v_add_u32 v{VH1}, s35, v75')
    p('v_and_b32 v60, 3, v106')
    p('v_lshrrev_b32 v61, 2, v106')
    p('v_lshl_add_u32 v90, v60, 1, v61')
    p('v_xor_b32 v90, v107, v90')
    p('v_lshlrev_b32 v90, 4, v90')
    p('v_lshl_add_u32 v90, v60, 8, v90')
    p('v_lshl_add_u32 v90, v61, 10, v90')
    p(f's_mul_i32 s34, s{S_W}, 18432')
    p('v_add_u32 v90, s34, v90')
    p(f's_lshl_b32 s34, s{S_W}, 7')
    p(f's_add_u32 s34, s34, {LDS_ST}')
    p('v_lshl_add_u32 v91, v107, 3, s34')
    st(p, 2)
    p('s_cmp_lt_u32 s2, 144')
    p('s_cbranch_scc1 K_NOKV')
    p.ops.append(Op(None, 'push'))
    gen_kvprep(p)
    p('s_waitcnt lgkmcnt(0)')
    p('s_barrier')
    p.ops.append(Op(None, 'pop'))
    p.label('K_NOKV')
    p(dma_ops(0))
    st(p, 3)
    for ps in range(2):
        b0 = XR + 36 * ps
        if ps == 1:
            p(dma_ops(1))
            for r in range(PFR):
                p(vm(f'buffer_load_dword v98, v{92+r}, s[8:11], s{S_W1B} offen', 'PF'))
            for r in range(PFR):
                p(vm(f'buffer_load_dword v98, v{95+r}, s[12:15], s{S_PF2} offen', 'PF'))
            p(vm('buffer_load_dword v89, v89, s[44:47], 0 offen sc1', 'NONCE'))
            st(p, 4)
        p(wait_vm(f'X{ps}'))
        p('s_mov_b32 s35, 0x3f803f80')
        p('v_mov_b32 v64, 0'); p('v_mov_b32 v65, 0'); p('v_mov_b32 v66, 0'); p('v_mov_b32 v67, 0')
        for i in range(36):
            a = 64 + (i & 1)
            p(f'v_dot2_f32_bf16 v{a}, v{b0+i}, s35, v{a}')
            p(f'v_dot2_f32_bf16 v{a+2}, v{b0+i}, v{b0+i}, v{a+2}')
        p('s_nop 2')
        p('v_add_f32 v64, v64, v65')
        p('v_add_f32 v66, v66, v67')
        for ctl in ('quad_perm:[1,0,3,2]', 'quad_perm:[2,3,0,1]', 'row_half_mirror'):
            p('s_nop 1')
            p(f'v_add_f32_dpp v64, v64, v64 {ctl} row_mask:0xf bank_mask:0xf')
            p(f'v_add_f32_dpp v66, v66, v66 {ctl} row_mask:0xf bank_mask:0xf')
        p(f'v_mul_f32 v64, {hex(f32bits(1.0/576))}, v64')
        p(f'v_mul_f32 v66, {hex(f32bits(1.0/576))}, v66')
        p('v_fma_f32 v66, -v64, v64, v66')
        p('v_max_f32 v66, 0, v66')
        round_bf16(p, 66, 66)
        p(f'v_add_f32 v66, {hex(f32bits(1e-5))}, v66')
        round_bf16(p, 66, 66)
        p('v_sqrt_f32 v66, v66')
        p('s_nop 0')
        round_bf16(p, 66, 66)
        p('v_rcp_f32 v68, v66')
        round_bf16(p, 64, 64)
        p('v_mul_f32 v69, v64, v68')
        p('v_sub_f32 v69, 0, v69')
        for jj in range(9):
            for i in range(4):
                r = b0 + 4 * jj + i
                t0 = 70 + 2 * (i & 1)
                p(f'v_lshlrev_b32 v{t0}, 16, v{r}')
                p(f'v_and_b32 v{t0+1}, 0xffff0000, v{r}')
                p(f'v_fma_f32 v{t0}, v{t0}, v68, v69')
                p(f'v_fma_f32 v{t0+1}, v{t0+1}, v68, v69')
                p(f'v_cvt_pk_bf16_f32 v{r}, v{t0}, v{t0+1}')
            p(f'ds_write_b128 v90, v[{b0+4*jj}:{b0+4*jj+3}] offset:{jj*2048 + ps*128}')
        p('v_cmp_eq_u32 vcc, 0, v106')
        p('s_and_saveexec_b64 s[34:35], vcc')
        p(f'ds_write_b64 v91, v[68:69] offset:{64*ps}')
        p('s_mov_b64 exec, s[34:35]')
    st(p, 5)
    p('s_waitcnt lgkmcnt(0)')
    p('s_barrier')
    p(aread_ops(0))
    p(wait_vm(['W0e', 'W0o']))
    b1, b2 = bread_ops(0)
    p(b1); p(b2)
    p(wait_lgkm(['A0', 'B0a', 'B0b']))
    p(dma_pieces(2, nop=True)[0])
    p(split_vm(dma_pieces(2, nop=True)[1], 2)[0])
    st(p, 6)

    def put(d, gap, ops):
        d.setdefault(gap, []).extend(ops if isinstance(ops, list) else [ops])

    def place_dma(d, ops, gaps):
        gi = 0
        pend = []
        for o in ops:
            if o.kind == 'vm':
                g = gaps[gi]; gi += 1
                if pend:
                    put(d, g - 1, pend); pend = []
                put(d, g, o)
            else:
                pend.append(o)
        assert not pend

    SPLIT = {1: [3, 2, 2, 1], 2: [3, 2, 2, 1], 3: [3, 2, 2, 1], 4: [2, 1, 1, 0]}
    for idx in range(36):
        nxt = idx + 1
        mf = mfma_ops(idx)
        fx = {}
        if timing:
            sp = 82 + 2 * (idx % 6)
            if idx >= 3:
                so = 82 + 2 * ((idx - 3) % 6)
                p(raw(f'v_writelane_b32 v88, s{so}, {idx-3}'))
            p(raw(f's_memtime s[{sp}:{sp+1}]'))
            if idx == 4:
                for n in range(7): p(raw(f'v_writelane_b32 v88, s{68+2*n}, {40+n}'))
        qpos = (idx - 18) % 4 if idx >= 18 else None
        V = []
        late = False
        if idx == 17:
            late = True
        elif 18 <= idx < 34:
            g = (idx - 18) // 4 + 1
            tiles = silu_group_tiles(g)
            lo_ = sum(SPLIT[g][:qpos])
            for (ct, rt) in tiles[lo_:lo_ + SPLIT[g][qpos]]:
                V += silu_tile_ops(ct, rt)
            late = (qpos == 3)
        if DBG_NOSILU: V = []
        if idx + 2 < 36:
            place_dma(fx, split_vm(dma_pieces(idx + 2)[1], 2)[1], [1, 5])
        if nxt < 36:
            b1, b2 = bread_ops(nxt)
            put(fx, -1, wait_vm(f'W{nxt}e'))
            for g_, o in zip([0, 0, 2, 2, 3, 3, 4, 4, 6, 6], b1):
                put(fx, g_, o)
            put(fx, 7, wait_vm(f'W{nxt}o'))
            for g_, o in zip([7, 7, 8, 8, 10, 10, 11, 11], b2):
                put(fx, g_, o)
            put(fx, 8, wait_lgkm(f'B{nxt}a'))
            put(fx, 16, wait_lgkm(f'B{nxt}b'))
            if not late:
                for g_, o in zip([12, 14, 15, 16], aread_ops(nxt)):
                    put(fx, g_, o)
                put(fx, 35, wait_lgkm(f'A{nxt}'))
        if idx + 3 < 36:
            ev, od = dma_pieces(idx + 3)
            place_dma(fx, ev, [9, 13, 17, 21, 25])
            place_dma(fx, split_vm(od, 2)[0], [29, 33])
        if idx == 17:
            put(fx, 12, alu('s_barrier'))
            sil = []
            for (ct, rt) in silu_group_tiles(0):
                sil += silu_tile_ops(ct, rt)
            nsil = 23 * 4
            p(place2(mf, fx, sil[:nsil], 13, 36))
            p(sil[nsil:])
            p(raw('s_waitcnt vmcnt(9)'))
            p(wait_lgkm('H')); p('s_barrier')
            kv_flags(p)
            p(aread_ops(18)); p(wait_lgkm('A18'))
            continue
        if late:
            put(fx, 23, [wait_lgkm('H'), alu('s_barrier')] + aread_ops(nxt))
            put(fx, 35, wait_lgkm(f'A{nxt}'))
            p(place2(mf, fx, V, 0, 23))
            continue
        extra = conv_prefetch_ops() if idx == 34 else []
        if extra:
            p(place2(mf, fx, extra, 8, 36))
        else:
            p(place2(mf, fx, V, 0, 36))
        if idx == 9:
            p(wait_vm('NONCE'))
            nonce_check(p, 'M')
    st(p, 7)
    if timing:
        p('s_waitcnt lgkmcnt(0)')
        for idx in range(33, 36):
            so = 82 + 2 * (idx % 6)
            p(raw(f'v_writelane_b32 v88, s{so}, {idx}'))
        p(raw('v_writelane_b32 v88, s82, 36'))
        p('v_accvgpr_write_b32 a255, v88')
    p(f's_mul_i32 s31, s{S_J}, {NB}')
    p(f's_lshl_b32 s34, s{S_M}, 2')
    p(f's_add_u32 s34, s34, s{S_W}')
    p('s_mul_i32 s34, s34, 18432')
    p('s_add_u32 s31, s31, s34')
    p(f's_add_u32 s31, s31, {WS_P}')
    p('s_cmp_lt_u32 s2, 144')
    p('s_cbranch_scc1 K_CONV')
    p.ops.append(Op(None, 'push'))
    p('s_nop 7')
    p(partial_store_ops())
    p.ops.append(Op(None, 'pop'))
    if timing: p(raw('s_memtime s[70:71]'))
    p('s_branch K_NOCONV')
    p.label('K_CONV')
    gen_conv(p, timing)
    p.label('K_NOCONV')
    p('s_waitcnt vmcnt(0) lgkmcnt(0)')
    p('s_barrier')
    p(f's_cmp_lg_u32 s{S_W}, 0')
    p('s_cbranch_scc1 K_NOFL2')
    p(f's_lshl_b32 s34, s{S_M}, 7')
    p(f's_lshl_b32 s35, s{S_J}, 2')
    p('s_add_u32 s34, s34, s35')
    p(f's_add_u32 s34, s34, {WS_FL + FL_P}')
    p(f'v_mov_b32 v38, s{S_NONCE}')
    p('v_mov_b32 v39, 0')
    p('s_mov_b64 exec, 1')
    p(raw('buffer_store_dword v38, v39, s[16:19], s34 offen sc1'))
    p('s_cmp_ge_u32 s2, 144')
    p('s_cbranch_scc1 K_NOFL2Y')
    p('s_lshl_b32 s34, s2, 2')
    p(f's_add_u32 s34, s34, {WS_FL + FL_Y}')
    p(raw('buffer_store_dword v38, v39, s[16:19], s34 offen sc1'))
    p.label('K_NOFL2Y')
    p('s_mov_b64 exec, -1')
    p.label('K_NOFL2')
    if timing:
        p(raw('s_memtime s[72:73]'))
        p(raw('s_memrealtime s[78:79]'))
    gen_final(p, timing)
    if timing:
        p('s_waitcnt vmcnt(0) lgkmcnt(0)')
        p(raw('s_memtime s[76:77]'))
        p(raw('s_memrealtime s[98:99]'))
        p('s_waitcnt lgkmcnt(0)')
        p('v_mov_b32 v4, s96'); p('v_mov_b32 v5, s78'); p('v_mov_b32 v6, s80'); p('v_mov_b32 v7, s98')
        p('v_mov_b32 v8, 0')
        p('s_lshl_b32 s34, s2, 4')
        p(f's_add_u32 s34, s34, {WS_DBG + 4096}')
        p(f's_cmp_lg_u32 s{S_W}, 0')
        p('s_cbranch_scc1 K_END')
        p('s_mov_b64 exec, 1')
        p('buffer_store_dwordx4 v[4:7], v8, s[16:19], s34 offen')
        p('s_mov_b64 exec, -1')
        p('s_mov_b32 s52, 0')
        p('s_cmp_eq_u32 s2, 0')
        p('s_cbranch_scc1 K_STAMP')
        p('s_mov_b32 s52, 512')
        p('s_cmp_eq_u32 s2, 200')
        p('s_cbranch_scc0 K_END')
        p.label('K_STAMP')
        p(f's_add_u32 s52, s52, {WS_DBG}')
        p('v_accvgpr_read_b32 v3, a255')
        p('s_nop 1')
        p('v_subrev_u32 v3, s68, v3')
        p('v_and_b32 v4, 63, v0')
        p('v_lshlrev_b32 v4, 2, v4')
        p('buffer_store_dword v3, v4, s[16:19], s52 offen')
        for n in range(1, 13):
            p(f's_sub_u32 s53, s{68+2*n}, s68')
            p('v_mov_b32 v1, s53')
            p(f'v_mov_b32 v2, {256+4*n}')
            p('buffer_store_dword v1, v2, s[16:19], s52 offen')
    p.label('K_END')
    p('s_endpgm')
    p.label('K_CODE_END')
    return p


def partial_store_ops():
    ops = []
    k = 0
    for pr in range(2):
        for ct in range(9):
            t = STMP + 12 * (k % 3)
            for hh in range(2):
                b = (ct * 4 + 2 * pr + hh) * 4
                for i in range(4):
                    ops.append(alu(f'v_accvgpr_read_b32 v{t+4*hh+i}, a{b+i}'))
            q = t + 8
            ops.append(alu(f'v_cvt_pk_bf16_f32 v{q}, v{t}, v{t+1}'))
            ops.append(alu(f'v_cvt_pk_bf16_f32 v{q+1}, v{t+2}, v{t+3}'))
            ops.append(alu(f'v_cvt_pk_bf16_f32 v{q+2}, v{t+4}, v{t+5}'))
            ops.append(alu(f'v_cvt_pk_bf16_f32 v{q+3}, v{t+6}, v{t+7}'))
            if k % 4 == 0:
                ops.append(alu(f's_add_u32 s35, s31, {k*1024}'))
            off = f' offset:{1024*(k & 3)}' if k & 3 else ''
            ops.append(vm(f'buffer_store_dwordx4 v[{q}:{q+3}], v{VL16}, s[16:19], s35 offen{off} {PST}', 'P'))
            k += 1
    return ops


def conv_prefetch_ops():
    ops = []
    ops.append(alu('s_mul_i32 s42, s2, 3641'))
    ops.append(alu('s_lshr_b32 s42, s42, 16'))
    ops.append(alu('s_lshl_b32 s42, s42, 7'))
    ops.append(alu(f's_add_u32 s42, s42, {WS_FL + FL_UR}'))
    ops.append(alu('v_and_b32 v86, 31, v2'))
    ops.append(alu('v_lshlrev_b32 v86, 2, v86'))
    ops.append(vm('buffer_load_dword v87, v86, s[16:19], s42 offen sc1', 'URF'))
    ops.append(alu('s_lshl_b32 s40, s2, 2'))
    ops.append(alu(f's_add_u32 s40, s40, s{S_W}'))
    ops.append(alu('s_min_u32 s40, s40, 575'))
    ops.append(alu('s_lshl_b32 s41, s40, 12'))
    ops.append(alu(f'v_add_u32 v38, s41, v{VL16}'))
    ops.append(alu('v_subrev_u32 v39, 32, v38'))
    ops.append(alu('v_max_i32 v39, 0, v39'))
    ops.append(alu('v_add_u32 v38, 992, v38'))
    for d, base in ((0, P0), (4, P1), (8, P2)):
        ops.append(vm(f'buffer_load_dwordx4 v[{base}:{base+3}], v39, s[20:23], 0 offen offset:{d}', 'CP'))
        for q in range(1, 5):
            ops.append(vm(f'buffer_load_dwordx4 v[{base+4*q}:{base+4*q+3}], v38, s[20:23], 0 offen offset:{1024*(q-1)+d}', 'CP'))
    return ops


CA, CB = 144, 188
VQA, VQB = 76, 77


def gen_conv(p, timing):
    p(wait_vm('URF'))
    p(f'v_cmp_ne_u32 vcc, s{S_NONCE}, v87')
    p('s_nop 3')
    p('s_cmp_eq_u64 vcc, 0')
    p('s_cbranch_scc1 K_UR_OK')
    p.ops.append(Op(None, 'push'))
    poll(p, 87, 86, 's42', 'UR')
    p.ops.append(Op(None, 'pop'))
    p.label('K_UR_OK')
    p(f's_add_u32 s42, s41, {WS_UR}')
    for q in range(4):
        off = f' offset:{1024*q}' if q else ''
        p(vm(f'buffer_load_dwordx4 v[{PU+4*q}:{PU+4*q+3}], v{VL16}, s[16:19], s42 offen{off} sc1', 'CU'))
    p('s_and_b32 s43, s40, 0xfffe')
    p('s_lshl_b32 s43, s43, 1')
    p('s_load_dword s44, s[38:39], s43')
    p('s_barrier')
    p(f's_mul_i32 s45, s{S_W}, {CONV_STRIDE}')
    p(wait_vm('CP'))
    p(f'v_readlane_b32 s46, v{P0}, 2')
    p(f'v_readlane_b32 s47, v{P0+1}, 2')
    p('s_mov_b64 exec, 3')
    for base in (P0, P1, P2):
        for i in range(4):
            p(f'v_mov_b32 v{base+i}, 0')
    p('s_mov_b64 exec, -1')
    p(f'v_writelane_b32 v{P1+3}, s46, 1')
    p(f'v_writelane_b32 v{P2+2}, s46, 1')
    p(f'v_writelane_b32 v{P2+3}, s47, 1')
    p(f'v_add_u32 v38, s45, v{VL16}')
    T = 40
    for q in range(5):
        p(f'ds_write_b128 v38, v[{P0+4*q}:{P0+4*q+3}] offset:{1024*q}')
        t = T + 8 * (q % 2)
        for i in range(4):
            p(f'v_alignbit_b32 v{t+i}, v{P1+4*q+i}, v{P0+4*q+i}, 16')
        p(f'ds_write_b128 v38, v[{P1+4*q}:{P1+4*q+3}] offset:{2*CONV_COPY + 1024*q}')
        for i in range(4):
            p(f'v_alignbit_b32 v{t+4+i}, v{P2+4*q+i}, v{P1+4*q+i}, 16')
        p(f'ds_write_b128 v38, v[{t}:{t+3}] offset:{CONV_COPY + 1024*q}')
        p(f'ds_write_b128 v38, v[{t+4}:{t+7}] offset:{3*CONV_COPY + 1024*q}')
    for i in range(4):
        p(f'v_mov_b32 v{60+i}, 0')
    p(f'ds_write_b128 v38, v[60:63] offset:{CONV_UR + 4096}')
    p(f'v_add_u32 v39, 1, v{VN}')
    p(f'v_and_b32 v{VQA}, 3, v39')
    p(f'v_mul_u32_u24 v{VQA}, {CONV_COPY}, v{VQA}')
    p('v_and_b32 v57, 0x1c, v39')
    p(f'v_lshl_add_u32 v{VQA}, v57, 1, v{VQA}')
    p(f'v_lshl_add_u32 v{VQA}, v{VG}, 4, v{VQA}')
    p(f'v_add_u32 v{VQA}, s45, v{VQA}')
    p(f'v_lshlrev_b32 v{VQB}, 5, v{VN}')
    p(f'v_lshlrev_b32 v58, 4, v{VG}')
    p(f'v_sub_u32 v{VQB}, v58, v{VQB}')
    p(f's_add_u32 s46, s45, {CONV_UR + 4064 - 3584}')
    p(f'v_add_u32 v{VQB}, s46, v{VQB}')
    p(wait_vm('CU'))
    for q in range(4):
        p(f'ds_write_b128 v38, v[{PU+4*q}:{PU+4*q+3}] offset:{CONV_UR + 1024*q}')
    p('s_waitcnt lgkmcnt(0)')
    if timing: p(raw('s_memtime s[70:71]'))

    def reads(r):
        st_ = r & 1
        ops = []
        for k in range(8):
            a = CA + 32 * st_ + 4 * k
            b = CB + 32 * st_ + 4 * k
            ops.append(lds(f'ds_read_b64 a[{a}:{a+1}], v{VQA} offset:{512*k + 64*r}', f'C{r}'))
            ops.append(lds(f'ds_read_b64 a[{a+2}:{a+3}], v{VQA} offset:{512*k + 64*r + 8}', f'C{r}'))
            ops.append(lds(f'ds_read_b128 v[{b}:{b+3}], v{VQB} offset:{512*(7-k) + 64*r}', f'C{r}'))
        return ops

    pst = partial_store_ops()
    per = (len(pst) + 5) // 6
    p(reads(0))
    for r in range(8):
        st_ = r & 1
        mf = []
        for nt in range(8):
            for ap in range(nt + 1):
                a = CA + 32 * st_ + 4 * ap
                b = CB + 32 * st_ + 4 * (nt - ap)
                d = CACC + 4 * nt
                c = '0' if (r == 0 and ap == 0) else f'v[{d}:{d+3}]'
                mf.append((nt, ap, mfma(f'v_mfma_f32_16x16x32_bf16 v[{d}:{d+3}], a[{a}:{a+3}], v[{b}:{b+3}], {c}')))
        mf.sort(key=lambda x: (x[1], x[0]))
        mf = [x[2] for x in mf]
        p(wait_lgkm(f'C{r}'))
        fx = {}
        if r < 7:
            for i, o in enumerate(reads(r + 1)):
                fx.setdefault(i, []).append(o)
        fl = pst[r * per:(r + 1) * per]
        if timing and r in (1, 3, 5): p(raw(f's_memtime s[{84 + (r-1)}:{85 + (r-1)}]'))
        p(place2(mf, fx, fl, 0, 36))
    if timing: p(raw('s_memtime s[90:91]'))
    p('s_waitcnt lgkmcnt(0)')
    p('s_and_b32 s43, s40, 1')
    p('s_lshl_b32 s43, s43, 4')
    p('s_lshr_b32 s44, s44, s43')
    p('s_lshl_b32 s44, s44, 16')
    p(f'v_lshlrev_b32 v58, 5, v{VN}')
    p(f'v_lshl_add_u32 v58, v{VG}, 3, v58')
    p(f's_add_u32 s46, s45, {CONV_UR + 4088 - 512*7}')
    p('v_sub_u32 v59, s46, v58')
    for nt in range(8):
        p(lds(f'ds_read_b64 v[{112+2*nt}:{113+2*nt}], v59 offset:{512*(7-nt)}', 'U'))
    p(f's_mul_i32 s46, s{S_W}, 4160')
    p(f's_add_u32 s46, s46, {CONV_YT}')
    p('v_add_u32 v59, s46, v58')
    p('s_nop 7')
    p(wait_lgkm('U'))
    for nt in range(8):
        d = CACC + 4 * nt
        u0, u1 = 112 + 2 * nt, 113 + 2 * nt
        t = [64, 65, 66, 67]
        p(f'v_and_b32 v{t[0]}, 0xffff0000, v{u1}')
        p(f'v_lshlrev_b32 v{t[1]}, 16, v{u1}')
        p(f'v_and_b32 v{t[2]}, 0xffff0000, v{u0}')
        p(f'v_lshlrev_b32 v{t[3]}, 16, v{u0}')
        for i in range(4): p(f'v_fma_f32 v{d+i}, v{t[i]}, s44, v{d+i}')
        o = 68 + 2 * (nt % 2)
        p(f'v_cvt_pk_bf16_f32 v{o}, v{d}, v{d+1}')
        p(f'v_cvt_pk_bf16_f32 v{o+1}, v{d+2}, v{d+3}')
        p(f'ds_write_b64 v59, v[{o}:{o+1}] offset:{512*nt}')
    p(f'v_lshrrev_b32 v58, 2, v{VN}')
    p('v_mul_u32_u24 v58, 4160, v58')
    p('v_and_b32 v59, 3, v2')
    p('v_lshl_add_u32 v58, v59, 3, v58')
    p(f'v_lshl_add_u32 v58, v{VG}, 5, v58')
    p(f's_lshl_b32 s46, s{S_W}, 10')
    p(f's_add_u32 s46, s46, {CONV_YT}')
    p('v_add_u32 v58, s46, v58')
    p('v_lshlrev_b32 v59, 3, v2')
    p('s_lshl_b32 s46, s2, 14')
    p(f's_lshl_b32 s47, s{S_W}, 12')
    p('s_add_u32 s46, s46, s47')
    p(f's_add_u32 s46, s46, {WS_Y}')
    p('s_waitcnt lgkmcnt(0)')
    p('s_barrier')
    for k in range(8):
        p(lds(f'ds_read_b64_tr_b16 v[{112+2*k}:{113+2*k}], v58 offset:{128*k}', f'YT{k}'))
    for k in range(8):
        p(wait_lgkm(f'YT{k}'))
        p(f'buffer_store_dwordx2 v[{112+2*k}:{113+2*k}], v59, s[16:19], s46 offen offset:{512*k} sc1')
    if timing: p(raw('s_memtime s[92:93]'))


def gen_final(p, timing):
    srd(p, 52, 4, NB)
    srd(p, 56, 48, NB)
    p(f's_lshr_b32 s60, s{S_J}, 1')
    p(f's_and_b32 s61, s{S_J}, 1')
    p(f's_lshl_b32 s62, s{S_M}, 7')
    p(f's_add_u32 s62, s62, {FL_P}')
    p('v_lshlrev_b32 v40, 2, v2')
    p('v_add_u32 v41, s62, v40')
    p('s_lshl_b32 s63, s60, 7')
    p(f's_add_u32 s63, s63, {FL_Y - 32}')
    p('v_add_u32 v42, s63, v40')
    p('s_lshl_b32 s63, s60, 4')
    p(f's_add_u32 s63, s63, {FL_Y + 512 - 160}')
    p('v_add_u32 v43, s63, v40')
    p('v_cmp_gt_u32 vcc, 8, v2')
    p('s_nop 1')
    p('v_cndmask_b32 v42, v42, v41, vcc')
    p('v_cmp_lt_u32 vcc, 39, v2')
    p('s_nop 1')
    p('v_cndmask_b32 v42, v42, v43, vcc')
    p('v_mov_b32 v43, s62')
    p('v_cmp_lt_u32 vcc, 43, v2')
    p('s_nop 1')
    p('v_cndmask_b32 v42, v42, v43, vcc')
    p(f's_mov_b32 s63, {WS_FL}')
    p(f's_lshl_b32 s34, s{S_M}, 6')
    p('s_lshl_b32 s35, s61, 5')
    p('s_add_u32 s34, s34, s35')
    p(f'v_add_u32 v6, s34, v{VN}')
    p('s_lshl_b32 s35, s61, 8')
    p(f's_add_u32 s35, s35, {LDS_ST}')
    p(f'v_lshl_add_u32 v7, v{VN}, 3, s35')
    p(lds('ds_read_b64 v[60:61], v7', 'ST'))
    p(lds('ds_read_b64 v[62:63], v7 offset:128', 'ST'))
    p(f's_lshl_b32 s34, s{S_M}, 3')
    p(f's_add_u32 s34, s34, s{S_J}')
    p('s_mul_i32 s34, s34, 9216')
    p(f's_add_u32 s34, s34, {WS_P}')
    NR = 3
    XA, YA, PA = 112, 124, 136
    for r in range(NR):
        p(f's_add_u32 s{64+r}, s{S_W}, {4*r}')
        p(f's_min_u32 s{64+r}, s{64+r}, 8')
        p('s_lshl_b32 s35, s60, 7')
        p(f's_lshl_b32 s40, s{64+r}, 4')
        p('s_add_u32 s35, s35, s40')
        p('s_lshl_b32 s40, s60, 4')
        p('s_add_u32 s40, s40, 512')
        p(f's_cmp_lt_u32 s{64+r}, 8')
        p('s_cselect_b32 s35, s35, s40')
        p(f'v_lshl_add_u32 v{8+r}, v{VG}, 2, s35')
        p(f'v_mul_u32_u24 v{12+r}, 1152, v6')
        p(f'v_lshl_add_u32 v{12+r}, v{8+r}, 1, v{12+r}')
        p(f'v_add_u32 v{16+r}, {16*1152}, v{12+r}')
        p(vm(f'buffer_load_dwordx2 v[{XA+4*r}:{XA+4*r+1}], v{12+r}, s[52:55], 0 offen', f'FX{r}'))
        p(vm(f'buffer_load_dwordx2 v[{XA+4*r+2}:{XA+4*r+3}], v{16+r}, s[52:55], 0 offen', f'FX{r}'))
        p(f'v_lshrrev_b32 v{20+r}, 2, v{8+r}')
        p(f'v_lshlrev_b32 v{20+r}, 14, v{20+r}')
        p(f'v_lshl_add_u32 v{20+r}, v6, 3, v{20+r}')
    p(f's_cmp_lg_u32 s{S_W}, 0')
    p('s_cbranch_scc1 K_FIN_GO')
    p.ops.append(Op(None, 'push'))
    poll(p, 44, 42, 's63', 'FIN')
    p.ops.append(Op(None, 'pop'))
    p.label('K_FIN_GO')
    p('s_barrier')
    if timing:
        p(raw('s_memtime s[74:75]'))
        p(raw('s_memrealtime s[80:81]'))
    p(f's_mov_b32 s41, {WS_Y}')
    for r in range(NR):
        p(f's_lshl_b32 s35, s{64+r}, 10')
        p('s_add_u32 s35, s35, s34')
        for j in range(8):
            b = PA + 32 * r + 4 * j
            p(vm(f'buffer_load_dwordx4 v[{b}:{b+3}], v{VL16}, s[16:19], s35 offen {PLD}', f'FP{r}_{j}'))
            if j != 7:
                p(f's_add_u32 s35, s35, {NB}')
        p(vm(f'buffer_load_dwordx2 v[{YA+4*r}:{YA+4*r+1}], v{20+r}, s[16:19], s41 offen sc1', f'FY{r}'))
        p(vm(f'buffer_load_dwordx2 v[{YA+4*r+2}:{YA+4*r+3}], v{20+r}, s[16:19], s41 offen offset:128 sc1', f'FY{r}'))
        if r == 1:
            p(f's_cmp_lg_u32 s{S_W}, 0')
            p('s_cbranch_scc1 K_FIN_L2')
            p.ops.append(Op(None, 'push'))
        if r == 2:
            p.ops.append(Op(None, 'pop'))
            p.label('K_FIN_L2')
    p('s_mov_b32 s40, 0x00003f80')
    p('s_mov_b32 s41, 0x3f800000')
    p(wait_lgkm('ST'))
    O = list(range(64, 72))
    for r in range(NR):
        if r == 2:
            p(f's_cmp_lg_u32 s{S_W}, 0')
            p('s_cbranch_scc1 K_FIN_DONE')
            p(opaque('s_waitcnt vmcnt(0)'))
        b0 = PA + 32 * r
        p(wait_vm(f'FP{r}_0'))
        for k in range(4):
            unpack(p, O[2*k], O[2*k+1], b0 + k)
        for j in range(1, 8):
            p(wait_vm(f'FP{r}_{j}'))
            for k in range(4):
                p(f'v_dot2_f32_bf16 v{O[2*k]}, v{b0+4*j+k}, s40, v{O[2*k]}')
                p(f'v_dot2_f32_bf16 v{O[2*k+1]}, v{b0+4*j+k}, s41, v{O[2*k+1]}')
        p('s_nop 2')
        silu_inplace(p, O, list(range(74, 82)))
        p(wait_vm([f'FY{r}', f'FX{r}']))
        for h in range(2):
            xs = [82, 83, 84, 85]; ys = [86, 87, 88, 89]; xn = [90, 91, 92, 93]
            unpack(p, xs[0], xs[1], XA + 4 * r + 2 * h); unpack(p, xs[2], xs[3], XA + 4 * r + 2 * h + 1)
            unpack(p, ys[0], ys[1], YA + 4 * r + 2 * h); unpack(p, ys[2], ys[3], YA + 4 * r + 2 * h + 1)
            for i in range(4): p(f'v_fma_f32 v{xn[i]}, v{xs[i]}, v{60+2*h}, v{61+2*h}')
            for i in range(4): p(f'v_mul_f32 v{xn[i]}, v{xn[i]}, v{ys[i]}')
            for i in range(4): p(f'v_fma_f32 v{xn[i]}, v{xn[i]}, v{O[4*h+i]}, v{xs[i]}')
            o = 94 + 2 * h
            p(f'v_cvt_pk_bf16_f32 v{o}, v{xn[0]}, v{xn[1]}')
            p(f'v_cvt_pk_bf16_f32 v{o+1}, v{xn[2]}, v{xn[3]}')
            p(raw(f'buffer_store_dwordx2 v[{o}:{o+1}], v{(12 if h == 0 else 16)+r}, s[56:59], 0 offen'))
    p.label('K_FIN_DONE')


def build(timing=False):
    _silu_rot[0] = 0
    k = gen(timing)
    txt = HEADER
    txt += '; @launch grid=(256,1,1) block=(256,1,1) lds=163840\n'
    txt += '.amdgcn_target "amdgcn-amd-amdhsa--gfx950"\n'
    txt += kernel_head(KNAME) + k.resolve()
    txt += kernel_descriptor(KNAME, 512, 102, 256)
    return txt


if __name__ == '__main__':
    timing = '--timing' in sys.argv
    out = [a for a in sys.argv[1:] if not a.startswith('--')]
    open(out[0] if out else 'cdna_kernels/' + NAME + '.s', 'w').write(build(timing))
```

```python
import os
import sys
sys.path.insert(0, 'exp')
from asmgen import *

NAME = 'recurrent_scan__ssm_conv_h3__dense_activation_silu__prompt'
KNAME = NAME + '_kernel'
S, D, F = 2048, 576, 4608
NB = S * D * 2
WS_UR = 0
WS_Y = NB
WS_FL = 2 * NB
FL_UR, FL_P, FL_Y = 0, 1024, 1024 + 4096
WS_P = 2 * NB + 65536
WS_END = WS_P + 8 * NB
WS_DBG = WS_END
LOG2E_NEG = 0xbfb8aa3b
HEADER = open('cdna_kernels/' + NAME + '.s.ref').read().split('; Override launch')[0]

ORDER2 = [0, 4, 8, 12, 1, 5, 9, 13, 2, 6, 10, 14, 3, 7, 11, 15, 16, 17]
RING = 73728
SPARE = 147456
LDS_T = SPARE
LDS_ST = SPARE + 12288
ACC1 = 112
BSET = 144
ASET = 216
VW1, VW2, VT = 4, 13, 22
VA0, VA1 = 31, 32
VH0, VH1 = 33, 34
VL16 = 35
VG, VN = 36, 37
VX = 80
STMP = 40
S_W, S_J, S_M = 24, 25, 26
S_SOFF, S_RING, S_W1B, S_W2B, S_SOFF2 = 27, 28, 29, 30, 31
S_NONCE = 94
S_PF2 = 92
S_MI = 23 + 70
PST = os.environ.get('PST', 'sc1')
PLD = os.environ.get('PLD', 'sc1')
KVPF = os.environ.get('KVPF', '1') == '1'
NSH = int(os.environ.get('NSH', '1'))
KR, VR, SK = 0, 28, 44
VTW = 84
CONV_STRIDE = 25856
CONV_COPY = 5184
CONV_UR = 4 * CONV_COPY
CONV_YT = 4 * CONV_STRIDE
P0, P1, P2, PU = 112, 132, 152, 172
CACC = 80
SPIN_MAX = 1 << 20

DBG_NOSILU = 'NOSILU' in os.environ


def f32bits(x):
    import struct
    return struct.unpack('<I', struct.pack('<f', x))[0]


def srd(p, s, lo, size):
    p(f's_mov_b32 s{s}, s{lo}')
    p(f's_mov_b32 s{s+1}, s{lo+1}')
    p(f's_mov_b32 s{s+2}, {size}')
    p(f's_mov_b32 s{s+3}, 0x00020000')


def round_bf16(p, dst, src):
    p(f'v_cvt_pk_bf16_f32 v{dst}, v{src}, v{src}')
    p(f'v_lshlrev_b32 v{dst}, 16, v{dst}')


def unpack(p, lo, hi, src):
    if lo == src:
        p(f'v_and_b32 v{hi}, 0xffff0000, v{src}')
        p(f'v_lshlrev_b32 v{lo}, 16, v{src}')
    else:
        p(f'v_lshlrev_b32 v{lo}, 16, v{src}')
        p(f'v_and_b32 v{hi}, 0xffff0000, v{src}')


def round_pairs(p, regs, tmp):
    for i in range(0, len(regs), 2):
        p(f'v_cvt_pk_bf16_f32 v{tmp}, v{regs[i]}, v{regs[i+1]}')
        unpack(p, regs[i], regs[i + 1], tmp)


def silu_inplace(p, regs, tmp):
    n = len(regs)
    for i in range(n): p(f'v_mul_f32 v{tmp[i]}, {hex(LOG2E_NEG)}, v{regs[i]}')
    for i in range(n): p(f'v_exp_f32 v{tmp[i]}, v{tmp[i]}')
    p('s_nop 0')
    for i in range(n): p(f'v_add_f32 v{tmp[i]}, 1.0, v{tmp[i]}')
    for i in range(n): p(f'v_rcp_f32 v{tmp[i]}, v{tmp[i]}')
    p('s_nop 0')
    for i in range(n): p(f'v_mul_f32 v{regs[i]}, v{regs[i]}, v{tmp[i]}')


def acc1(ct, rt):
    b = ACC1 + (ct * 4 + rt) * 4
    return f'v[{b}:{b+3}]'


def acc2(ct, rt):
    b = (ct * 4 + rt) * 4
    return f'a[{b}:{b+3}]'


def soff_reg(idx):
    return S_SOFF if idx & 1 == 0 else S_SOFF2


def dma_pieces(idx, nop=False):
    slot = idx & 1
    so = soff_reg(idx)
    if idx < 18:
        vw, srd_ = VW1, 's[8:11]'
        setup = alu(f's_add_u32 s{so}, s{S_W1B}, {idx * 32 * 9216}')
    else:
        vw, srd_ = VW2, 's[12:15]'
        setup = alu(f's_add_u32 s{so}, s{S_W2B}, {ORDER2[idx-18] * 32 * 1152}')

    def m0(off):
        r = [alu(f's_add_u32 m0, s{S_RING}, {slot * 9216 + off}')]
        if nop: r.append(alu('s_nop 0'))
        return r

    def ld(u, tag):
        off = f' offset:{1024 * (u & 3)}' if (u & 3) and u < 8 else ''
        return [vm(f'buffer_load_dwordx4 v{vw+u}, {srd_}, s{so} offen{off} lds', tag)]
    te, to = f'W{idx}e', f'W{idx}o'
    even = [setup] + m0(8192) + ld(8, te) + m0(0) + ld(0, te) + ld(2, te) + m0(4096) + ld(4, te) + ld(6, te)
    odd = m0(0) + ld(1, to) + ld(3, to) + m0(4096) + ld(5, to) + ld(7, to)
    return even, odd


def dma_ops(idx):
    e, o = dma_pieces(idx, nop=True)
    return e + o


def split_vm(ops, n):
    c = 0
    for i, o in enumerate(ops):
        if o.kind == 'vm':
            c += 1
            if c == n:
                return ops[:i+1], ops[i+1:]
    raise ValueError


def bread_ops(idx):
    slot = idx & 1
    o = slot * 9216
    first, second = [], []
    b = BSET + 36 * slot + 32
    first.append(lds(f'ds_read_b64_tr_b16 a[{b}:{b+1}], v{VT+8} offset:{o}', f'B{idx}a'))
    first.append(lds(f'ds_read_b64_tr_b16 a[{b+2}:{b+3}], v{VT+8} offset:{o+256}', f'B{idx}a'))
    for t in range(8):
        b = BSET + 36 * slot + 4 * t
        first.append(lds(f'ds_read_b64_tr_b16 a[{b}:{b+1}], v{VT+t} offset:{o}', f'B{idx}a'))
        second.append(lds(f'ds_read_b64_tr_b16 a[{b+2}:{b+3}], v{VT+t} offset:{o+1024}', f'B{idx}b'))
    return first, second


def aread_ops(idx):
    s = idx if idx < 18 else ORDER2[idx - 18]
    st = idx & 1
    ops = []
    for rt in range(4):
        b = ASET + 16 * st + 4 * rt
        if idx < 18:
            va = VX + (s & 1) + (2 if rt >= 2 else 0)
        else:
            va = VA0 if rt < 2 else VA1
        ops.append(lds(f'ds_read_b128 a[{b}:{b+3}], v{va} offset:{((rt & 1) * 18 + s) * 1024}', f'A{idx}'))
    return ops


def mfma_ops(idx):
    st = idx & 1
    ops = []
    for ct in range(9):
        for rt in range(4):
            d = acc1(ct, rt) if idx < 18 else acc2(ct, rt)
            wb = BSET + 36 * st + 4 * ct
            xb = ASET + 16 * st + 4 * rt
            c = '0' if idx in (0, 18) else d
            ops.append(mfma(f'v_mfma_f32_16x16x32_bf16 {d}, a[{wb}:{wb+3}], a[{xb}:{xb+3}], {c}'))
    return ops


_silu_rot = [0]


def silu_tile_ops(ct, rt):
    b = ACC1 + (ct * 4 + rt) * 4
    t = STMP + 8 * (_silu_rot[0] % 4)
    _silu_rot[0] += 1
    ops = []
    for i in range(4): ops.append(alu(f'v_mul_f32 v{t+i}, {hex(LOG2E_NEG)}, v{b+i}'))
    for i in range(4): ops.append(trans(f'v_exp_f32 v{t+i}, v{t+i}'))
    for i in range(4): ops.append(alu(f'v_add_f32 v{t+i}, 1.0, v{t+i}'))
    for i in range(4): ops.append(trans(f'v_rcp_f32 v{t+i}, v{t+i}'))
    for i in range(4): ops.append(alu(f'v_mul_f32 v{t+i}, v{b+i}, v{t+i}'))
    ops.append(alu(f'v_cvt_pk_bf16_f32 v{t+4}, v{t}, v{t+1}'))
    ops.append(alu(f'v_cvt_pk_bf16_f32 v{t+5}, v{t+2}, v{t+3}'))
    if ct < 8:
        ops.append(lds(f'ds_write_b64 v{VH0}, v[{t+4}:{t+5}] offset:{rt*18432 + (ct >> 1)*1024 + (ct & 1)*512}', 'H'))
    else:
        ops.append(lds(f'ds_write_b64 v{VH1}, v[{t+4}:{t+5}] offset:{rt*18432}', 'H'))
    return ops


def kv_pair_ops(e):
    ops = []
    R = list(range(40, 55))
    for i in range(7): ops.append(alu(f'v_accvgpr_read_b32 v{R[i]}, a{KR + 4*i + e//2}'))
    for i in range(4): ops.append(alu(f'v_accvgpr_read_b32 v{R[7+i]}, a{VR + 4*i + e//2}'))
    for i in range(4): ops.append(alu(f'v_accvgpr_read_b32 v{R[11+i]}, a{SK + 2*e + i}'))
    for hi in range(2):
        def up(dst, src):
            ops.append(alu(f'v_and_b32 v{dst}, 0xffff0000, v{src}' if hi else f'v_lshlrev_b32 v{dst}, 16, v{src}'))
        kf = list(range(55, 62)); vf = list(range(62, 66)); sk = [66, 67, 68, 69]; ks = [70, 71, 72, 73]
        for i in range(7): up(kf[i], R[i])
        for i in range(4): up(vf[i], R[7 + i])
        for i in range(2):
            src = R[11 + 2 * hi + i]
            ops.append(alu(f'v_lshlrev_b32 v{sk[2*i]}, 16, v{src}'))
            ops.append(alu(f'v_and_b32 v{sk[2*i+1]}, 0xffff0000, v{src}'))
        for t in range(4): ops.append(alu(f'v_mul_f32 v{ks[t]}, v{kf[t]}, v{sk[3]}'))
        for jx in (2, 1, 0):
            for t in range(4): ops.append(alu(f'v_fmac_f32 v{ks[t]}, v{kf[3+t-jx]}, v{sk[jx]}'))
        for i in (0, 2):
            ops.append(alu(f'v_cvt_pk_bf16_f32 v74, v{ks[i]}, v{ks[i+1]}'))
            ops.append(alu(f'v_lshlrev_b32 v{ks[i]}, 16, v74'))
            ops.append(alu(f'v_and_b32 v{ks[i+1]}, 0xffff0000, v74'))
        for t in range(4): ops.append(alu(f'v_mul_f32 v{ks[t]}, v{ks[t]}, v{vf[t]}'))
        o = 76 + 2 * hi
        ops.append(alu(f'v_cvt_pk_bf16_f32 v{o}, v{ks[3]}, v{ks[2]}'))
        ops.append(alu(f'v_cvt_pk_bf16_f32 v{o+1}, v{ks[1]}, v{ks[0]}'))
        ops.append(lds(f'ds_write_b64 v{VTW}, v[{o}:{o+1}] offset:{144*(e+hi)}', 'T'))
    return ops


def ur_addr_ops():
    ops = []
    ops.append(alu(f's_mul_i32 s95, s{S_J}, {72*4096}'))
    ops.append(alu(f's_lshl_b32 s35, s{S_M}, 7'))
    ops.append(alu('s_sub_u32 s95, s95, s35'))
    ops.append(alu(f's_add_u32 s95, s95, {WS_UR + 1984*2}'))
    for r in range(3):
        ops.append(alu(f'v_add_u32 v60, {256*r}, v0'))
        if r == 2: ops.append(alu('v_min_u32 v60, 575, v60'))
        ops.append(alu('v_lshrrev_b32 v61, 3, v60'))
        ops.append(alu('v_and_b32 v62, 7, v60'))
        ops.append(alu(f'v_mul_u32_u24 v{98+r}, 144, v61'))
        ops.append(alu(f'v_lshl_add_u32 v{98+r}, v62, 4, v{98+r}'))
        ops.append(alu(f'v_add_u32 v{98+r}, {LDS_T}, v{98+r}'))
        ops.append(alu(f'v_lshlrev_b32 v{101+r}, 12, v61'))
        ops.append(alu(f'v_lshl_add_u32 v{101+r}, v62, 4, v{101+r}'))
    return ops


def silu_group_tiles(g):
    cts = [2 * g, 2 * g + 1] if g < 4 else [8]
    return [(ct, rt) for ct in cts for rt in range(4)]


class Stamps:
    def __init__(self, on): self.on = on
    def __call__(self, p, n):
        if self.on: p(raw(f's_memtime s[{68+2*n}:{69+2*n}]'))


_lab = [0]


def poll(p, vdst, vaddr, soff, name):
    _lab[0] += 1
    L = f'POLL{_lab[0]}_{name}'
    p(f's_mov_b32 s47, {SPIN_MAX}')
    p.label(L)
    p(raw(f'buffer_load_dword v{vdst}, v{vaddr}, s[16:19], {soff} offen sc1'))
    p('s_waitcnt vmcnt(0)')
    p(f'v_cmp_ne_u32 vcc, s{S_NONCE}, v{vdst}')
    p('s_nop 3')
    p('s_cmp_eq_u64 vcc, 0')
    p(f's_cbranch_scc1 {L}_X')
    p('s_sub_u32 s47, s47, 1')
    p(f's_cbranch_scc1 {L}_X')
    p('s_sleep 1')
    p(f's_branch {L}')
    p.label(f'{L}_X')


def nonce_check(p, sfx):
    p('s_nop 0')
    p(f'v_readfirstlane_b32 s{S_NONCE}, v89')
    p(f's_cmp_lg_u32 s{S_NONCE}, 0')
    p(f's_cbranch_scc1 K_HAVE_NONCE{sfx}')
    p(f's_mov_b32 s34, {SPIN_MAX}')
    p.label(f'K_NONCE_SPIN{sfx}')
    p('v_mov_b32 v89, 0')
    p(opaque('buffer_load_dword v89, v89, s[44:47], 0 offen sc1'))
    p(opaque('s_waitcnt vmcnt(0)'))
    p(f'v_readfirstlane_b32 s{S_NONCE}, v89')
    p('s_sub_u32 s34, s34, 1')
    p(f's_cbranch_scc1 K_HAVE_NONCE{sfx}')
    p(f's_cmp_lg_u32 s{S_NONCE}, 0')
    p(f's_cbranch_scc1 K_HAVE_NONCE{sfx}')
    p('s_sleep 1')
    p(f's_branch K_NONCE_SPIN{sfx}')
    p.label(f'K_HAVE_NONCE{sfx}')


def publish_ur(p):
    p(f's_cmp_lg_u32 s{S_W}, 0')
    p('s_cbranch_scc1 K_NOFL1')
    p(f's_lshl_b32 s34, s{S_J}, 7')
    p(f's_lshl_b32 s35, s{S_M}, 2')
    p('s_add_u32 s34, s34, s35')
    p(f's_add_u32 s34, s34, {WS_FL + FL_UR}')
    p(f'v_mov_b32 v38, s{S_NONCE}')
    p('v_mov_b32 v39, 0')
    p('s_mov_b64 exec, 1')
    p(raw('buffer_store_dword v38, v39, s[16:19], s34 offen sc1'))
    p('s_mov_b64 exec, -1')
    p.label('K_NOFL1')


KA, VA_, SA = 0, 44, 76


def kv_addr_ops():
    T = []
    A = lambda t: T.append(alu(t))
    A('s_sub_u32 s100, s2, 144')
    A('v_mul_u32_u24 v40, 911, v0')
    A('v_lshrrev_b32 v40, 16, v40')
    A('v_mul_u32_u24 v41, 72, v40')
    A('v_sub_u32 v41, v0, v41')
    A('v_mul_u32_u24 v42, 112, v40')
    A('v_add_u32 v42, s100, v42')
    A('v_cmp_lt_u32 vcc, 255, v42')
    A('v_mov_b32 v43, s100')
    A('v_mul_u32_u24 v44, 7282, v41')
    A('v_cndmask_b32 v42, v42, v43, vcc')
    A('v_cndmask_b32 v40, v40, 0, vcc')
    A('v_lshrrev_b32 v43, 16, v44')
    A('v_mul_u32_u24 v44, 9, v43')
    A('v_sub_u32 v44, v41, v44')
    A('v_lshrrev_b32 v45, 3, v42')
    A('v_lshlrev_b32 v45, 6, v45')
    A('v_lshl_add_u32 v45, v43, 3, v45')
    A('v_and_b32 v46, 7, v42')
    A('v_mul_u32_u24 v46, 144, v46')
    A('v_lshl_add_u32 v46, v44, 4, v46')
    A('v_mul_u32_u24 v47, 1152, v45')
    A('v_add_u32 v47, v47, v46')
    A('v_add_u32 v48, 4608, v47')
    A('v_bfrev_b32 v49, 1')
    for i in range(3):
        A(f'v_add_u32 v{50+i}, {(1152*(i-3)) & 0xffffffff}, v47')
        A(f'v_cmp_gt_u32 vcc, {3-i}, v45')
        A(f'v_mov_b32 v53, v53')
        A(f'v_mov_b32 v53, v53')
        A(f'v_cndmask_b32 v{50+i}, v{50+i}, v49, vcc')
    A('v_lshlrev_b32 v46, 2, v46')
    A('v_mul_u32_u24 v99, 10368, v40')
    A('v_mul_u32_u24 v53, 1152, v44')
    A('v_add_u32 v99, v99, v53')
    A('v_lshlrev_b32 v53, 4, v43')
    A('v_sub_u32 v99, v99, v53')
    A('v_add_u32 v99, 112, v99')
    for r in range(3):
        A(f'v_add_u32 v53, {256*r}, v0')
        if r == 2: A('v_min_u32 v53, 575, v53')
        A('v_lshrrev_b32 v54, 3, v53')
        A('v_and_b32 v53, 7, v53')
        A(f'v_mul_u32_u24 v{100+r}, 144, v54')
        A(f'v_lshl_add_u32 v{100+r}, v53, 4, v{100+r}')
        A(f'v_lshlrev_b32 v{103+r}, 12, v54')
        A(f'v_lshl_add_u32 v{103+r}, v53, 4, v{103+r}')
    return T


def kv_srd_text():
    L = []
    for s_, lo, size in ((56, 6, NB), (60, 40, NB), (64, 42, D * 8)):
        L += [f's_mov_b32 s{s_}, s{lo}', f's_mov_b32 s{s_+1}, s{lo+1}', f's_mov_b32 s{s_+2}, {size}', f's_mov_b32 s{s_+3}, 0x00020000']
    return L


def kv_load_list():
    L = []
    for i in range(3):
        L.append(f'buffer_load_dwordx4 a[{KA+4*i}:{KA+4*i+3}], v{50+i}, s[56:59], 0 offen')
    for i in range(8):
        o = f' offset:{1152*(i&3)}' if i & 3 else ''
        L.append(f'buffer_load_dwordx4 a[{KA+12+4*i}:{KA+12+4*i+3}], v{47 + (i>>2)}, s[56:59], 0 offen{o}')
    for i in range(8):
        o = f' offset:{1152*(i&3)}' if i & 3 else ''
        L.append(f'buffer_load_dwordx4 a[{VA_+4*i}:{VA_+4*i+3}], v{47 + (i>>2)}, s[60:63], 0 offen{o} nt')
    for i in range(4):
        o = f' offset:{16*i}' if i else ''
        L.append(f'buffer_load_dwordx4 a[{SA+4*i}:{SA+4*i+3}], v46, s[64:67], 0 offen{o}')
    return L


def kv_load_block(n):
    L = kv_load_list()[3*n:3*n+3]
    t = ['s_cmp_lt_u32 s2, 144', f's_cbranch_scc1 KVL{n}'] + L
    return Op('\n  '.join(t) + f'\nKVL{n}:', 'opaque')


def gen_kvprep(p):
    p(opaque('s_waitcnt vmcnt(27)'))
    R = list(range(55, 78))
    for e in range(0, 8, 2):
        for i in range(11): p(f'v_accvgpr_read_b32 v{R[i]}, a{KA + 4*i + e//2}')
        for i in range(8): p(f'v_accvgpr_read_b32 v{R[11+i]}, a{VA_ + 4*i + e//2}')
        for i in range(4): p(f'v_accvgpr_read_b32 v{R[19+i]}, a{SA + 2*e + i}')
        for hi in range(2):
            sk = [40, 41, 42, 43]; ks = list(range(184, 192)); o = 196 if hi else 192
            for i in range(2):
                src = R[19 + 2 * hi + i]
                if hi:
                    p(f'v_lshlrev_b32 v{sk[2*i]}, 16, v{src}')
                    p(f'v_and_b32 v{sk[2*i+1]}, 0xffff0000, v{src}')
                else:
                    p(f'v_and_b32 v{sk[2*i]}, 0xffff, v{src}')
                    p(f'v_lshrrev_b32 v{sk[2*i+1]}, 16, v{src}')
            for t in range(8): p(f'v_dot2_f32_bf16 v{ks[t]}, v{R[t]}, v{sk[3]}, 0')
            for jx in (2, 1, 0):
                for t in range(8): p(f'v_dot2_f32_bf16 v{ks[t]}, v{R[3+t-jx]}, v{sk[jx]}, v{ks[t]}')
            for t in range(8):
                p(f'v_and_b32 v{44+t}, 0xffff0000, v{R[11+t]}' if hi else f'v_lshlrev_b32 v{44+t}, 16, v{R[11+t]}')
            for t in range(8): p(f'v_mul_f32 v{ks[t]}, v{ks[t]}, v{44+t}')
            for q in range(4):
                p(f'v_cvt_pk_bf16_f32 v{o+q}, v{ks[7-2*q]}, v{ks[6-2*q]}')
            p(f'ds_write_b128 v99, v[{o}:{o+3}] offset:{144*(e+hi)}')
    p('s_waitcnt lgkmcnt(0)')
    p('s_barrier')
    for k in range(3):
        if k == 2:
            p('s_cmp_ge_u32 s2, 176')
            p('s_cbranch_scc1 KV_NO3')
        p(f's_add_u32 s101, s100, {112*k}')
        p('s_and_b32 s34, s101, 7')
        p(f's_mul_i32 s34, s34, {72*4096}')
        p('s_lshr_b32 s35, s101, 3')
        p('s_lshl_b32 s35, s35, 7')
        p('s_sub_u32 s34, s34, s35')
        p(f's_add_u32 s34, s34, {WS_UR + 1984*2}')
        for r in range(3):
            b = 55 + 1 + 4 * r + 12 * (k & 1)
            p(lds(f'ds_read_b128 v[{b}:{b+3}], v{100+r} offset:{10368*k}', f'T{k}{r}'))
        for r in range(3):
            b = 55 + 1 + 4 * r + 12 * (k & 1)
            p(wait_lgkm(f'T{k}{r}'))
            p(vm(f'buffer_store_dwordx4 v[{b}:{b+3}], v{103+r}, s[16:19], s34 offen sc1', 'UR'))
    p.label('KV_NO3')


def kv_flags(p):
    p('s_cmp_lt_u32 s2, 144')
    p('s_cbranch_scc1 KV_DONE')
    p(f's_cmp_lg_u32 s{S_W}, 0')
    p('s_cbranch_scc1 KV_DONE')
    p('v_mul_u32_u24 v38, 112, v2')
    p('v_add_u32 v38, s100, v38')
    p('v_cmp_lt_u32 vcc, 255, v38')
    p('v_mov_b32 v39, s100')
    p('s_nop 0')
    p('v_cndmask_b32 v38, v38, v39, vcc')
    p('v_and_b32 v39, 7, v38')
    p('v_lshlrev_b32 v39, 7, v39')
    p('v_lshrrev_b32 v38, 3, v38')
    p('v_lshl_add_u32 v38, v38, 2, v39')
    p(f'v_mov_b32 v39, s{S_NONCE}')
    p(f's_mov_b32 s34, {WS_FL + FL_UR}')
    p('s_mov_b64 exec, 7')
    p(raw('buffer_store_dword v39, v38, s[16:19], s34 offen sc1'))
    p('s_mov_b64 exec, -1')
    p.label('KV_DONE')


def gen(timing=False):
    p = Prog()
    st = Stamps(timing)
    p('s_cmp_ge_u32 s2, 256')
    p('s_cbranch_scc1 K_END')
    st(p, 0)
    if timing: p(raw('s_memrealtime s[96:97]'))
    p('s_load_dwordx4 s[4:7], s[0:1], 0')
    p('s_load_dwordx4 s[40:43], s[0:1], 16')
    p('s_load_dwordx4 s[36:39], s[0:1], 32')
    p('s_load_dwordx4 s[44:47], s[0:1], 56')
    p('s_load_dwordx4 s[48:51], s[0:1], 72')
    p('s_load_dwordx2 s[32:33], s[0:1], 88')
    p('s_getpc_b64 s[84:85]')
    p.label('K_PC')
    p('v_lshrrev_b32 v1, 6, v0')
    p('v_and_b32 v2, 63, v0')
    p('s_lshr_b32 s86, s2, 3')
    p('s_lshl_b32 s86, s86, 2')
    p('v_add_u32 v3, s86, v1')
    p('s_mov_b32 s87, (K_CODE_END - K_PC + 8191) / 8192')
    p('v_cvt_f32_u32 v4, v3')
    p('v_cvt_f32_u32 v5, s87')
    p('v_rcp_f32 v5, v5')
    p('v_add_f32 v4, 0.5, v4')
    p('v_mul_f32 v4, v4, v5')
    p('v_cvt_u32_f32 v4, v4')
    p('v_mul_lo_u32 v4, v4, s87')
    p('v_sub_u32 v3, v3, v4')
    p('v_lshlrev_b32 v3, 13, v3')
    p('v_lshl_add_u32 v3, v2, 7, v3')
    p('v_min_u32 v3, K_CODE_END - K_PC - 4, v3')
    p(raw('global_load_dword v98, v3, s[84:85]'))
    p('s_nop 0')
    p(f'v_readfirstlane_b32 s{S_W}, v1')
    lg = {1: 0, 2: 1, 4: 2}[NSH]
    p('s_and_b32 s34, s2, 7')
    p('s_lshr_b32 s35, s2, 3')
    p(f's_lshr_b32 s{S_MI}, s35, {lg}')
    if NSH == 1:
        p(f's_mov_b32 s{S_J}, s34')
        p(f's_mov_b32 s{S_M}, s35')
    else:
        p(f's_lshr_b32 s{S_J}, s34, {lg}')
        p(f's_lshl_b32 s{S_J}, s{S_J}, {lg}')
        p(f's_and_b32 s35, s35, {NSH-1}')
        p(f's_add_u32 s{S_J}, s{S_J}, s35')
        p(f's_and_b32 s34, s34, {NSH-1}')
        p(f's_mul_i32 s{S_M}, s34, {32//NSH}')
        p(f's_add_u32 s{S_M}, s{S_M}, s{S_MI}')
    p(f'v_lshlrev_b32 v{VL16}, 4, v2')
    p(f'v_lshrrev_b32 v{VG}, 4, v2')
    p(f'v_and_b32 v{VN}, 15, v2')
    p('v_and_b32 v106, 7, v2')
    p('v_lshrrev_b32 v107, 3, v2')
    p(f's_lshl_b32 s34, s{S_W}, 4')
    p('v_add_u32 v109, s34, v107')
    p('v_mul_u32_u24 v109, 1152, v109')
    p('v_lshl_add_u32 v109, v106, 4, v109')
    p(f's_mul_i32 s34, s{S_M}, {64*1152}')

    def voffsets(vw, stride):
        p(f'v_lshlrev_b32 v70, 1, v{VG}')
        p(f'v_xor_b32 v70, v{VN}, v70')
        p('v_xor_b32 v71, 8, v70')
        p(f's_lshl_b32 s95, s{S_W}, 8')
        p('v_lshl_add_u32 v70, v70, 4, s95')
        p('v_lshl_add_u32 v71, v71, 4, s95')
        p(f's_mov_b32 s35, {stride}')
        p(f'v_mul_lo_u32 v72, v{VG}, s35')
        p('v_add_u32 v70, v70, v72')
        p('v_add_u32 v71, v71, v72')
        for u in range(8):
            var = 70 if ((u >> 1) & 1) == 0 else 71
            c = 4 * u * stride - 1024 * (u & 3)
            p(f'v_add_u32 v{vw+u}, {c}, v{var}' if c else f'v_mov_b32 v{vw+u}, v{var}')
        p('v_lshrrev_b32 v73, 1, v2')
        p('v_and_b32 v74, 0x13, v73')
        p('v_bfe_u32 v75, v73, 2, 1')
        p('v_lshl_or_b32 v74, v75, 3, v74')
        p('v_bfe_u32 v75, v73, 3, 1')
        p('v_lshl_or_b32 v74, v75, 2, v74')
        p('v_mul_lo_u32 v74, v74, s35')
        p('v_and_b32 v75, 1, v2')
        p('v_lshl_add_u32 v74, v75, 4, v74')
        p(f's_lshl_b32 s95, s{S_W}, 5')
        p('s_add_u32 s95, s95, 1024')
        p(f'v_add_u32 v{vw+8}, s95, v74')

    voffsets(VW1, 9216)
    p(f's_mul_i32 s{S_W1B}, s{S_J}, 1152')
    p(f's_mul_i32 s{S_W2B}, s{S_J}, {576*1152}')
    p(f's_mul_i32 s{S_RING}, s{S_W}, 18432')
    p(f's_add_u32 s{S_RING}, s{S_RING}, {RING}')
    NPF = 162 * NSH
    PFR = (NPF + 255) // 256
    for r in range(PFR):
        p(f'v_add_u32 v58, {256*r}, v0')
        p(f'v_min_u32 v58, {NPF-1}, v58')
        p('v_mul_u32_u24 v55, 7282, v58')
        p('v_lshrrev_b32 v55, 16, v55')
        p('v_mul_u32_u24 v56, 9, v55')
        p('v_sub_u32 v56, v58, v56')
        p(f's_mul_i32 s35, s{S_MI}, {18*NSH}')
        p('v_add_u32 v55, s35, v55')
        p('v_mul_u32_u24 v55, 9216, v55')
        p(f'v_lshl_add_u32 v{92+r}, v56, 7, v55')
        p(f'v_lshlrev_b32 v{95+r}, 7, v58')
    p('s_mul_i32 s35, s35, 1152')
    p(f's_add_u32 s{S_PF2}, s35, s{S_W2B}')
    p(kv_addr_ops())
    p('s_waitcnt lgkmcnt(0)')
    st(p, 1)
    srd(p, 8, 44, D * F * 2)
    srd(p, 12, 46, D * F * 2)
    srd(p, 44, 50, 256)
    p('v_mov_b32 v89, 0')
    p(f's_or_b32 s35, s2, s{S_W}')
    p('s_cmp_lg_u32 s35, 0')
    p('s_cbranch_scc1 K_NONONCE')
    p(raw('s_memrealtime s[100:101]'))
    p(opaque('s_waitcnt lgkmcnt(0)'))
    p('s_or_b32 s100, s100, 1')
    p('v_mov_b32 v60, s100')
    p('s_mov_b64 exec, 1')
    p(raw('buffer_store_dword v60, v89, s[44:47], 0 offen sc1'))
    p('s_mov_b64 exec, -1')
    p.label('K_NONONCE')
    p('\n'.join(kv_srd_text()))
    p('s_cmp_lt_u32 s2, 144')
    p('s_cbranch_scc1 K_NOKVL')
    for r in range(PFR):
        p(raw(f'buffer_load_dword v98, v{92+r}, s[8:11], s{S_W1B} offen'))
    for r in range(PFR):
        p(raw(f'buffer_load_dword v98, v{95+r}, s[12:15], s{S_PF2} offen'))
    for t in kv_load_list(): p(raw(t))
    p.label('K_NOKVL')
    p(dma_ops(0))
    srd(p, 52, 4, NB)
    XR = 112
    for ps in range(2):
        if ps: p('s_add_u32 s34, s34, 9216')
        for jj in range(9):
            o = f' offset:{128*jj}' if jj else ''
            b = XR + 36 * ps + 4 * jj
            p(vm(f'buffer_load_dwordx4 v[{b}:{b+3}], v109, s[52:55], s34 offen{o}', f'X{ps}'))
    srd(p, 16, 32, WS_END + (65536 if timing else 0))
    srd(p, 20, 36, D * S * 2)
    voffsets(VW2, 1152)
    p(f'v_lshrrev_b32 v70, 2, v{VN}')
    p('v_and_b32 v71, 3, v2')
    p(f'v_lshl_add_u32 v72, v{VG}, 3, v70')
    p('v_lshlrev_b32 v72, 8, v72')
    p('v_lshlrev_b32 v73, 3, v71')
    p('v_add_u32 v72, v72, v73')
    p(f'v_add_u32 v72, s{S_RING}, v72')
    p(f'v_and_b32 v74, 1, v{VG}')
    p('v_lshlrev_b32 v74, 3, v74')
    p('v_lshl_add_u32 v74, v70, 1, v74')
    for t in range(8):
        p(f'v_xor_b32 v75, {2*t}, v74')
        p(f'v_lshl_add_u32 v{VT+t}, v75, 4, v72')
    p(f'v_lshrrev_b32 v75, 1, v{VG}')
    p('v_lshlrev_b32 v75, 4, v75')
    p(f'v_and_b32 v76, 1, v{VG}')
    p('v_lshl_add_u32 v75, v76, 2, v75')
    p('v_add_u32 v75, v75, v70')
    p('v_lshl_add_u32 v75, v75, 5, v73')
    p(f's_add_u32 s35, s{S_RING}, 8192')
    p(f'v_add_u32 v{VT+8}, s35, v75')
    p(f'v_mov_b32 v{VA0}, v{VL16}')
    p(f'v_add_u32 v{VA1}, 36864, v{VL16}')
    p(f'v_lshlrev_b32 v70, 1, v{VG}')
    p(f'v_xor_b32 v71, v{VN}, v70')
    p(f'v_lshl_add_u32 v71, v{VG}, 4, v71')
    p(f'v_lshlrev_b32 v{VX}, 4, v71')
    p(f'v_xor_b32 v{VX+1}, 16, v{VX}')
    p(f'v_add_u32 v{VX+2}, 36864, v{VX}')
    p(f'v_add_u32 v{VX+3}, 36864, v{VX+1}')
    p(f'v_lshlrev_b32 v75, 4, v{VN}')
    p(f'v_lshrrev_b32 v76, 1, v{VG}')
    p('v_lshl_add_u32 v75, v76, 8, v75')
    p(f'v_and_b32 v76, 1, v{VG}')
    p('v_lshl_add_u32 v75, v76, 3, v75')
    p(f's_lshl_b32 s35, s{S_W}, 12')
    p(f'v_add_u32 v{VH0}, s35, v75')
    p(f's_lshr_b32 s35, s{S_W}, 1')
    p('s_lshl_b32 s35, s35, 10')
    p(f's_and_b32 s34, s{S_W}, 1')
    p('s_lshl_b32 s34, s34, 9')
    p('s_add_u32 s35, s35, s34')
    p('s_add_u32 s35, s35, 16384')
    p(f'v_add_u32 v{VH1}, s35, v75')
    p('v_and_b32 v60, 3, v106')
    p('v_lshrrev_b32 v61, 2, v106')
    p('v_lshl_add_u32 v90, v60, 1, v61')
    p('v_xor_b32 v90, v107, v90')
    p('v_lshlrev_b32 v90, 4, v90')
    p('v_lshl_add_u32 v90, v60, 8, v90')
    p('v_lshl_add_u32 v90, v61, 10, v90')
    p(f's_mul_i32 s34, s{S_W}, 18432')
    p('v_add_u32 v90, s34, v90')
    p(f's_lshl_b32 s34, s{S_W}, 7')
    p(f's_add_u32 s34, s34, {LDS_ST}')
    p('v_lshl_add_u32 v91, v107, 3, s34')
    st(p, 2)
    p('s_cmp_lt_u32 s2, 144')
    p('s_cbranch_scc1 K_NOKV')
    p.ops.append(Op(None, 'push'))
    gen_kvprep(p)
    p('s_waitcnt lgkmcnt(0)')
    p('s_barrier')
    p.ops.append(Op(None, 'pop'))
    p.label('K_NOKV')
    st(p, 3)
    for ps in range(2):
        b0 = XR + 36 * ps
        if ps == 1:
            p(dma_ops(1))
            for r in range(PFR):
                p(vm(f'buffer_load_dword v98, v{92+r}, s[8:11], s{S_W1B} offen', 'PF'))
            for r in range(PFR):
                p(vm(f'buffer_load_dword v98, v{95+r}, s[12:15], s{S_PF2} offen', 'PF'))
            p(vm('buffer_load_dword v89, v89, s[44:47], 0 offen sc1', 'NONCE'))
            st(p, 4)
        p(wait_vm(f'X{ps}'))
        p('s_mov_b32 s35, 0x3f803f80')
        p('v_mov_b32 v64, 0'); p('v_mov_b32 v65, 0'); p('v_mov_b32 v66, 0'); p('v_mov_b32 v67, 0')
        for i in range(36):
            a = 64 + (i & 1)
            p(f'v_dot2_f32_bf16 v{a}, v{b0+i}, s35, v{a}')
            p(f'v_dot2_f32_bf16 v{a+2}, v{b0+i}, v{b0+i}, v{a+2}')
        p('s_nop 2')
        p('v_add_f32 v64, v64, v65')
        p('v_add_f32 v66, v66, v67')
        for ctl in ('quad_perm:[1,0,3,2]', 'quad_perm:[2,3,0,1]', 'row_half_mirror'):
            p('s_nop 1')
            p(f'v_add_f32_dpp v64, v64, v64 {ctl} row_mask:0xf bank_mask:0xf')
            p(f'v_add_f32_dpp v66, v66, v66 {ctl} row_mask:0xf bank_mask:0xf')
        p(f'v_mul_f32 v64, {hex(f32bits(1.0/576))}, v64')
        p(f'v_mul_f32 v66, {hex(f32bits(1.0/576))}, v66')
        p('v_fma_f32 v66, -v64, v64, v66')
        p('v_max_f32 v66, 0, v66')
        round_bf16(p, 66, 66)
        p(f'v_add_f32 v66, {hex(f32bits(1e-5))}, v66')
        round_bf16(p, 66, 66)
        p('v_sqrt_f32 v66, v66')
        p('s_nop 0')
        round_bf16(p, 66, 66)
        p('v_rcp_f32 v68, v66')
        round_bf16(p, 64, 64)
        p('v_mul_f32 v69, v64, v68')
        p('v_sub_f32 v69, 0, v69')
        for jj in range(9):
            for i in range(4):
                r = b0 + 4 * jj + i
                t0 = 70 + 2 * (i & 1)
                p(f'v_lshlrev_b32 v{t0}, 16, v{r}')
                p(f'v_and_b32 v{t0+1}, 0xffff0000, v{r}')
                p(f'v_fma_f32 v{t0}, v{t0}, v68, v69')
                p(f'v_fma_f32 v{t0+1}, v{t0+1}, v68, v69')
                p(f'v_cvt_pk_bf16_f32 v{r}, v{t0}, v{t0+1}')
            p(f'ds_write_b128 v90, v[{b0+4*jj}:{b0+4*jj+3}] offset:{jj*2048 + ps*128}')
        p('v_cmp_eq_u32 vcc, 0, v106')
        p('s_and_saveexec_b64 s[34:35], vcc')
        p(f'ds_write_b64 v91, v[68:69] offset:{64*ps}')
        p('s_mov_b64 exec, s[34:35]')
    st(p, 5)
    p('s_waitcnt lgkmcnt(0)')
    p('s_barrier')
    p(aread_ops(0))
    p(wait_vm(['W0e', 'W0o']))
    b1, b2 = bread_ops(0)
    p(b1); p(b2)
    p(wait_lgkm(['A0', 'B0a', 'B0b']))
    p(dma_pieces(2, nop=True)[0])
    p(split_vm(dma_pieces(2, nop=True)[1], 2)[0])
    st(p, 6)

    def put(d, gap, ops):
        d.setdefault(gap, []).extend(ops if isinstance(ops, list) else [ops])

    def place_dma(d, ops, gaps):
        gi = 0
        pend = []
        for o in ops:
            if o.kind == 'vm':
                g = gaps[gi]; gi += 1
                if pend:
                    put(d, g - 1, pend); pend = []
                put(d, g, o)
            else:
                pend.append(o)
        assert not pend

    SPLIT = {1: [3, 2, 2, 1], 2: [3, 2, 2, 1], 3: [3, 2, 2, 1], 4: [2, 1, 1, 0]}
    for idx in range(36):
        nxt = idx + 1
        mf = mfma_ops(idx)
        fx = {}
        if timing:
            sp = 82 + 2 * (idx % 6)
            if idx >= 3:
                so = 82 + 2 * ((idx - 3) % 6)
                p(raw(f'v_writelane_b32 v88, s{so}, {idx-3}'))
            p(raw(f's_memtime s[{sp}:{sp+1}]'))
            if idx == 4:
                for n in range(7): p(raw(f'v_writelane_b32 v88, s{68+2*n}, {40+n}'))
        qpos = (idx - 18) % 4 if idx >= 18 else None
        V = []
        late = False
        if idx == 17:
            late = True
        elif 18 <= idx < 34:
            g = (idx - 18) // 4 + 1
            tiles = silu_group_tiles(g)
            lo_ = sum(SPLIT[g][:qpos])
            for (ct, rt) in tiles[lo_:lo_ + SPLIT[g][qpos]]:
                V += silu_tile_ops(ct, rt)
            late = (qpos == 3)
        if DBG_NOSILU: V = []
        if idx == 32:
            V = V + conv_flag_ops()
        if idx + 2 < 36:
            place_dma(fx, split_vm(dma_pieces(idx + 2)[1], 2)[1], [1, 5])
        if nxt < 36:
            b1, b2 = bread_ops(nxt)
            put(fx, -1, wait_vm(f'W{nxt}e'))
            for g_, o in zip([0, 0, 2, 2, 3, 3, 4, 4, 6, 6], b1):
                put(fx, g_, o)
            put(fx, 7, wait_vm(f'W{nxt}o'))
            for g_, o in zip([7, 7, 8, 8, 10, 10, 11, 11], b2):
                put(fx, g_, o)
            put(fx, 8, wait_lgkm(f'B{nxt}a'))
            put(fx, 16, wait_lgkm(f'B{nxt}b'))
            if not late:
                for g_, o in zip([12, 14, 15, 16], aread_ops(nxt)):
                    put(fx, g_, o)
                put(fx, 35, wait_lgkm(f'A{nxt}'))
        if idx + 3 < 36:
            ev, od = dma_pieces(idx + 3)
            place_dma(fx, ev, [9, 13, 17, 21, 25])
            place_dma(fx, split_vm(od, 2)[0], [29, 33])
        if idx == 17:
            put(fx, 12, alu('s_barrier'))
            sil = []
            for (ct, rt) in silu_group_tiles(0):
                sil += silu_tile_ops(ct, rt)
            nsil = 23 * 4
            p(place2(mf, fx, sil[:nsil], 13, 36))
            p(sil[nsil:])
            p(raw('s_waitcnt vmcnt(9)'))
            p(wait_lgkm('H')); p('s_barrier')
            kv_flags(p)
            p(aread_ops(18)); p(wait_lgkm('A18'))
            continue
        if late:
            put(fx, 23, [wait_lgkm('H'), alu('s_barrier')] + aread_ops(nxt))
            put(fx, 35, wait_lgkm(f'A{nxt}'))
            p(place2(mf, fx, V, 0, 23))
            continue
        if idx == 34:
            conv_check(p)
        extra = []
        if idx in (34, 35):
            cp = conv_prefetch_ops()
            c1, c2 = split_vm(cp, 9)
            extra = c1 if idx == 34 else c2
        if extra:
            p(place2(mf, fx, extra, 2, 36))
        else:
            p(place2(mf, fx, V, 0, 36))
        if idx == 9:
            p(wait_vm('NONCE'))
            nonce_check(p, 'M')
    st(p, 7)
    if timing:
        p('s_waitcnt lgkmcnt(0)')
        for idx in range(33, 36):
            so = 82 + 2 * (idx % 6)
            p(raw(f'v_writelane_b32 v88, s{so}, {idx}'))
        p(raw('v_writelane_b32 v88, s82, 36'))
        p('v_accvgpr_write_b32 a255, v88')
    p(f's_mul_i32 s31, s{S_J}, {NB}')
    p(f's_lshl_b32 s34, s{S_M}, 2')
    p(f's_add_u32 s34, s34, s{S_W}')
    p('s_mul_i32 s34, s34, 18432')
    p('s_add_u32 s31, s31, s34')
    p(f's_add_u32 s31, s31, {WS_P}')
    p('s_cmp_lt_u32 s2, 144')
    p('s_cbranch_scc1 K_CONV')
    p.ops.append(Op(None, 'push'))
    p('s_nop 7')
    p(partial_store_ops())
    p.ops.append(Op(None, 'pop'))
    if timing: p(raw('s_memtime s[70:71]'))
    p('s_branch K_NOCONV')
    p.label('K_CONV')
    gen_conv(p, timing)
    p.label('K_NOCONV')
    p('s_waitcnt vmcnt(0) lgkmcnt(0)')
    p('s_barrier')
    p(f's_cmp_lg_u32 s{S_W}, 0')
    p('s_cbranch_scc1 K_NOFL2')
    p(f's_lshl_b32 s34, s{S_M}, 7')
    p(f's_lshl_b32 s35, s{S_J}, 2')
    p('s_add_u32 s34, s34, s35')
    p(f's_add_u32 s34, s34, {WS_FL + FL_P}')
    p(f'v_mov_b32 v38, s{S_NONCE}')
    p('v_mov_b32 v39, 0')
    p('s_mov_b64 exec, 1')
    p(raw('buffer_store_dword v38, v39, s[16:19], s34 offen sc1'))
    p('s_cmp_ge_u32 s2, 144')
    p('s_cbranch_scc1 K_NOFL2Y')
    p('s_lshl_b32 s34, s2, 2')
    p(f's_add_u32 s34, s34, {WS_FL + FL_Y}')
    p(raw('buffer_store_dword v38, v39, s[16:19], s34 offen sc1'))
    p.label('K_NOFL2Y')
    p('s_mov_b64 exec, -1')
    p.label('K_NOFL2')
    if timing:
        p(raw('s_memtime s[72:73]'))
        p(raw('s_memrealtime s[78:79]'))
    gen_final(p, timing)
    if timing:
        p('s_waitcnt vmcnt(0) lgkmcnt(0)')
        p(raw('s_memtime s[76:77]'))
        p(raw('s_memrealtime s[98:99]'))
        p('s_waitcnt lgkmcnt(0)')
        p('v_mov_b32 v4, s96'); p('v_mov_b32 v5, s78'); p('v_mov_b32 v6, s80'); p('v_mov_b32 v7, s98')
        p('v_mov_b32 v8, 0')
        p('s_lshl_b32 s34, s2, 4')
        p(f's_add_u32 s34, s34, {WS_DBG + 4096}')
        p(f's_cmp_lg_u32 s{S_W}, 0')
        p('s_cbranch_scc1 K_END')
        p('s_mov_b64 exec, 1')
        p('buffer_store_dwordx4 v[4:7], v8, s[16:19], s34 offen')
        p('s_mov_b64 exec, -1')
        p('s_mov_b32 s52, 0')
        p('s_cmp_eq_u32 s2, 0')
        p('s_cbranch_scc1 K_STAMP')
        p('s_mov_b32 s52, 512')
        p('s_cmp_eq_u32 s2, 200')
        p('s_cbranch_scc0 K_END')
        p.label('K_STAMP')
        p(f's_add_u32 s52, s52, {WS_DBG}')
        p('v_accvgpr_read_b32 v3, a255')
        p('s_nop 1')
        p('v_subrev_u32 v3, s68, v3')
        p('v_and_b32 v4, 63, v0')
        p('v_lshlrev_b32 v4, 2, v4')
        p('buffer_store_dword v3, v4, s[16:19], s52 offen')
        for n in range(1, 13):
            p(f's_sub_u32 s53, s{68+2*n}, s68')
            p('v_mov_b32 v1, s53')
            p(f'v_mov_b32 v2, {256+4*n}')
            p('buffer_store_dword v1, v2, s[16:19], s52 offen')
    if os.environ.get('SPAN'):
        p('s_waitcnt vmcnt(0) lgkmcnt(0)')
        p(raw('s_memrealtime s[98:99]'))
        p('s_waitcnt lgkmcnt(0)')
        p(f's_sub_u32 s98, s98, s{S_NONCE}')
        srd(p, 44, 50, 256)
        p('v_mov_b32 v4, s98'); p('v_mov_b32 v5, 8')
        p('s_mov_b64 exec, 1')
        p('buffer_atomic_umax v4, v5, s[44:47], 0 offen')
        p('s_mov_b64 exec, -1')
    p.label('K_END')
    p('s_endpgm')
    p.label('K_CODE_END')
    return p


def partial_store_ops():
    ops = []
    k = 0
    for pr in range(2):
        for ct in range(9):
            t = STMP + 12 * (k % 3)
            for hh in range(2):
                b = (ct * 4 + 2 * pr + hh) * 4
                for i in range(4):
                    ops.append(alu(f'v_accvgpr_read_b32 v{t+4*hh+i}, a{b+i}'))
            q = t + 8
            ops.append(alu(f'v_cvt_pk_bf16_f32 v{q}, v{t}, v{t+1}'))
            ops.append(alu(f'v_cvt_pk_bf16_f32 v{q+1}, v{t+2}, v{t+3}'))
            ops.append(alu(f'v_cvt_pk_bf16_f32 v{q+2}, v{t+4}, v{t+5}'))
            ops.append(alu(f'v_cvt_pk_bf16_f32 v{q+3}, v{t+6}, v{t+7}'))
            if k % 4 == 0:
                ops.append(alu(f's_add_u32 s35, s31, {k*1024}'))
            off = f' offset:{1024*(k & 3)}' if k & 3 else ''
            ops.append(vm(f'buffer_store_dwordx4 v[{q}:{q+3}], v{VL16}, s[16:19], s35 offen{off} {PST}', 'P'))
            k += 1
    return ops


def conv_flag_ops():
    ops = []
    ops.append(alu('s_mul_i32 s42, s2, 3641'))
    ops.append(alu('s_lshr_b32 s42, s42, 16'))
    ops.append(alu('s_lshl_b32 s42, s42, 7'))
    ops.append(alu(f's_add_u32 s42, s42, {WS_FL + FL_UR}'))
    ops.append(alu('s_lshl_b32 s40, s2, 2'))
    ops.append(alu(f's_add_u32 s40, s40, s{S_W}'))
    ops.append(alu('s_min_u32 s40, s40, 575'))
    ops.append(alu('s_lshl_b32 s41, s40, 12'))
    ops.append(alu('v_and_b32 v86, 31, v2'))
    ops.append(alu('v_lshlrev_b32 v86, 2, v86'))
    ops.append(vm('buffer_load_dword v87, v86, s[16:19], s42 offen sc1', 'URF'))
    return ops


def conv_check(p):
    p(wait_vm('URF'))
    p('s_cmp_ge_u32 s2, 144')
    p('s_cbranch_scc1 K_UR_OK')
    p(f'v_cmp_ne_u32 vcc, s{S_NONCE}, v87')
    p('s_nop 3')
    p('s_cmp_eq_u64 vcc, 0')
    p('s_cbranch_scc1 K_UR_OK')
    p.ops.append(Op(None, 'push'))
    poll(p, 87, 86, 's42', 'UR')
    p.ops.append(Op(None, 'pop'))
    p.label('K_UR_OK')


def conv_prefetch_ops():
    ops = []
    ops.append(alu(f's_add_u32 s42, s41, {WS_UR}'))
    for q in range(4):
        off = f' offset:{1024*q}' if q else ''
        ops.append(vm(f'buffer_load_dwordx4 v[{PU+4*q}:{PU+4*q+3}], v{VL16}, s[16:19], s42 offen{off} sc1', 'CU'))
    ops.append(alu(f'v_add_u32 v38, s41, v{VL16}'))
    ops.append(alu('v_subrev_u32 v39, 32, v38'))
    ops.append(alu('v_max_i32 v39, 0, v39'))
    ops.append(alu('v_add_u32 v38, 992, v38'))
    for d, base in ((0, P0), (4, P1), (8, P2)):
        ops.append(vm(f'buffer_load_dwordx4 v[{base}:{base+3}], v39, s[20:23], 0 offen offset:{d}', 'CP'))
        for q in range(1, 5):
            ops.append(vm(f'buffer_load_dwordx4 v[{base+4*q}:{base+4*q+3}], v38, s[20:23], 0 offen offset:{1024*(q-1)+d}', 'CP'))
    return ops


CA, CB = 144, 188
VQA, VQB = 76, 77


def gen_conv(p, timing):
    p('s_and_b32 s43, s40, 0xfffe')
    p('s_lshl_b32 s43, s43, 1')
    p('s_load_dword s44, s[38:39], s43')
    p('s_barrier')
    p(f's_mul_i32 s45, s{S_W}, {CONV_STRIDE}')
    p(wait_vm('CP'))
    p(f'v_readlane_b32 s46, v{P0}, 2')
    p(f'v_readlane_b32 s47, v{P0+1}, 2')
    p('s_mov_b64 exec, 3')
    for base in (P0, P1, P2):
        for i in range(4):
            p(f'v_mov_b32 v{base+i}, 0')
    p('s_mov_b64 exec, -1')
    p(f'v_writelane_b32 v{P1+3}, s46, 1')
    p(f'v_writelane_b32 v{P2+2}, s46, 1')
    p(f'v_writelane_b32 v{P2+3}, s47, 1')
    p(f'v_add_u32 v38, s45, v{VL16}')
    T = 40
    for q in range(5):
        p(f'ds_write_b128 v38, v[{P0+4*q}:{P0+4*q+3}] offset:{1024*q}')
        t = T + 8 * (q % 2)
        for i in range(4):
            p(f'v_alignbit_b32 v{t+i}, v{P1+4*q+i}, v{P0+4*q+i}, 16')
        p(f'ds_write_b128 v38, v[{P1+4*q}:{P1+4*q+3}] offset:{2*CONV_COPY + 1024*q}')
        for i in range(4):
            p(f'v_alignbit_b32 v{t+4+i}, v{P2+4*q+i}, v{P1+4*q+i}, 16')
        p(f'ds_write_b128 v38, v[{t}:{t+3}] offset:{CONV_COPY + 1024*q}')
        p(f'ds_write_b128 v38, v[{t+4}:{t+7}] offset:{3*CONV_COPY + 1024*q}')
    for i in range(4):
        p(f'v_mov_b32 v{60+i}, 0')
    p(f'ds_write_b128 v38, v[60:63] offset:{CONV_UR + 4096}')
    p(f'v_add_u32 v39, 1, v{VN}')
    p(f'v_and_b32 v{VQA}, 3, v39')
    p(f'v_mul_u32_u24 v{VQA}, {CONV_COPY}, v{VQA}')
    p('v_and_b32 v57, 0x1c, v39')
    p(f'v_lshl_add_u32 v{VQA}, v57, 1, v{VQA}')
    p(f'v_lshl_add_u32 v{VQA}, v{VG}, 4, v{VQA}')
    p(f'v_add_u32 v{VQA}, s45, v{VQA}')
    p(f'v_lshlrev_b32 v{VQB}, 5, v{VN}')
    p(f'v_lshlrev_b32 v58, 4, v{VG}')
    p(f'v_sub_u32 v{VQB}, v58, v{VQB}')
    p(f's_add_u32 s46, s45, {CONV_UR + 4064 - 3584}')
    p(f'v_add_u32 v{VQB}, s46, v{VQB}')
    p(wait_vm('CU'))
    for q in range(4):
        p(f'ds_write_b128 v38, v[{PU+4*q}:{PU+4*q+3}] offset:{CONV_UR + 1024*q}')
    p('s_waitcnt lgkmcnt(0)')
    if timing: p(raw('s_memtime s[70:71]'))

    def reads(r):
        st_ = r & 1
        ops = []
        for k in range(8):
            a = CA + 32 * st_ + 4 * k
            b = CB + 32 * st_ + 4 * k
            ops.append(lds(f'ds_read_b64 a[{a}:{a+1}], v{VQA} offset:{512*k + 64*r}', f'C{r}'))
            ops.append(lds(f'ds_read_b64 a[{a+2}:{a+3}], v{VQA} offset:{512*k + 64*r + 8}', f'C{r}'))
            ops.append(lds(f'ds_read_b128 v[{b}:{b+3}], v{VQB} offset:{512*(7-k) + 64*r}', f'C{r}'))
        return ops

    pst = partial_store_ops()
    per = (len(pst) + 5) // 6
    p(reads(0))
    for r in range(8):
        st_ = r & 1
        mf = []
        for nt in range(8):
            for ap in range(nt + 1):
                a = CA + 32 * st_ + 4 * ap
                b = CB + 32 * st_ + 4 * (nt - ap)
                d = CACC + 4 * nt
                c = '0' if (r == 0 and ap == 0) else f'v[{d}:{d+3}]'
                mf.append((nt, ap, mfma(f'v_mfma_f32_16x16x32_bf16 v[{d}:{d+3}], a[{a}:{a+3}], v[{b}:{b+3}], {c}')))
        mf.sort(key=lambda x: (x[1], x[0]))
        mf = [x[2] for x in mf]
        p(wait_lgkm(f'C{r}'))
        fx = {}
        if r < 7:
            for i, o in enumerate(reads(r + 1)):
                fx.setdefault(i, []).append(o)
        fl = pst[r * per:(r + 1) * per]
        if timing and r in (1, 3, 5): p(raw(f's_memtime s[{84 + (r-1)}:{85 + (r-1)}]'))
        p(place2(mf, fx, fl, 0, 36))
    if timing: p(raw('s_memtime s[90:91]'))
    p('s_waitcnt lgkmcnt(0)')
    p('s_and_b32 s43, s40, 1')
    p('s_lshl_b32 s43, s43, 4')
    p('s_lshr_b32 s44, s44, s43')
    p('s_lshl_b32 s44, s44, 16')
    p(f'v_lshlrev_b32 v58, 5, v{VN}')
    p(f'v_lshl_add_u32 v58, v{VG}, 3, v58')
    p(f's_add_u32 s46, s45, {CONV_UR + 4088 - 512*7}')
    p('v_sub_u32 v59, s46, v58')
    for nt in range(8):
        p(lds(f'ds_read_b64 v[{112+2*nt}:{113+2*nt}], v59 offset:{512*(7-nt)}', 'U'))
    p(f's_mul_i32 s46, s{S_W}, 4160')
    p(f's_add_u32 s46, s46, {CONV_YT}')
    p('v_add_u32 v59, s46, v58')
    p('s_nop 7')
    p(wait_lgkm('U'))
    for nt in range(8):
        d = CACC + 4 * nt
        u0, u1 = 112 + 2 * nt, 113 + 2 * nt
        t = [64, 65, 66, 67]
        p(f'v_and_b32 v{t[0]}, 0xffff0000, v{u1}')
        p(f'v_lshlrev_b32 v{t[1]}, 16, v{u1}')
        p(f'v_and_b32 v{t[2]}, 0xffff0000, v{u0}')
        p(f'v_lshlrev_b32 v{t[3]}, 16, v{u0}')
        for i in range(4): p(f'v_fma_f32 v{d+i}, v{t[i]}, s44, v{d+i}')
        o = 68 + 2 * (nt % 2)
        p(f'v_cvt_pk_bf16_f32 v{o}, v{d}, v{d+1}')
        p(f'v_cvt_pk_bf16_f32 v{o+1}, v{d+2}, v{d+3}')
        p(f'ds_write_b64 v59, v[{o}:{o+1}] offset:{512*nt}')
    p(f'v_lshrrev_b32 v58, 2, v{VN}')
    p('v_mul_u32_u24 v58, 4160, v58')
    p('v_and_b32 v59, 3, v2')
    p('v_lshl_add_u32 v58, v59, 3, v58')
    p(f'v_lshl_add_u32 v58, v{VG}, 5, v58')
    p(f's_lshl_b32 s46, s{S_W}, 10')
    p(f's_add_u32 s46, s46, {CONV_YT}')
    p('v_add_u32 v58, s46, v58')
    p('v_lshlrev_b32 v59, 3, v2')
    p('s_lshl_b32 s46, s2, 14')
    p(f's_lshl_b32 s47, s{S_W}, 12')
    p('s_add_u32 s46, s46, s47')
    p(f's_add_u32 s46, s46, {WS_Y}')
    p('s_waitcnt lgkmcnt(0)')
    p('s_barrier')
    for k in range(8):
        p(lds(f'ds_read_b64_tr_b16 v[{112+2*k}:{113+2*k}], v58 offset:{128*k}', f'YT{k}'))
    for k in range(8):
        p(wait_lgkm(f'YT{k}'))
        p(f'buffer_store_dwordx2 v[{112+2*k}:{113+2*k}], v59, s[16:19], s46 offen offset:{512*k} sc1')
    if timing: p(raw('s_memtime s[92:93]'))


def gen_final(p, timing):
    srd(p, 52, 4, NB)
    srd(p, 56, 48, NB)
    p(f's_lshr_b32 s60, s{S_J}, 1')
    p(f's_and_b32 s61, s{S_J}, 1')
    p(f's_lshl_b32 s62, s{S_M}, 7')
    p(f's_add_u32 s62, s62, {FL_P}')
    p('v_lshlrev_b32 v40, 2, v2')
    p('v_add_u32 v41, s62, v40')
    p('s_lshl_b32 s63, s60, 7')
    p(f's_add_u32 s63, s63, {FL_Y - 32}')
    p('v_add_u32 v42, s63, v40')
    p('s_lshl_b32 s63, s60, 4')
    p(f's_add_u32 s63, s63, {FL_Y + 512 - 160}')
    p('v_add_u32 v43, s63, v40')
    p('v_cmp_gt_u32 vcc, 8, v2')
    p('s_nop 1')
    p('v_cndmask_b32 v42, v42, v41, vcc')
    p('v_cmp_lt_u32 vcc, 39, v2')
    p('s_nop 1')
    p('v_cndmask_b32 v42, v42, v43, vcc')
    p('v_mov_b32 v43, s62')
    p('v_cmp_lt_u32 vcc, 43, v2')
    p('s_nop 1')
    p('v_cndmask_b32 v42, v42, v43, vcc')
    p(f's_mov_b32 s63, {WS_FL}')
    p(f's_lshl_b32 s34, s{S_M}, 6')
    p('s_lshl_b32 s35, s61, 5')
    p('s_add_u32 s34, s34, s35')
    p(f'v_add_u32 v6, s34, v{VN}')
    p('s_lshl_b32 s35, s61, 8')
    p(f's_add_u32 s35, s35, {LDS_ST}')
    p(f'v_lshl_add_u32 v7, v{VN}, 3, s35')
    p(lds('ds_read_b64 v[60:61], v7', 'ST'))
    p(lds('ds_read_b64 v[62:63], v7 offset:128', 'ST'))
    p(f's_lshl_b32 s34, s{S_M}, 3')
    p(f's_add_u32 s34, s34, s{S_J}')
    p('s_mul_i32 s34, s34, 9216')
    p(f's_add_u32 s34, s34, {WS_P}')
    NR = 3
    XA, YA, PA = 112, 124, 136
    for r in range(NR):
        p(f's_add_u32 s{64+r}, s{S_W}, {4*r}')
        p(f's_min_u32 s{64+r}, s{64+r}, 8')
        p('s_lshl_b32 s35, s60, 7')
        p(f's_lshl_b32 s40, s{64+r}, 4')
        p('s_add_u32 s35, s35, s40')
        p('s_lshl_b32 s40, s60, 4')
        p('s_add_u32 s40, s40, 512')
        p(f's_cmp_lt_u32 s{64+r}, 8')
        p('s_cselect_b32 s35, s35, s40')
        p(f'v_lshl_add_u32 v{8+r}, v{VG}, 2, s35')
        p(f'v_mul_u32_u24 v{12+r}, 1152, v6')
        p(f'v_lshl_add_u32 v{12+r}, v{8+r}, 1, v{12+r}')
        p(f'v_add_u32 v{16+r}, {16*1152}, v{12+r}')
        p(vm(f'buffer_load_dwordx2 v[{XA+4*r}:{XA+4*r+1}], v{12+r}, s[52:55], 0 offen', f'FX{r}'))
        p(vm(f'buffer_load_dwordx2 v[{XA+4*r+2}:{XA+4*r+3}], v{16+r}, s[52:55], 0 offen', f'FX{r}'))
        p(f'v_lshrrev_b32 v{20+r}, 2, v{8+r}')
        p(f'v_lshlrev_b32 v{20+r}, 14, v{20+r}')
        p(f'v_lshl_add_u32 v{20+r}, v6, 3, v{20+r}')
    p(f's_cmp_lg_u32 s{S_W}, 0')
    p('s_cbranch_scc1 K_FIN_GO')
    p.ops.append(Op(None, 'push'))
    poll(p, 44, 42, 's63', 'FIN')
    p.ops.append(Op(None, 'pop'))
    p.label('K_FIN_GO')
    p('s_barrier')
    if timing:
        p(raw('s_memtime s[74:75]'))
        p(raw('s_memrealtime s[80:81]'))
    p(f's_mov_b32 s41, {WS_Y}')
    for r in range(NR):
        p(f's_lshl_b32 s35, s{64+r}, 10')
        p('s_add_u32 s35, s35, s34')
        for j in range(8):
            b = PA + 32 * r + 4 * j
            p(vm(f'buffer_load_dwordx4 v[{b}:{b+3}], v{VL16}, s[16:19], s35 offen {PLD}', f'FP{r}_{j}'))
            if j != 7:
                p(f's_add_u32 s35, s35, {NB}')
        p(vm(f'buffer_load_dwordx2 v[{YA+4*r}:{YA+4*r+1}], v{20+r}, s[16:19], s41 offen sc1', f'FY{r}'))
        p(vm(f'buffer_load_dwordx2 v[{YA+4*r+2}:{YA+4*r+3}], v{20+r}, s[16:19], s41 offen offset:128 sc1', f'FY{r}'))
        if r == 1:
            p(f's_cmp_lg_u32 s{S_W}, 0')
            p('s_cbranch_scc1 K_FIN_L2')
            p.ops.append(Op(None, 'push'))
        if r == 2:
            p.ops.append(Op(None, 'pop'))
            p.label('K_FIN_L2')
    p('s_mov_b32 s40, 0x00003f80')
    p('s_mov_b32 s41, 0x3f800000')
    p(wait_lgkm('ST'))
    O = list(range(64, 72))
    for r in range(NR):
        if r == 2:
            p(f's_cmp_lg_u32 s{S_W}, 0')
            p('s_cbranch_scc1 K_FIN_DONE')
            p(opaque('s_waitcnt vmcnt(0)'))
        b0 = PA + 32 * r
        p(wait_vm(f'FP{r}_0'))
        for k in range(4):
            unpack(p, O[2*k], O[2*k+1], b0 + k)
        for j in range(1, 8):
            p(wait_vm(f'FP{r}_{j}'))
            for k in range(4):
                p(f'v_dot2_f32_bf16 v{O[2*k]}, v{b0+4*j+k}, s40, v{O[2*k]}')
                p(f'v_dot2_f32_bf16 v{O[2*k+1]}, v{b0+4*j+k}, s41, v{O[2*k+1]}')
        p('s_nop 2')
        silu_inplace(p, O, list(range(74, 82)))
        p(wait_vm([f'FY{r}', f'FX{r}']))
        for h in range(2):
            xs = [82, 83, 84, 85]; ys = [86, 87, 88, 89]; xn = [90, 91, 92, 93]
            unpack(p, xs[0], xs[1], XA + 4 * r + 2 * h); unpack(p, xs[2], xs[3], XA + 4 * r + 2 * h + 1)
            unpack(p, ys[0], ys[1], YA + 4 * r + 2 * h); unpack(p, ys[2], ys[3], YA + 4 * r + 2 * h + 1)
            for i in range(4): p(f'v_fma_f32 v{xn[i]}, v{xs[i]}, v{60+2*h}, v{61+2*h}')
            for i in range(4): p(f'v_mul_f32 v{xn[i]}, v{xn[i]}, v{ys[i]}')
            for i in range(4): p(f'v_fma_f32 v{xn[i]}, v{xn[i]}, v{O[4*h+i]}, v{xs[i]}')
            o = 94 + 2 * h
            p(f'v_cvt_pk_bf16_f32 v{o}, v{xn[0]}, v{xn[1]}')
            p(f'v_cvt_pk_bf16_f32 v{o+1}, v{xn[2]}, v{xn[3]}')
            p(raw(f'buffer_store_dwordx2 v[{o}:{o+1}], v{(12 if h == 0 else 16)+r}, s[56:59], 0 offen'))
    p.label('K_FIN_DONE')


def build(timing=False):
    _silu_rot[0] = 0
    k = gen(timing)
    txt = HEADER
    txt += '; @launch grid=(256,1,1) block=(256,1,1) lds=163840\n'
    txt += '.amdgcn_target "amdgcn-amd-amdhsa--gfx950"\n'
    txt += kernel_head(KNAME) + k.resolve()
    txt += kernel_descriptor(KNAME, 512, 102, 256)
    return txt


if __name__ == '__main__':
    timing = '--timing' in sys.argv
    out = [a for a in sys.argv[1:] if not a.startswith('--')]
    open(out[0] if out else 'cdna_kernels/' + NAME + '.s', 'w').write(build(timing))
```

```python
import os
import sys
sys.path.insert(0, 'exp')
from asmgen import *

NAME = 'recurrent_scan__ssm_conv_h3__dense_activation_silu__prompt'
KNAME = NAME + '_kernel'
S, D, F = 2048, 576, 4608
NB = S * D * 2
WS_UR = 0
WS_Y = NB
WS_FL = 2 * NB
FL_UR, FL_P, FL_Y = 0, 1024, 1024 + 4096
WS_P = 2 * NB + 65536
WS_END = WS_P + 8 * NB
WS_DBG = WS_END
LOG2E_NEG = 0xbfb8aa3b
HEADER = open('cdna_kernels/' + NAME + '.s.ref').read().split('; Override launch')[0]

ORDER2 = [0, 4, 8, 12, 1, 5, 9, 13, 2, 6, 10, 14, 3, 7, 11, 15, 16, 17]
RING = 73728
SPARE = 147456
LDS_T = SPARE
LDS_ST = SPARE + 12288
LDS_FG = SPARE + 13312
VFW, VFR = 110, 111
ACC1 = 112
BSET = 144
ASET = 216
VW1, VW2, VT = 4, 13, 22
VA0, VA1 = 31, 32
VH0, VH1 = 33, 34
VL16 = 35
VG, VN = 36, 37
VX = 80
STMP = 40
S_W, S_J, S_M = 24, 25, 26
S_SOFF, S_RING, S_W1B, S_W2B, S_SOFF2 = 27, 28, 29, 30, 31
S_NONCE = 94
S_PF2 = 92
S_MI = 23 + 70
PST = os.environ.get('PST', 'sc1')
PLD = os.environ.get('PLD', 'sc1')
KVPF = os.environ.get('KVPF', '1') == '1'
OST = os.environ.get('OST', '')
PFMODE = os.environ.get('PFMODE', 'A')
NSH = int(os.environ.get('NSH', '1'))
KR, VR, SK = 0, 28, 44
VTW = 84
CONV_STRIDE = 25856
CONV_COPY = 5184
CONV_UR = 4 * CONV_COPY
CONV_YT = 4 * CONV_STRIDE
P0, P1, P2, PU = 112, 132, 152, 172
CACC = 80
SPIN_MAX = 1 << 20

DBG_NOSILU = 'NOSILU' in os.environ


def f32bits(x):
    import struct
    return struct.unpack('<I', struct.pack('<f', x))[0]


def srd(p, s, lo, size):
    p(f's_mov_b32 s{s}, s{lo}')
    p(f's_mov_b32 s{s+1}, s{lo+1}')
    p(f's_mov_b32 s{s+2}, {size}')
    p(f's_mov_b32 s{s+3}, 0x00020000')


def round_bf16(p, dst, src):
    p(f'v_cvt_pk_bf16_f32 v{dst}, v{src}, v{src}')
    p(f'v_lshlrev_b32 v{dst}, 16, v{dst}')


def unpack(p, lo, hi, src):
    if lo == src:
        p(f'v_and_b32 v{hi}, 0xffff0000, v{src}')
        p(f'v_lshlrev_b32 v{lo}, 16, v{src}')
    else:
        p(f'v_lshlrev_b32 v{lo}, 16, v{src}')
        p(f'v_and_b32 v{hi}, 0xffff0000, v{src}')


def round_pairs(p, regs, tmp):
    for i in range(0, len(regs), 2):
        p(f'v_cvt_pk_bf16_f32 v{tmp}, v{regs[i]}, v{regs[i+1]}')
        unpack(p, regs[i], regs[i + 1], tmp)


def silu_inplace(p, regs, tmp):
    n = len(regs)
    for i in range(n): p(f'v_mul_f32 v{tmp[i]}, {hex(LOG2E_NEG)}, v{regs[i]}')
    for i in range(n): p(f'v_exp_f32 v{tmp[i]}, v{tmp[i]}')
    p('s_nop 0')
    for i in range(n): p(f'v_add_f32 v{tmp[i]}, 1.0, v{tmp[i]}')
    for i in range(n): p(f'v_rcp_f32 v{tmp[i]}, v{tmp[i]}')
    p('s_nop 0')
    for i in range(n): p(f'v_mul_f32 v{regs[i]}, v{regs[i]}, v{tmp[i]}')


def acc1(ct, rt):
    b = ACC1 + (ct * 4 + rt) * 4
    return f'v[{b}:{b+3}]'


def acc2(ct, rt):
    b = (ct * 4 + rt) * 4
    return f'a[{b}:{b+3}]'


def soff_reg(idx):
    return S_SOFF if idx & 1 == 0 else S_SOFF2


def dma_pieces(idx, nop=False):
    slot = idx & 1
    so = soff_reg(idx)
    if idx < 18:
        vw, srd_ = VW1, 's[8:11]'
        setup = alu(f's_add_u32 s{so}, s{S_W1B}, {idx * 32 * 9216}')
    else:
        vw, srd_ = VW2, 's[12:15]'
        setup = alu(f's_add_u32 s{so}, s{S_W2B}, {ORDER2[idx-18] * 32 * 1152}')

    def m0(off):
        r = [alu(f's_add_u32 m0, s{S_RING}, {slot * 9216 + off}')]
        if nop: r.append(alu('s_nop 0'))
        return r

    def ld(u, tag):
        off = f' offset:{1024 * (u & 3)}' if (u & 3) and u < 8 else ''
        return [vm(f'buffer_load_dwordx4 v{vw+u}, {srd_}, s{so} offen{off} lds', tag)]
    te, to = f'W{idx}e', f'W{idx}o'
    even = [setup] + m0(8192) + ld(8, te) + m0(0) + ld(0, te) + ld(2, te) + m0(4096) + ld(4, te) + ld(6, te)
    odd = m0(0) + ld(1, to) + ld(3, to) + m0(4096) + ld(5, to) + ld(7, to)
    return even, odd


def dma_ops(idx):
    e, o = dma_pieces(idx, nop=True)
    return e + o


def split_vm(ops, n):
    c = 0
    for i, o in enumerate(ops):
        if o.kind == 'vm':
            c += 1
            if c == n:
                return ops[:i+1], ops[i+1:]
    raise ValueError


def bread_ops(idx):
    slot = idx & 1
    o = slot * 9216
    first, second = [], []
    b = BSET + 36 * slot + 32
    first.append(lds(f'ds_read_b64_tr_b16 a[{b}:{b+1}], v{VT+8} offset:{o}', f'B{idx}a'))
    first.append(lds(f'ds_read_b64_tr_b16 a[{b+2}:{b+3}], v{VT+8} offset:{o+256}', f'B{idx}a'))
    for t in range(8):
        b = BSET + 36 * slot + 4 * t
        first.append(lds(f'ds_read_b64_tr_b16 a[{b}:{b+1}], v{VT+t} offset:{o}', f'B{idx}a'))
        second.append(lds(f'ds_read_b64_tr_b16 a[{b+2}:{b+3}], v{VT+t} offset:{o+1024}', f'B{idx}b'))
    return first, second


def aread_ops(idx):
    s = idx if idx < 18 else ORDER2[idx - 18]
    st = idx & 1
    ops = []
    for rt in range(4):
        b = ASET + 16 * st + 4 * rt
        if idx < 18:
            va = VX + (s & 1) + (2 if rt >= 2 else 0)
        else:
            va = VA0 if rt < 2 else VA1
        ops.append(lds(f'ds_read_b128 a[{b}:{b+3}], v{va} offset:{((rt & 1) * 18 + s) * 1024}', f'A{idx}'))
    return ops


def mfma_ops(idx):
    st = idx & 1
    ops = []
    for ct in range(9):
        for rt in range(4):
            d = acc1(ct, rt) if idx < 18 else acc2(ct, rt)
            wb = BSET + 36 * st + 4 * ct
            xb = ASET + 16 * st + 4 * rt
            c = '0' if idx in (0, 18) else d
            ops.append(mfma(f'v_mfma_f32_16x16x32_bf16 {d}, a[{wb}:{wb+3}], a[{xb}:{xb+3}], {c}'))
    return ops


_silu_rot = [0]


def silu_tile_ops(ct, rt):
    b = ACC1 + (ct * 4 + rt) * 4
    t = STMP + 8 * (_silu_rot[0] % 4)
    _silu_rot[0] += 1
    ops = []
    for i in range(4): ops.append(trans(f'v_exp_f32 v{t+i}, v{b+i}'))
    for i in range(4): ops.append(alu(f'v_add_f32 v{t+i}, 1.0, v{t+i}'))
    for i in range(4): ops.append(trans(f'v_rcp_f32 v{t+i}, v{t+i}'))
    for i in range(4): ops.append(alu(f'v_mul_f32 v{t+i}, v{b+i}, v{t+i}'))
    ops.append(alu(f'v_cvt_pk_bf16_f32 v{t+4}, v{t}, v{t+1}'))
    ops.append(alu(f'v_cvt_pk_bf16_f32 v{t+5}, v{t+2}, v{t+3}'))
    if ct < 8:
        ops.append(lds(f'ds_write_b64 v{VH0}, v[{t+4}:{t+5}] offset:{rt*18432 + (ct >> 1)*1024 + (ct & 1)*512}', 'H'))
    else:
        ops.append(lds(f'ds_write_b64 v{VH1}, v[{t+4}:{t+5}] offset:{rt*18432}', 'H'))
    return ops


def kv_pair_ops(e):
    ops = []
    R = list(range(40, 55))
    for i in range(7): ops.append(alu(f'v_accvgpr_read_b32 v{R[i]}, a{KR + 4*i + e//2}'))
    for i in range(4): ops.append(alu(f'v_accvgpr_read_b32 v{R[7+i]}, a{VR + 4*i + e//2}'))
    for i in range(4): ops.append(alu(f'v_accvgpr_read_b32 v{R[11+i]}, a{SK + 2*e + i}'))
    for hi in range(2):
        def up(dst, src):
            ops.append(alu(f'v_and_b32 v{dst}, 0xffff0000, v{src}' if hi else f'v_lshlrev_b32 v{dst}, 16, v{src}'))
        kf = list(range(55, 62)); vf = list(range(62, 66)); sk = [66, 67, 68, 69]; ks = [70, 71, 72, 73]
        for i in range(7): up(kf[i], R[i])
        for i in range(4): up(vf[i], R[7 + i])
        for i in range(2):
            src = R[11 + 2 * hi + i]
            ops.append(alu(f'v_lshlrev_b32 v{sk[2*i]}, 16, v{src}'))
            ops.append(alu(f'v_and_b32 v{sk[2*i+1]}, 0xffff0000, v{src}'))
        for t in range(4): ops.append(alu(f'v_mul_f32 v{ks[t]}, v{kf[t]}, v{sk[3]}'))
        for jx in (2, 1, 0):
            for t in range(4): ops.append(alu(f'v_fmac_f32 v{ks[t]}, v{kf[3+t-jx]}, v{sk[jx]}'))
        for i in (0, 2):
            ops.append(alu(f'v_cvt_pk_bf16_f32 v74, v{ks[i]}, v{ks[i+1]}'))
            ops.append(alu(f'v_lshlrev_b32 v{ks[i]}, 16, v74'))
            ops.append(alu(f'v_and_b32 v{ks[i+1]}, 0xffff0000, v74'))
        for t in range(4): ops.append(alu(f'v_mul_f32 v{ks[t]}, v{ks[t]}, v{vf[t]}'))
        o = 76 + 2 * hi
        ops.append(alu(f'v_cvt_pk_bf16_f32 v{o}, v{ks[3]}, v{ks[2]}'))
        ops.append(alu(f'v_cvt_pk_bf16_f32 v{o+1}, v{ks[1]}, v{ks[0]}'))
        ops.append(lds(f'ds_write_b64 v{VTW}, v[{o}:{o+1}] offset:{144*(e+hi)}', 'T'))
    return ops


def ur_addr_ops():
    ops = []
    ops.append(alu(f's_mul_i32 s95, s{S_J}, {72*4096}'))
    ops.append(alu(f's_lshl_b32 s35, s{S_M}, 7'))
    ops.append(alu('s_sub_u32 s95, s95, s35'))
    ops.append(alu(f's_add_u32 s95, s95, {WS_UR + 1984*2}'))
    for r in range(3):
        ops.append(alu(f'v_add_u32 v60, {256*r}, v0'))
        if r == 2: ops.append(alu('v_min_u32 v60, 575, v60'))
        ops.append(alu('v_lshrrev_b32 v61, 3, v60'))
        ops.append(alu('v_and_b32 v62, 7, v60'))
        ops.append(alu(f'v_mul_u32_u24 v{98+r}, 144, v61'))
        ops.append(alu(f'v_lshl_add_u32 v{98+r}, v62, 4, v{98+r}'))
        ops.append(alu(f'v_add_u32 v{98+r}, {LDS_T}, v{98+r}'))
        ops.append(alu(f'v_lshlrev_b32 v{101+r}, 12, v61'))
        ops.append(alu(f'v_lshl_add_u32 v{101+r}, v62, 4, v{101+r}'))
    return ops


def silu_group_tiles(g):
    cts = [2 * g, 2 * g + 1] if g < 4 else [8]
    return [(ct, rt) for ct in cts for rt in range(4)]


RT = bool(os.environ.get('RT'))


def rts(p, n):
    if RT: p(raw(f's_memrealtime s[{68+2*n}:{69+2*n}]'))


class Stamps:
    def __init__(self, on): self.on = on
    def __call__(self, p, n):
        if self.on: p(raw(f's_memtime s[{68+2*n}:{69+2*n}]'))


_lab = [0]


def poll(p, vdst, vaddr, soff, name):
    _lab[0] += 1
    L = f'POLL{_lab[0]}_{name}'
    p(f's_mov_b32 s47, {SPIN_MAX}')
    p.label(L)
    p(raw(f'buffer_load_dword v{vdst}, v{vaddr}, s[16:19], {soff} offen sc1'))
    p('s_waitcnt vmcnt(0)')
    p(f'v_cmp_ne_u32 vcc, s{S_NONCE}, v{vdst}')
    p('s_nop 3')
    p('s_cmp_eq_u64 vcc, 0')
    p(f's_cbranch_scc1 {L}_X')
    p('s_sub_u32 s47, s47, 1')
    p(f's_cbranch_scc1 {L}_X')
    p('s_sleep 1')
    p(f's_branch {L}')
    p.label(f'{L}_X')


def nonce_check(p, sfx):
    p('s_nop 0')
    p(f'v_readfirstlane_b32 s{S_NONCE}, v89')
    p(f's_cmp_lg_u32 s{S_NONCE}, 0')
    p(f's_cbranch_scc1 K_HAVE_NONCE{sfx}')
    p(f's_mov_b32 s34, {SPIN_MAX}')
    p.label(f'K_NONCE_SPIN{sfx}')
    p('v_mov_b32 v89, 0')
    p(opaque('buffer_load_dword v89, v89, s[44:47], 0 offen sc1'))
    p(opaque('s_waitcnt vmcnt(0)'))
    p(f'v_readfirstlane_b32 s{S_NONCE}, v89')
    p('s_sub_u32 s34, s34, 1')
    p(f's_cbranch_scc1 K_HAVE_NONCE{sfx}')
    p(f's_cmp_lg_u32 s{S_NONCE}, 0')
    p(f's_cbranch_scc1 K_HAVE_NONCE{sfx}')
    p('s_sleep 1')
    p(f's_branch K_NONCE_SPIN{sfx}')
    p.label(f'K_HAVE_NONCE{sfx}')


def publish_ur(p):
    p(f's_cmp_lg_u32 s{S_W}, 0')
    p('s_cbranch_scc1 K_NOFL1')
    p(f's_lshl_b32 s34, s{S_J}, 7')
    p(f's_lshl_b32 s35, s{S_M}, 2')
    p('s_add_u32 s34, s34, s35')
    p(f's_add_u32 s34, s34, {WS_FL + FL_UR}')
    p(f'v_mov_b32 v38, s{S_NONCE}')
    p('v_mov_b32 v39, 0')
    p('s_mov_b64 exec, 1')
    p(raw('buffer_store_dword v38, v39, s[16:19], s34 offen sc1'))
    p('s_mov_b64 exec, -1')
    p.label('K_NOFL1')


KA, VA_, SA = 0, 44, 76


def kv_addr_ops():
    T = []
    A = lambda t: T.append(alu(t))
    A('s_sub_u32 s100, s2, 144')
    A('v_mul_u32_u24 v40, 911, v0')
    A('v_lshrrev_b32 v40, 16, v40')
    A('v_mul_u32_u24 v41, 72, v40')
    A('v_sub_u32 v41, v0, v41')
    A('v_mul_u32_u24 v42, 112, v40')
    A('v_add_u32 v42, s100, v42')
    A('v_cmp_lt_u32 vcc, 255, v42')
    A('v_mov_b32 v43, s100')
    A('v_mul_u32_u24 v44, 7282, v41')
    A('v_cndmask_b32 v42, v42, v43, vcc')
    A('v_cndmask_b32 v40, v40, 0, vcc')
    A('v_lshrrev_b32 v43, 16, v44')
    A('v_mul_u32_u24 v44, 9, v43')
    A('v_sub_u32 v44, v41, v44')
    A('v_lshrrev_b32 v45, 3, v42')
    A('v_lshlrev_b32 v45, 6, v45')
    A('v_lshl_add_u32 v45, v43, 3, v45')
    A('v_and_b32 v46, 7, v42')
    A('v_mul_u32_u24 v46, 144, v46')
    A('v_lshl_add_u32 v46, v44, 4, v46')
    A('v_mul_u32_u24 v47, 1152, v45')
    A('v_add_u32 v47, v47, v46')
    A('v_add_u32 v48, 4608, v47')
    A('v_bfrev_b32 v49, 1')
    for i in range(3):
        A(f'v_add_u32 v{50+i}, {(1152*(i-3)) & 0xffffffff}, v47')
        A(f'v_cmp_gt_u32 vcc, {3-i}, v45')
        A(f'v_mov_b32 v53, v53')
        A(f'v_mov_b32 v53, v53')
        A(f'v_cndmask_b32 v{50+i}, v{50+i}, v49, vcc')
    A('v_lshlrev_b32 v46, 2, v46')
    A('v_mul_u32_u24 v99, 10368, v40')
    A('v_mul_u32_u24 v53, 1152, v44')
    A('v_add_u32 v99, v99, v53')
    A('v_lshlrev_b32 v53, 4, v43')
    A('v_sub_u32 v99, v99, v53')
    A('v_add_u32 v99, 112, v99')
    for r in range(3):
        A(f'v_add_u32 v53, {256*r}, v0')
        if r == 2: A('v_min_u32 v53, 575, v53')
        A('v_lshrrev_b32 v54, 3, v53')
        A('v_and_b32 v53, 7, v53')
        A(f'v_mul_u32_u24 v{100+r}, 144, v54')
        A(f'v_lshl_add_u32 v{100+r}, v53, 4, v{100+r}')
        A(f'v_lshlrev_b32 v{103+r}, 12, v54')
        A(f'v_lshl_add_u32 v{103+r}, v53, 4, v{103+r}')
    return T


def kv_srd_text():
    L = []
    for s_, lo, size in ((56, 6, NB), (60, 40, NB), (64, 42, D * 8)):
        L += [f's_mov_b32 s{s_}, s{lo}', f's_mov_b32 s{s_+1}, s{lo+1}', f's_mov_b32 s{s_+2}, {size}', f's_mov_b32 s{s_+3}, 0x00020000']
    return L


def kv_load_list():
    L = []
    for i in range(3):
        L.append(f'buffer_load_dwordx4 a[{KA+4*i}:{KA+4*i+3}], v{50+i}, s[56:59], 0 offen')
    for i in range(8):
        o = f' offset:{1152*(i&3)}' if i & 3 else ''
        L.append(f'buffer_load_dwordx4 a[{KA+12+4*i}:{KA+12+4*i+3}], v{47 + (i>>2)}, s[56:59], 0 offen{o}')
    for i in range(8):
        o = f' offset:{1152*(i&3)}' if i & 3 else ''
        L.append(f'buffer_load_dwordx4 a[{VA_+4*i}:{VA_+4*i+3}], v{47 + (i>>2)}, s[60:63], 0 offen{o} nt')
    for i in range(4):
        o = f' offset:{16*i}' if i else ''
        L.append(f'buffer_load_dwordx4 a[{SA+4*i}:{SA+4*i+3}], v46, s[64:67], 0 offen{o}')
    return L


def kv_load_block(n):
    L = kv_load_list()[3*n:3*n+3]
    t = ['s_cmp_lt_u32 s2, 144', f's_cbranch_scc1 KVL{n}'] + L
    return Op('\n  '.join(t) + f'\nKVL{n}:', 'opaque')


def gen_kvprep(p):
    p(opaque('s_waitcnt vmcnt(27)'))
    R = list(range(55, 78))
    for e in range(0, 8, 2):
        for i in range(11): p(f'v_accvgpr_read_b32 v{R[i]}, a{KA + 4*i + e//2}')
        for i in range(8): p(f'v_accvgpr_read_b32 v{R[11+i]}, a{VA_ + 4*i + e//2}')
        for i in range(4): p(f'v_accvgpr_read_b32 v{R[19+i]}, a{SA + 2*e + i}')
        for hi in range(2):
            sk = [40, 41, 42, 43]; ks = list(range(184, 192)); o = 196 if hi else 192
            for i in range(2):
                src = R[19 + 2 * hi + i]
                if hi:
                    p(f'v_lshlrev_b32 v{sk[2*i]}, 16, v{src}')
                    p(f'v_and_b32 v{sk[2*i+1]}, 0xffff0000, v{src}')
                else:
                    p(f'v_and_b32 v{sk[2*i]}, 0xffff, v{src}')
                    p(f'v_lshrrev_b32 v{sk[2*i+1]}, 16, v{src}')
            for t in range(8): p(f'v_dot2_f32_bf16 v{ks[t]}, v{R[t]}, v{sk[3]}, 0')
            for jx in (2, 1, 0):
                for t in range(8): p(f'v_dot2_f32_bf16 v{ks[t]}, v{R[3+t-jx]}, v{sk[jx]}, v{ks[t]}')
            for t in range(8):
                p(f'v_and_b32 v{44+t}, 0xffff0000, v{R[11+t]}' if hi else f'v_lshlrev_b32 v{44+t}, 16, v{R[11+t]}')
            for t in range(8): p(f'v_mul_f32 v{ks[t]}, v{ks[t]}, v{44+t}')
            for q in range(4):
                p(f'v_cvt_pk_bf16_f32 v{o+q}, v{ks[7-2*q]}, v{ks[6-2*q]}')
            p(f'ds_write_b128 v99, v[{o}:{o+3}] offset:{144*(e+hi)}')
    p('s_waitcnt lgkmcnt(0)')
    p('s_barrier')
    for k in range(3):
        if k == 2:
            p('s_cmp_ge_u32 s2, 176')
            p('s_cbranch_scc1 KV_NO3')
        p(f's_add_u32 s101, s100, {112*k}')
        p('s_and_b32 s34, s101, 7')
        p(f's_mul_i32 s34, s34, {72*4096}')
        p('s_lshr_b32 s35, s101, 3')
        p('s_lshl_b32 s35, s35, 7')
        p('s_sub_u32 s34, s34, s35')
        p(f's_add_u32 s34, s34, {WS_UR + 1984*2}')
        for r in range(3):
            b = 55 + 1 + 4 * r + 12 * (k & 1)
            p(lds(f'ds_read_b128 v[{b}:{b+3}], v{100+r} offset:{10368*k}', f'T{k}{r}'))
        for r in range(3):
            b = 55 + 1 + 4 * r + 12 * (k & 1)
            p(wait_lgkm(f'T{k}{r}'))
            p(vm(f'buffer_store_dwordx4 v[{b}:{b+3}], v{103+r}, s[16:19], s34 offen sc1', 'UR'))
    p.label('KV_NO3')


def kv_flags(p):
    p('s_cmp_lt_u32 s2, 144')
    p('s_cbranch_scc1 KV_DONE')
    p(f's_cmp_lg_u32 s{S_W}, 0')
    p('s_cbranch_scc1 KV_DONE')
    p('v_mul_u32_u24 v38, 112, v2')
    p('v_add_u32 v38, s100, v38')
    p('v_cmp_lt_u32 vcc, 255, v38')
    p('v_mov_b32 v39, s100')
    p('s_nop 0')
    p('v_cndmask_b32 v38, v38, v39, vcc')
    p('v_and_b32 v39, 7, v38')
    p('v_lshlrev_b32 v39, 7, v39')
    p('v_lshrrev_b32 v38, 3, v38')
    p('v_lshl_add_u32 v38, v38, 2, v39')
    p(f'v_mov_b32 v39, s{S_NONCE}')
    p(f's_mov_b32 s34, {WS_FL + FL_UR}')
    p('s_mov_b64 exec, 7')
    p(raw('buffer_store_dword v39, v38, s[16:19], s34 offen sc1'))
    p('s_mov_b64 exec, -1')
    p.label('KV_DONE')


def gen(timing=False):
    p = Prog()
    st = Stamps(timing)
    p('s_cmp_ge_u32 s2, 256')
    p('s_cbranch_scc1 K_END')
    st(p, 0)
    if timing: p(raw('s_memrealtime s[96:97]'))
    p('s_load_dwordx4 s[4:7], s[0:1], 0')
    p('s_load_dwordx4 s[40:43], s[0:1], 16')
    p('s_load_dwordx4 s[36:39], s[0:1], 32')
    p('s_load_dwordx4 s[44:47], s[0:1], 56')
    p('s_load_dwordx4 s[48:51], s[0:1], 72')
    p('s_load_dwordx2 s[32:33], s[0:1], 88')
    p('s_getpc_b64 s[84:85]')
    p.label('K_PC')
    p('v_lshrrev_b32 v1, 6, v0')
    p('v_and_b32 v2, 63, v0')
    p('s_lshr_b32 s86, s2, 3')
    p('s_lshl_b32 s86, s86, 2')
    p('v_add_u32 v3, s86, v1')
    p('s_mov_b32 s87, (K_CODE_END - K_PC + 8191) / 8192')
    p('v_cvt_f32_u32 v4, v3')
    p('v_cvt_f32_u32 v5, s87')
    p('v_rcp_f32 v5, v5')
    p('v_add_f32 v4, 0.5, v4')
    p('v_mul_f32 v4, v4, v5')
    p('v_cvt_u32_f32 v4, v4')
    p('v_mul_lo_u32 v4, v4, s87')
    p('v_sub_u32 v3, v3, v4')
    p('v_lshlrev_b32 v3, 13, v3')
    p('v_lshl_add_u32 v3, v2, 7, v3')
    p('v_min_u32 v3, K_CODE_END - K_PC - 4, v3')
    p(raw('global_load_dword v98, v3, s[84:85]'))
    p('s_nop 0')
    p(f'v_readfirstlane_b32 s{S_W}, v1')
    lg = {1: 0, 2: 1, 4: 2}[NSH]
    p('s_and_b32 s34, s2, 7')
    p('s_lshr_b32 s35, s2, 3')
    p(f's_lshr_b32 s{S_MI}, s35, {lg}')
    if NSH == 1:
        p(f's_mov_b32 s{S_J}, s34')
        p(f's_mov_b32 s{S_M}, s35')
    else:
        p(f's_lshr_b32 s{S_J}, s34, {lg}')
        p(f's_lshl_b32 s{S_J}, s{S_J}, {lg}')
        p(f's_and_b32 s35, s35, {NSH-1}')
        p(f's_add_u32 s{S_J}, s{S_J}, s35')
        p(f's_and_b32 s34, s34, {NSH-1}')
        p(f's_mul_i32 s{S_M}, s34, {32//NSH}')
        p(f's_add_u32 s{S_M}, s{S_M}, s{S_MI}')
    p(f'v_lshlrev_b32 v{VL16}, 4, v2')
    p(f'v_lshrrev_b32 v{VG}, 4, v2')
    p(f'v_and_b32 v{VN}, 15, v2')
    p('v_and_b32 v106, 7, v2')
    p('v_lshrrev_b32 v107, 3, v2')
    p(f's_lshl_b32 s34, s{S_W}, 4')
    p('v_add_u32 v109, s34, v107')
    p('v_mul_u32_u24 v109, 1152, v109')
    p('v_lshl_add_u32 v109, v106, 4, v109')
    p(f's_mul_i32 s34, s{S_M}, {64*1152}')

    def voffsets(vw, stride):
        p(f'v_lshlrev_b32 v70, 1, v{VG}')
        p(f'v_xor_b32 v70, v{VN}, v70')
        p('v_xor_b32 v71, 8, v70')
        p(f's_lshl_b32 s95, s{S_W}, 8')
        p('v_lshl_add_u32 v70, v70, 4, s95')
        p('v_lshl_add_u32 v71, v71, 4, s95')
        p(f's_mov_b32 s35, {stride}')
        p(f'v_mul_lo_u32 v72, v{VG}, s35')
        p('v_add_u32 v70, v70, v72')
        p('v_add_u32 v71, v71, v72')
        for u in range(8):
            var = 70 if ((u >> 1) & 1) == 0 else 71
            c = 4 * u * stride - 1024 * (u & 3)
            p(f'v_add_u32 v{vw+u}, {c}, v{var}' if c else f'v_mov_b32 v{vw+u}, v{var}')
        p('v_lshrrev_b32 v73, 1, v2')
        p('v_and_b32 v74, 0x13, v73')
        p('v_bfe_u32 v75, v73, 2, 1')
        p('v_lshl_or_b32 v74, v75, 3, v74')
        p('v_bfe_u32 v75, v73, 3, 1')
        p('v_lshl_or_b32 v74, v75, 2, v74')
        p('v_mul_lo_u32 v74, v74, s35')
        p('v_and_b32 v75, 1, v2')
        p('v_lshl_add_u32 v74, v75, 4, v74')
        p(f's_lshl_b32 s95, s{S_W}, 5')
        p('s_add_u32 s95, s95, 1024')
        p(f'v_add_u32 v{vw+8}, s95, v74')

    voffsets(VW1, 9216)
    p(f's_mul_i32 s{S_W1B}, s{S_J}, 1152')
    p(f's_mul_i32 s{S_W2B}, s{S_J}, {576*1152}')
    p(f's_mul_i32 s{S_RING}, s{S_W}, 18432')
    p(f's_add_u32 s{S_RING}, s{S_RING}, {RING}')
    ROWS = 18 * NSH if PFMODE == 'A' else 32
    NPF = 9 * ROWS
    PFR = (NPF + 255) // 256
    for r in range(PFR):
        p(f'v_add_u32 v58, {256*r}, v0')
        p(f'v_min_u32 v58, {NPF-1}, v58')
        p('v_mul_u32_u24 v55, 7282, v58')
        p('v_lshrrev_b32 v55, 16, v55')
        p('v_mul_u32_u24 v56, 9, v55')
        p('v_sub_u32 v56, v58, v56')
        p(f's_mul_i32 s35, s{S_MI}, {ROWS}')
        p('v_add_u32 v55, s35, v55')
        p('v_mul_u32_u24 v55, 9216, v55')
        p(f'v_lshl_add_u32 v{92+r}, v56, 7, v55')
        p(f'v_lshlrev_b32 v{95+r}, 7, v58')
    p('s_mul_i32 s35, s35, 1152')
    p(f's_add_u32 s{S_PF2}, s35, s{S_W2B}')
    p(kv_addr_ops())
    p('s_waitcnt lgkmcnt(0)')
    st(p, 1)
    srd(p, 8, 44, D * F * 2)
    srd(p, 12, 46, D * F * 2)
    srd(p, 44, 50, 256)
    p('v_mov_b32 v89, 0')
    p(f's_or_b32 s35, s2, s{S_W}')
    p('s_cmp_lg_u32 s35, 0')
    p('s_cbranch_scc1 K_NONONCE')
    p(raw('s_memrealtime s[100:101]'))
    p(opaque('s_waitcnt lgkmcnt(0)'))
    p('s_or_b32 s100, s100, 1')
    p('v_mov_b32 v60, s100')
    p('s_mov_b64 exec, 1')
    p(raw('buffer_store_dword v60, v89, s[44:47], 0 offen sc1'))
    p('s_mov_b64 exec, -1')
    p.label('K_NONONCE')
    p('\n'.join(kv_srd_text()))
    p('s_cmp_lt_u32 s2, 144')
    p('s_cbranch_scc1 K_NOKVL')
    if PFMODE == 'A':
        for r in range(PFR):
            p(raw(f'buffer_load_dword v98, v{92+r}, s[8:11], s{S_W1B} offen'))
        for r in range(PFR):
            p(raw(f'buffer_load_dword v98, v{95+r}, s[12:15], s{S_PF2} offen'))
    for t in kv_load_list(): p(raw(t))
    p.label('K_NOKVL')
    p(dma_ops(0))
    srd(p, 52, 4, NB)
    XR = 112
    for ps in range(2):
        if ps: p('s_add_u32 s34, s34, 9216')
        for jj in range(9):
            o = f' offset:{128*jj}' if jj else ''
            b = XR + 36 * ps + 4 * jj
            p(vm(f'buffer_load_dwordx4 v[{b}:{b+3}], v109, s[52:55], s34 offen{o}', f'X{ps}'))
    srd(p, 16, 32, WS_END + (65536 if timing else 0))
    srd(p, 20, 36, D * S * 2)
    voffsets(VW2, 1152)
    p(f'v_lshrrev_b32 v70, 2, v{VN}')
    p('v_and_b32 v71, 3, v2')
    p(f'v_lshl_add_u32 v72, v{VG}, 3, v70')
    p('v_lshlrev_b32 v72, 8, v72')
    p('v_lshlrev_b32 v73, 3, v71')
    p('v_add_u32 v72, v72, v73')
    p(f'v_add_u32 v72, s{S_RING}, v72')
    p(f'v_and_b32 v74, 1, v{VG}')
    p('v_lshlrev_b32 v74, 3, v74')
    p('v_lshl_add_u32 v74, v70, 1, v74')
    for t in range(8):
        p(f'v_xor_b32 v75, {2*t}, v74')
        p(f'v_lshl_add_u32 v{VT+t}, v75, 4, v72')
    p(f'v_lshrrev_b32 v75, 1, v{VG}')
    p('v_lshlrev_b32 v75, 4, v75')
    p(f'v_and_b32 v76, 1, v{VG}')
    p('v_lshl_add_u32 v75, v76, 2, v75')
    p('v_add_u32 v75, v75, v70')
    p('v_lshl_add_u32 v75, v75, 5, v73')
    p(f's_add_u32 s35, s{S_RING}, 8192')
    p(f'v_add_u32 v{VT+8}, s35, v75')
    p(f'v_mov_b32 v{VA0}, v{VL16}')
    p(f'v_add_u32 v{VA1}, 36864, v{VL16}')
    p(f'v_lshlrev_b32 v70, 1, v{VG}')
    p(f'v_xor_b32 v71, v{VN}, v70')
    p(f'v_lshl_add_u32 v71, v{VG}, 4, v71')
    p(f'v_lshlrev_b32 v{VX}, 4, v71')
    p(f'v_xor_b32 v{VX+1}, 16, v{VX}')
    p(f'v_add_u32 v{VX+2}, 36864, v{VX}')
    p(f'v_add_u32 v{VX+3}, 36864, v{VX+1}')
    p(f'v_lshlrev_b32 v75, 4, v{VN}')
    p(f'v_lshrrev_b32 v76, 1, v{VG}')
    p('v_lshl_add_u32 v75, v76, 8, v75')
    p(f'v_and_b32 v76, 1, v{VG}')
    p('v_lshl_add_u32 v75, v76, 3, v75')
    p(f's_lshl_b32 s35, s{S_W}, 12')
    p(f'v_add_u32 v{VH0}, s35, v75')
    p(f's_lshr_b32 s35, s{S_W}, 1')
    p('s_lshl_b32 s35, s35, 10')
    p(f's_and_b32 s34, s{S_W}, 1')
    p('s_lshl_b32 s34, s34, 9')
    p('s_add_u32 s35, s35, s34')
    p('s_add_u32 s35, s35, 16384')
    p(f'v_add_u32 v{VH1}, s35, v75')
    p('v_and_b32 v60, 3, v106')
    p('v_lshrrev_b32 v61, 2, v106')
    p('v_lshl_add_u32 v90, v60, 1, v61')
    p('v_xor_b32 v90, v107, v90')
    p('v_lshlrev_b32 v90, 4, v90')
    p('v_lshl_add_u32 v90, v60, 8, v90')
    p('v_lshl_add_u32 v90, v61, 10, v90')
    p(f's_mul_i32 s34, s{S_W}, 18432')
    p('v_add_u32 v90, s34, v90')
    p(f's_lshl_b32 s34, s{S_W}, 7')
    p(f's_add_u32 s34, s34, {LDS_ST}')
    p('v_lshl_add_u32 v91, v107, 3, s34')
    p(f'v_add_u32 v{VFR}, {LDS_FG}, v{VL16}')
    p(f's_lshl_b32 s34, s{S_W}, 2')
    p(f'v_add_u32 v{VFW}, s34, v{VFR}')
    p('v_mov_b32 v78, 0')
    p(f'ds_write_b32 v{VFW}, v78')
    st(p, 2)
    p('s_cmp_lt_u32 s2, 144')
    p('s_cbranch_scc1 K_NOKV')
    p.ops.append(Op(None, 'push'))
    gen_kvprep(p)
    p('s_waitcnt lgkmcnt(0)')
    p('s_barrier')
    p.ops.append(Op(None, 'pop'))
    p.label('K_NOKV')
    st(p, 3)
    for ps in range(2):
        b0 = XR + 36 * ps
        if ps == 1:
            p(dma_ops(1))
            if PFMODE == 'B':
                p('s_cmp_ge_u32 s2, 144')
                p('s_cbranch_scc1 K_NOPF')
            mk = vm if PFMODE == 'A' else (lambda t, tag: raw(t))
            for r in range(PFR):
                p(mk(f'buffer_load_dword v98, v{92+r}, s[8:11], s{S_W1B} offen', 'PF'))
            for r in range(PFR):
                p(mk(f'buffer_load_dword v98, v{95+r}, s[12:15], s{S_PF2} offen', 'PF'))
            if PFMODE == 'B':
                p.label('K_NOPF')
            p(vm('buffer_load_dword v89, v89, s[44:47], 0 offen sc1', 'NONCE'))
            st(p, 4)
        p(wait_vm(f'X{ps}'))
        p('s_mov_b32 s35, 0x3f803f80')
        p('v_mov_b32 v64, 0'); p('v_mov_b32 v65, 0'); p('v_mov_b32 v66, 0'); p('v_mov_b32 v67, 0')
        for i in range(36):
            a = 64 + (i & 1)
            p(f'v_dot2_f32_bf16 v{a}, v{b0+i}, s35, v{a}')
            p(f'v_dot2_f32_bf16 v{a+2}, v{b0+i}, v{b0+i}, v{a+2}')
        p('s_nop 2')
        p('v_add_f32 v64, v64, v65')
        p('v_add_f32 v66, v66, v67')
        for ctl in ('quad_perm:[1,0,3,2]', 'quad_perm:[2,3,0,1]', 'row_half_mirror'):
            p('s_nop 1')
            p(f'v_add_f32_dpp v64, v64, v64 {ctl} row_mask:0xf bank_mask:0xf')
            p(f'v_add_f32_dpp v66, v66, v66 {ctl} row_mask:0xf bank_mask:0xf')
        p(f'v_mul_f32 v64, {hex(f32bits(1.0/576))}, v64')
        p(f'v_mul_f32 v66, {hex(f32bits(1.0/576))}, v66')
        p('v_fma_f32 v66, -v64, v64, v66')
        p('v_max_f32 v66, 0, v66')
        round_bf16(p, 66, 66)
        p(f'v_add_f32 v66, {hex(f32bits(1e-5))}, v66')
        round_bf16(p, 66, 66)
        p('v_sqrt_f32 v66, v66')
        p('s_nop 0')
        round_bf16(p, 66, 66)
        p('v_rcp_f32 v68, v66')
        round_bf16(p, 64, 64)
        p('v_mul_f32 v69, v64, v68')
        p('v_sub_f32 v69, 0, v69')
        p(f'v_mul_f32 v74, {hex(LOG2E_NEG)}, v68')
        p(f'v_mul_f32 v75, {hex(LOG2E_NEG)}, v69')
        for jj in range(9):
            for i in range(4):
                r = b0 + 4 * jj + i
                t0 = 70 + 2 * (i & 1)
                p(f'v_lshlrev_b32 v{t0}, 16, v{r}')
                p(f'v_and_b32 v{t0+1}, 0xffff0000, v{r}')
                p(f'v_fma_f32 v{t0}, v{t0}, v74, v75')
                p(f'v_fma_f32 v{t0+1}, v{t0+1}, v74, v75')
                p(f'v_cvt_pk_bf16_f32 v{r}, v{t0}, v{t0+1}')
            p(f'ds_write_b128 v90, v[{b0+4*jj}:{b0+4*jj+3}] offset:{jj*2048 + ps*128}')
        p('v_cmp_eq_u32 vcc, 0, v106')
        p('s_and_saveexec_b64 s[34:35], vcc')
        p(f'ds_write_b64 v91, v[68:69] offset:{64*ps}')
        p('s_mov_b64 exec, s[34:35]')
    st(p, 5)
    rts(p, 0)
    p('s_waitcnt lgkmcnt(0)')
    p('s_barrier')
    p(aread_ops(0))
    p(wait_vm(['W0e', 'W0o']))
    b1, b2 = bread_ops(0)
    p(b1); p(b2)
    p(wait_lgkm(['A0', 'B0a', 'B0b']))
    p(dma_pieces(2, nop=True)[0])
    p(split_vm(dma_pieces(2, nop=True)[1], 2)[0])
    st(p, 6)
    rts(p, 1)

    def put(d, gap, ops):
        d.setdefault(gap, []).extend(ops if isinstance(ops, list) else [ops])

    def place_dma(d, ops, gaps):
        gi = 0
        pend = []
        for o in ops:
            if o.kind == 'vm':
                g = gaps[gi]; gi += 1
                if pend:
                    put(d, g - 1, pend); pend = []
                put(d, g, o)
            else:
                pend.append(o)
        assert not pend

    SPLIT = {1: [3, 3, 2, 0], 2: [3, 3, 2, 0], 3: [3, 3, 2, 0], 4: [2, 2, 0, 0]}
    for idx in range(36):
        nxt = idx + 1
        mf = mfma_ops(idx)
        fx = {}
        if timing:
            sp = 82 + 2 * (idx % 6)
            if idx >= 3:
                so = 82 + 2 * ((idx - 3) % 6)
                p(raw(f'v_writelane_b32 v88, s{so}, {idx-3}'))
            p(raw(f's_memtime s[{sp}:{sp+1}]'))
            if idx == 4:
                for n in range(7): p(raw(f'v_writelane_b32 v88, s{68+2*n}, {40+n}'))
        qpos = (idx - 18) % 4 if idx >= 18 else None
        V = []
        late = False
        if idx == 17:
            late = True
        elif 18 <= idx < 34:
            g = (idx - 18) // 4 + 1
            tiles = silu_group_tiles(g)
            lo_ = sum(SPLIT[g][:qpos])
            for (ct, rt) in tiles[lo_:lo_ + SPLIT[g][qpos]]:
                V += silu_tile_ops(ct, rt)
            late = (qpos == 3)
            if lo_ + SPLIT[g][qpos] == len(tiles) and SPLIT[g][qpos] > 0:
                V += [alu(f'v_mov_b32 v78, {g}'), lds(f'ds_write_b32 v{VFW}, v78', 'HF')]
        if DBG_NOSILU: V = []
        if idx == 21:
            V = [alu('s_lshl_b32 s40, s2, 2'), alu(f's_add_u32 s40, s40, s{S_W}'), alu('s_min_u32 s40, s40, 575'), alu('s_lshl_b32 s41, s40, 12'),
                 alu('v_and_b32 v79, 31, v2'), alu('v_lshlrev_b32 v79, 7, v79'),
                 vm('buffer_load_dword v98, v79, s[20:23], s41 offen', 'PF')] + V
        if idx == 32:
            V = V + conv_flag_ops()
        if idx + 2 < 36:
            place_dma(fx, split_vm(dma_pieces(idx + 2)[1], 2)[1], [1, 5])
        if nxt < 36:
            b1, b2 = bread_ops(nxt)
            put(fx, -1, wait_vm(f'W{nxt}e'))
            for g_, o in zip([0, 0, 2, 2, 3, 3, 4, 4, 6, 6], b1):
                put(fx, g_, o)
            put(fx, 7, wait_vm(f'W{nxt}o'))
            for g_, o in zip([7, 7, 8, 8, 10, 10, 11, 11], b2):
                put(fx, g_, o)
            put(fx, 8, wait_lgkm(f'B{nxt}a'))
            put(fx, 16, wait_lgkm(f'B{nxt}b'))
            if not late:
                for g_, o in zip([12, 14, 15, 16], aread_ops(nxt)):
                    put(fx, g_, o)
                put(fx, 35, wait_lgkm(f'A{nxt}'))
        if idx + 3 < 36:
            ev, od = dma_pieces(idx + 3)
            place_dma(fx, ev, [9, 13, 17, 21, 25])
            place_dma(fx, split_vm(od, 2)[0], [29, 33])
        if idx == 17:
            put(fx, 12, alu('s_barrier'))
            sil = []
            for (ct, rt) in silu_group_tiles(0):
                sil += silu_tile_ops(ct, rt)
            nsil = 23 * 4
            p(place2(mf, fx, sil[:nsil], 13, 36))
            p(sil[nsil:])
            p(raw('s_waitcnt vmcnt(9)'))
            p(wait_lgkm('H')); p('s_barrier')
            kv_flags(p)
            p(aread_ops(18)); p(wait_lgkm('A18'))
            continue
        if late:
            g = (idx - 18) // 4 + 1
            put(fx, 18, lds(f'ds_read_b128 v[72:75], v{VFR}', f'FR{idx}'))
            chk = ['v_min3_u32 v72, v72, v73, v74', 'v_min_u32 v72, v72, v75', 's_nop 0', 'v_readfirstlane_b32 s34, v72', 's_nop 1',
                   f's_cmp_ge_u32 s34, {g}', f's_cbranch_scc1 FG{idx}_OK', f'FG{idx}_SPIN:', f'ds_read_b128 v[72:75], v{VFR}', 's_waitcnt lgkmcnt(0)',
                   'v_min3_u32 v72, v72, v73, v74', 'v_min_u32 v72, v72, v75', 's_nop 0', 'v_readfirstlane_b32 s34, v72', 's_nop 1',
                   f's_cmp_lt_u32 s34, {g}', f's_cbranch_scc1 FG{idx}_SPIN', f'FG{idx}_OK:']
            put(fx, 24, [wait_lgkm(f'FR{idx}'), Op('\n  '.join(chk), 'opaque')])
            for g_, o in zip([26, 27, 28, 30], aread_ops(nxt)):
                put(fx, g_, o)
            put(fx, 35, wait_lgkm(f'A{nxt}'))
            p(place2(mf, fx, V, 0, 18))
            continue
        if idx == 34:
            conv_check(p)
        extra = []
        if idx in (34, 35):
            cp = conv_prefetch_ops()
            c1, c2 = split_vm(cp, 9)
            extra = c1 if idx == 34 else c2
        if extra:
            p(place2(mf, fx, extra, 2, 36))
        else:
            p(place2(mf, fx, V, 0, 36))
        if idx == 9:
            p(wait_vm('NONCE'))
            nonce_check(p, 'M')
    st(p, 7)
    rts(p, 2)
    if timing:
        p('s_waitcnt lgkmcnt(0)')
        for idx in range(33, 36):
            so = 82 + 2 * (idx % 6)
            p(raw(f'v_writelane_b32 v88, s{so}, {idx}'))
        p(raw('v_writelane_b32 v88, s82, 36'))
        p('v_accvgpr_write_b32 a255, v88')
    p(f's_mul_i32 s31, s{S_J}, {NB}')
    p(f's_lshl_b32 s34, s{S_M}, 2')
    p(f's_add_u32 s34, s34, s{S_W}')
    p('s_mul_i32 s34, s34, 18432')
    p('s_add_u32 s31, s31, s34')
    p(f's_add_u32 s31, s31, {WS_P}')
    p('s_cmp_lt_u32 s2, 144')
    p('s_cbranch_scc1 K_CONV')
    p.ops.append(Op(None, 'push'))
    p('s_nop 7')
    p(partial_store_ops())
    p.ops.append(Op(None, 'pop'))
    if timing: p(raw('s_memtime s[70:71]'))
    p('s_branch K_NOCONV')
    p.label('K_CONV')
    gen_conv(p, timing)
    p.label('K_NOCONV')
    p('s_waitcnt vmcnt(0) lgkmcnt(0)')
    p('s_barrier')
    p(f's_cmp_lg_u32 s{S_W}, 0')
    p('s_cbranch_scc1 K_NOFL2')
    p(f's_lshl_b32 s34, s{S_M}, 7')
    p(f's_lshl_b32 s35, s{S_J}, 2')
    p('s_add_u32 s34, s34, s35')
    p(f's_add_u32 s34, s34, {WS_FL + FL_P}')
    p(f'v_mov_b32 v38, s{S_NONCE}')
    p('v_mov_b32 v39, 0')
    p('s_mov_b64 exec, 1')
    p(raw('buffer_store_dword v38, v39, s[16:19], s34 offen sc1'))
    p('s_cmp_ge_u32 s2, 144')
    p('s_cbranch_scc1 K_NOFL2Y')
    p('s_lshl_b32 s34, s2, 2')
    p(f's_add_u32 s34, s34, {WS_FL + FL_Y}')
    p(raw('buffer_store_dword v38, v39, s[16:19], s34 offen sc1'))
    p.label('K_NOFL2Y')
    p('s_mov_b64 exec, -1')
    p.label('K_NOFL2')
    if timing:
        p(raw('s_memtime s[72:73]'))
        p(raw('s_memrealtime s[78:79]'))
    rts(p, 3)
    gen_final(p, timing)
    rts(p, 5)
    if timing:
        p('s_waitcnt vmcnt(0) lgkmcnt(0)')
        p(raw('s_memtime s[76:77]'))
        p(raw('s_memrealtime s[98:99]'))
        p('s_waitcnt lgkmcnt(0)')
        p('v_mov_b32 v4, s96'); p('v_mov_b32 v5, s78'); p('v_mov_b32 v6, s80'); p('v_mov_b32 v7, s98')
        p('v_mov_b32 v8, 0')
        p('s_lshl_b32 s34, s2, 4')
        p(f's_add_u32 s34, s34, {WS_DBG + 4096}')
        p(f's_cmp_lg_u32 s{S_W}, 0')
        p('s_cbranch_scc1 K_END')
        p('s_mov_b64 exec, 1')
        p('buffer_store_dwordx4 v[4:7], v8, s[16:19], s34 offen')
        p('s_mov_b64 exec, -1')
        p('s_mov_b32 s52, 0')
        p('s_cmp_eq_u32 s2, 0')
        p('s_cbranch_scc1 K_STAMP')
        p('s_mov_b32 s52, 512')
        p('s_cmp_eq_u32 s2, 200')
        p('s_cbranch_scc0 K_END')
        p.label('K_STAMP')
        p(f's_add_u32 s52, s52, {WS_DBG}')
        p('v_accvgpr_read_b32 v3, a255')
        p('s_nop 1')
        p('v_subrev_u32 v3, s68, v3')
        p('v_and_b32 v4, 63, v0')
        p('v_lshlrev_b32 v4, 2, v4')
        p('buffer_store_dword v3, v4, s[16:19], s52 offen')
        for n in range(1, 13):
            p(f's_sub_u32 s53, s{68+2*n}, s68')
            p('v_mov_b32 v1, s53')
            p(f'v_mov_b32 v2, {256+4*n}')
            p('buffer_store_dword v1, v2, s[16:19], s52 offen')
    if RT:
        p('s_waitcnt vmcnt(0) lgkmcnt(0)')
        p(f's_cmp_lg_u32 s{S_W}, 0')
        p('s_cbranch_scc1 K_END')
        p('s_mov_b32 s52, 16')
        p('s_cmp_eq_u32 s2, 0')
        p('s_cbranch_scc1 K_RT')
        p('s_mov_b32 s52, 40')
        p('s_cmp_eq_u32 s2, 200')
        p('s_cbranch_scc0 K_END')
        p.label('K_RT')
        srd(p, 44, 50, 256)
        p('s_mov_b64 exec, 1')
        for n in range(6):
            p(f's_sub_u32 s53, s{68+2*n}, s{S_NONCE}')
            p('v_mov_b32 v4, s53'); p(f'v_mov_b32 v5, {4*n}')
            p('buffer_store_dword v4, v5, s[44:47], s52 offen')
        p('s_mov_b64 exec, -1')
    if os.environ.get('SPAN'):
        p('s_waitcnt vmcnt(0) lgkmcnt(0)')
        p(raw('s_memrealtime s[98:99]'))
        p('s_waitcnt lgkmcnt(0)')
        p(f's_sub_u32 s98, s98, s{S_NONCE}')
        srd(p, 44, 50, 256)
        p('v_mov_b32 v4, s98'); p('v_mov_b32 v5, 8')
        p('s_mov_b64 exec, 1')
        p('buffer_atomic_umax v4, v5, s[44:47], 0 offen')
        p('s_mov_b64 exec, -1')
    p.label('K_END')
    p('s_endpgm')
    p.label('K_CODE_END')
    return p


def partial_store_ops():
    ops = []
    k = 0
    for pr in range(2):
        for ct in range(9):
            t = STMP + 12 * (k % 3)
            for hh in range(2):
                b = (ct * 4 + 2 * pr + hh) * 4
                for i in range(4):
                    ops.append(alu(f'v_accvgpr_read_b32 v{t+4*hh+i}, a{b+i}'))
            q = t + 8
            ops.append(alu(f'v_cvt_pk_bf16_f32 v{q}, v{t}, v{t+1}'))
            ops.append(alu(f'v_cvt_pk_bf16_f32 v{q+1}, v{t+2}, v{t+3}'))
            ops.append(alu(f'v_cvt_pk_bf16_f32 v{q+2}, v{t+4}, v{t+5}'))
            ops.append(alu(f'v_cvt_pk_bf16_f32 v{q+3}, v{t+6}, v{t+7}'))
            if k % 4 == 0:
                ops.append(alu(f's_add_u32 s35, s31, {k*1024}'))
            off = f' offset:{1024*(k & 3)}' if k & 3 else ''
            ops.append(vm(f'buffer_store_dwordx4 v[{q}:{q+3}], v{VL16}, s[16:19], s35 offen{off} {PST}', 'P'))
            k += 1
    return ops


def conv_flag_ops():
    ops = []
    ops.append(alu('s_mul_i32 s42, s2, 3641'))
    ops.append(alu('s_lshr_b32 s42, s42, 16'))
    ops.append(alu('s_lshl_b32 s42, s42, 7'))
    ops.append(alu(f's_add_u32 s42, s42, {WS_FL + FL_UR}'))
    ops.append(alu('s_lshl_b32 s40, s2, 2'))
    ops.append(alu(f's_add_u32 s40, s40, s{S_W}'))
    ops.append(alu('s_min_u32 s40, s40, 575'))
    ops.append(alu('s_lshl_b32 s41, s40, 12'))
    ops.append(alu('v_and_b32 v86, 31, v2'))
    ops.append(alu('v_lshlrev_b32 v86, 2, v86'))
    ops.append(vm('buffer_load_dword v87, v86, s[16:19], s42 offen sc1', 'URF'))
    return ops


def conv_check(p):
    p(wait_vm('URF'))
    p('s_cmp_ge_u32 s2, 144')
    p('s_cbranch_scc1 K_UR_OK')
    p(f'v_cmp_ne_u32 vcc, s{S_NONCE}, v87')
    p('s_nop 3')
    p('s_cmp_eq_u64 vcc, 0')
    p('s_cbranch_scc1 K_UR_OK')
    p.ops.append(Op(None, 'push'))
    poll(p, 87, 86, 's42', 'UR')
    p.ops.append(Op(None, 'pop'))
    p.label('K_UR_OK')


def conv_prefetch_ops():
    ops = []
    ops.append(alu(f's_add_u32 s42, s41, {WS_UR}'))
    for q in range(4):
        off = f' offset:{1024*q}' if q else ''
        ops.append(vm(f'buffer_load_dwordx4 v[{PU+4*q}:{PU+4*q+3}], v{VL16}, s[16:19], s42 offen{off} sc1', 'CU'))
    ops.append(alu(f'v_add_u32 v38, s41, v{VL16}'))
    ops.append(alu('v_subrev_u32 v39, 32, v38'))
    ops.append(alu('v_max_i32 v39, 0, v39'))
    ops.append(alu('v_add_u32 v38, 992, v38'))
    for d, base in ((0, P0), (4, P1), (8, P2)):
        ops.append(vm(f'buffer_load_dwordx4 v[{base}:{base+3}], v39, s[20:23], 0 offen offset:{d}', 'CP'))
        for q in range(1, 5):
            ops.append(vm(f'buffer_load_dwordx4 v[{base+4*q}:{base+4*q+3}], v38, s[20:23], 0 offen offset:{1024*(q-1)+d}', 'CP'))
    return ops


CA, CB = 144, 188
VQA, VQB = 76, 77


def gen_conv(p, timing):
    p('s_and_b32 s43, s40, 0xfffe')
    p('s_lshl_b32 s43, s43, 1')
    p('s_load_dword s44, s[38:39], s43')
    p('s_barrier')
    p(f's_mul_i32 s45, s{S_W}, {CONV_STRIDE}')
    p(wait_vm('CP'))
    p(f'v_readlane_b32 s46, v{P0}, 2')
    p(f'v_readlane_b32 s47, v{P0+1}, 2')
    p('s_mov_b64 exec, 3')
    for base in (P0, P1, P2):
        for i in range(4):
            p(f'v_mov_b32 v{base+i}, 0')
    p('s_mov_b64 exec, -1')
    p(f'v_writelane_b32 v{P1+3}, s46, 1')
    p(f'v_writelane_b32 v{P2+2}, s46, 1')
    p(f'v_writelane_b32 v{P2+3}, s47, 1')
    p(f'v_add_u32 v38, s45, v{VL16}')
    T = 40
    for q in range(5):
        p(f'ds_write_b128 v38, v[{P0+4*q}:{P0+4*q+3}] offset:{1024*q}')
        t = T + 8 * (q % 2)
        for i in range(4):
            p(f'v_alignbit_b32 v{t+i}, v{P1+4*q+i}, v{P0+4*q+i}, 16')
        p(f'ds_write_b128 v38, v[{P1+4*q}:{P1+4*q+3}] offset:{2*CONV_COPY + 1024*q}')
        for i in range(4):
            p(f'v_alignbit_b32 v{t+4+i}, v{P2+4*q+i}, v{P1+4*q+i}, 16')
        p(f'ds_write_b128 v38, v[{t}:{t+3}] offset:{CONV_COPY + 1024*q}')
        p(f'ds_write_b128 v38, v[{t+4}:{t+7}] offset:{3*CONV_COPY + 1024*q}')
    for i in range(4):
        p(f'v_mov_b32 v{60+i}, 0')
    p(f'ds_write_b128 v38, v[60:63] offset:{CONV_UR + 4096}')
    p(f'v_add_u32 v39, 1, v{VN}')
    p(f'v_and_b32 v{VQA}, 3, v39')
    p(f'v_mul_u32_u24 v{VQA}, {CONV_COPY}, v{VQA}')
    p('v_and_b32 v57, 0x1c, v39')
    p(f'v_lshl_add_u32 v{VQA}, v57, 1, v{VQA}')
    p(f'v_lshl_add_u32 v{VQA}, v{VG}, 4, v{VQA}')
    p(f'v_add_u32 v{VQA}, s45, v{VQA}')
    p(f'v_lshlrev_b32 v{VQB}, 5, v{VN}')
    p(f'v_lshlrev_b32 v58, 4, v{VG}')
    p(f'v_sub_u32 v{VQB}, v58, v{VQB}')
    p(f's_add_u32 s46, s45, {CONV_UR + 4064 - 3584}')
    p(f'v_add_u32 v{VQB}, s46, v{VQB}')
    p(wait_vm('CU'))
    for q in range(4):
        p(f'ds_write_b128 v38, v[{PU+4*q}:{PU+4*q+3}] offset:{CONV_UR + 1024*q}')
    p('s_waitcnt lgkmcnt(0)')
    if timing: p(raw('s_memtime s[70:71]'))

    def reads(r):
        st_ = r & 1
        ops = []
        for k in range(8):
            a = CA + 32 * st_ + 4 * k
            b = CB + 32 * st_ + 4 * k
            ops.append(lds(f'ds_read_b64 a[{a}:{a+1}], v{VQA} offset:{512*k + 64*r}', f'C{r}'))
            ops.append(lds(f'ds_read_b64 a[{a+2}:{a+3}], v{VQA} offset:{512*k + 64*r + 8}', f'C{r}'))
            ops.append(lds(f'ds_read_b128 v[{b}:{b+3}], v{VQB} offset:{512*(7-k) + 64*r}', f'C{r}'))
        return ops

    pst = partial_store_ops()
    per = (len(pst) + 5) // 6
    p(reads(0))
    for r in range(8):
        st_ = r & 1
        mf = []
        for nt in range(8):
            for ap in range(nt + 1):
                a = CA + 32 * st_ + 4 * ap
                b = CB + 32 * st_ + 4 * (nt - ap)
                d = CACC + 4 * nt
                c = '0' if (r == 0 and ap == 0) else f'v[{d}:{d+3}]'
                mf.append((nt, ap, mfma(f'v_mfma_f32_16x16x32_bf16 v[{d}:{d+3}], a[{a}:{a+3}], v[{b}:{b+3}], {c}')))
        mf.sort(key=lambda x: (x[1], x[0]))
        mf = [x[2] for x in mf]
        p(wait_lgkm(f'C{r}'))
        fx = {}
        if r < 7:
            for i, o in enumerate(reads(r + 1)):
                fx.setdefault(i, []).append(o)
        fl = pst[r * per:(r + 1) * per]
        if timing and r in (1, 3, 5): p(raw(f's_memtime s[{84 + (r-1)}:{85 + (r-1)}]'))
        p(place2(mf, fx, fl, 0, 36))
    if timing: p(raw('s_memtime s[90:91]'))
    p('s_waitcnt lgkmcnt(0)')
    p('s_and_b32 s43, s40, 1')
    p('s_lshl_b32 s43, s43, 4')
    p('s_lshr_b32 s44, s44, s43')
    p('s_lshl_b32 s44, s44, 16')
    p(f'v_lshlrev_b32 v58, 5, v{VN}')
    p(f'v_lshl_add_u32 v58, v{VG}, 3, v58')
    p(f's_add_u32 s46, s45, {CONV_UR + 4088 - 512*7}')
    p('v_sub_u32 v59, s46, v58')
    for nt in range(8):
        p(lds(f'ds_read_b64 v[{112+2*nt}:{113+2*nt}], v59 offset:{512*(7-nt)}', 'U'))
    p(f's_mul_i32 s46, s{S_W}, 4160')
    p(f's_add_u32 s46, s46, {CONV_YT}')
    p('v_add_u32 v59, s46, v58')
    p('s_nop 7')
    p(wait_lgkm('U'))
    for nt in range(8):
        d = CACC + 4 * nt
        u0, u1 = 112 + 2 * nt, 113 + 2 * nt
        t = [64, 65, 66, 67]
        p(f'v_and_b32 v{t[0]}, 0xffff0000, v{u1}')
        p(f'v_lshlrev_b32 v{t[1]}, 16, v{u1}')
        p(f'v_and_b32 v{t[2]}, 0xffff0000, v{u0}')
        p(f'v_lshlrev_b32 v{t[3]}, 16, v{u0}')
        for i in range(4): p(f'v_fma_f32 v{d+i}, v{t[i]}, s44, v{d+i}')
        o = 68 + 2 * (nt % 2)
        p(f'v_cvt_pk_bf16_f32 v{o}, v{d}, v{d+1}')
        p(f'v_cvt_pk_bf16_f32 v{o+1}, v{d+2}, v{d+3}')
        p(f'ds_write_b64 v59, v[{o}:{o+1}] offset:{512*nt}')
    p(f'v_lshrrev_b32 v58, 2, v{VN}')
    p('v_mul_u32_u24 v58, 4160, v58')
    p('v_and_b32 v59, 3, v2')
    p('v_lshl_add_u32 v58, v59, 3, v58')
    p(f'v_lshl_add_u32 v58, v{VG}, 5, v58')
    p(f's_lshl_b32 s46, s{S_W}, 10')
    p(f's_add_u32 s46, s46, {CONV_YT}')
    p('v_add_u32 v58, s46, v58')
    p('v_lshlrev_b32 v59, 3, v2')
    p('s_lshl_b32 s46, s2, 14')
    p(f's_lshl_b32 s47, s{S_W}, 12')
    p('s_add_u32 s46, s46, s47')
    p(f's_add_u32 s46, s46, {WS_Y}')
    p('s_waitcnt lgkmcnt(0)')
    p('s_barrier')
    for k in range(8):
        p(lds(f'ds_read_b64_tr_b16 v[{112+2*k}:{113+2*k}], v58 offset:{128*k}', f'YT{k}'))
    for k in range(8):
        p(wait_lgkm(f'YT{k}'))
        p(f'buffer_store_dwordx2 v[{112+2*k}:{113+2*k}], v59, s[16:19], s46 offen offset:{512*k} sc1')
    if timing: p(raw('s_memtime s[92:93]'))


def gen_final(p, timing):
    srd(p, 52, 4, NB)
    srd(p, 56, 48, NB)
    p(f's_lshr_b32 s60, s{S_J}, 1')
    p(f's_and_b32 s61, s{S_J}, 1')
    p(f's_lshl_b32 s62, s{S_M}, 7')
    p(f's_add_u32 s62, s62, {FL_P}')
    p('v_lshlrev_b32 v40, 2, v2')
    p('v_add_u32 v41, s62, v40')
    p('s_lshl_b32 s63, s60, 7')
    p(f's_add_u32 s63, s63, {FL_Y - 32}')
    p('v_add_u32 v42, s63, v40')
    p('s_lshl_b32 s63, s60, 4')
    p(f's_add_u32 s63, s63, {FL_Y + 512 - 160}')
    p('v_add_u32 v43, s63, v40')
    p('v_cmp_gt_u32 vcc, 8, v2')
    p('s_nop 1')
    p('v_cndmask_b32 v42, v42, v41, vcc')
    p('v_cmp_lt_u32 vcc, 39, v2')
    p('s_nop 1')
    p('v_cndmask_b32 v42, v42, v43, vcc')
    p('v_mov_b32 v43, s62')
    p('v_cmp_lt_u32 vcc, 43, v2')
    p('s_nop 1')
    p('v_cndmask_b32 v42, v42, v43, vcc')
    p(f's_mov_b32 s63, {WS_FL}')
    p(f's_lshl_b32 s34, s{S_M}, 6')
    p('s_lshl_b32 s35, s61, 5')
    p('s_add_u32 s34, s34, s35')
    p(f'v_add_u32 v6, s34, v{VN}')
    p('s_lshl_b32 s35, s61, 8')
    p(f's_add_u32 s35, s35, {LDS_ST}')
    p(f'v_lshl_add_u32 v7, v{VN}, 3, s35')
    p(lds('ds_read_b64 v[60:61], v7', 'ST'))
    p(lds('ds_read_b64 v[62:63], v7 offset:128', 'ST'))
    p(f's_lshl_b32 s34, s{S_M}, 3')
    p(f's_add_u32 s34, s34, s{S_J}')
    p('s_mul_i32 s34, s34, 9216')
    p(f's_add_u32 s34, s34, {WS_P}')
    NR = 3
    XA, YA, PA = 112, 124, 136
    for r in range(NR):
        p(f's_add_u32 s{64+r}, s{S_W}, {4*r}')
        p(f's_min_u32 s{64+r}, s{64+r}, 8')
        p('s_lshl_b32 s35, s60, 7')
        p(f's_lshl_b32 s40, s{64+r}, 4')
        p('s_add_u32 s35, s35, s40')
        p('s_lshl_b32 s40, s60, 4')
        p('s_add_u32 s40, s40, 512')
        p(f's_cmp_lt_u32 s{64+r}, 8')
        p('s_cselect_b32 s35, s35, s40')
        p(f'v_lshl_add_u32 v{8+r}, v{VG}, 2, s35')
        p(f'v_mul_u32_u24 v{12+r}, 1152, v6')
        p(f'v_lshl_add_u32 v{12+r}, v{8+r}, 1, v{12+r}')
        p(f'v_add_u32 v{16+r}, {16*1152}, v{12+r}')
        p(vm(f'buffer_load_dwordx2 v[{XA+4*r}:{XA+4*r+1}], v{12+r}, s[52:55], 0 offen', f'FX{r}'))
        p(vm(f'buffer_load_dwordx2 v[{XA+4*r+2}:{XA+4*r+3}], v{16+r}, s[52:55], 0 offen', f'FX{r}'))
        p(f'v_lshrrev_b32 v{20+r}, 2, v{8+r}')
        p(f'v_lshlrev_b32 v{20+r}, 14, v{20+r}')
        p(f'v_lshl_add_u32 v{20+r}, v6, 3, v{20+r}')
    p(f's_cmp_lg_u32 s{S_W}, 0')
    p('s_cbranch_scc1 K_FIN_GO')
    p.ops.append(Op(None, 'push'))
    poll(p, 44, 42, 's63', 'FIN')
    p.ops.append(Op(None, 'pop'))
    p.label('K_FIN_GO')
    p('s_barrier')
    rts(p, 4)
    if timing:
        p(raw('s_memtime s[74:75]'))
        p(raw('s_memrealtime s[80:81]'))
    p(f's_mov_b32 s41, {WS_Y}')
    for r in range(NR):
        p(f's_lshl_b32 s35, s{64+r}, 10')
        p('s_add_u32 s35, s35, s34')
        for j in range(8):
            b = PA + 32 * r + 4 * j
            p(vm(f'buffer_load_dwordx4 v[{b}:{b+3}], v{VL16}, s[16:19], s35 offen {PLD}', f'FP{r}_{j}'))
            if j != 7:
                p(f's_add_u32 s35, s35, {NB}')
        p(vm(f'buffer_load_dwordx2 v[{YA+4*r}:{YA+4*r+1}], v{20+r}, s[16:19], s41 offen sc1', f'FY{r}'))
        p(vm(f'buffer_load_dwordx2 v[{YA+4*r+2}:{YA+4*r+3}], v{20+r}, s[16:19], s41 offen offset:128 sc1', f'FY{r}'))
        if r == 1:
            p(f's_cmp_lg_u32 s{S_W}, 0')
            p('s_cbranch_scc1 K_FIN_L2')
            p.ops.append(Op(None, 'push'))
        if r == 2:
            p.ops.append(Op(None, 'pop'))
            p.label('K_FIN_L2')
    p('s_mov_b32 s40, 0x00003f80')
    p('s_mov_b32 s41, 0x3f800000')
    p(wait_lgkm('ST'))
    for i in range(4): p(f'v_mul_f32 v{60+i}, {hex(f32bits(-0.6931471805599453))}, v{60+i}')
    O = list(range(64, 72))
    for r in range(NR):
        if r == 2:
            p(f's_cmp_lg_u32 s{S_W}, 0')
            p('s_cbranch_scc1 K_FIN_DONE')
            p(opaque('s_waitcnt vmcnt(0)'))
        b0 = PA + 32 * r
        p(wait_vm(f'FP{r}_0'))
        for k in range(4):
            unpack(p, O[2*k], O[2*k+1], b0 + k)
        for j in range(1, 8):
            p(wait_vm(f'FP{r}_{j}'))
            for k in range(4):
                p(f'v_dot2_f32_bf16 v{O[2*k]}, v{b0+4*j+k}, s40, v{O[2*k]}')
                p(f'v_dot2_f32_bf16 v{O[2*k+1]}, v{b0+4*j+k}, s41, v{O[2*k+1]}')
        p('s_nop 2')
        T_ = list(range(74, 82))
        for i in range(8): p(f'v_exp_f32 v{T_[i]}, v{O[i]}')
        p('s_nop 0')
        for i in range(8): p(f'v_add_f32 v{T_[i]}, 1.0, v{T_[i]}')
        for i in range(8): p(f'v_rcp_f32 v{T_[i]}, v{T_[i]}')
        p('s_nop 0')
        for i in range(8): p(f'v_mul_f32 v{O[i]}, v{O[i]}, v{T_[i]}')
        p(wait_vm([f'FY{r}', f'FX{r}']))
        for h in range(2):
            xs = [82, 83, 84, 85]; ys = [86, 87, 88, 89]; xn = [90, 91, 92, 93]
            unpack(p, xs[0], xs[1], XA + 4 * r + 2 * h); unpack(p, xs[2], xs[3], XA + 4 * r + 2 * h + 1)
            unpack(p, ys[0], ys[1], YA + 4 * r + 2 * h); unpack(p, ys[2], ys[3], YA + 4 * r + 2 * h + 1)
            for i in range(4): p(f'v_fma_f32 v{xn[i]}, v{xs[i]}, v{60+2*h}, v{61+2*h}')
            for i in range(4): p(f'v_mul_f32 v{xn[i]}, v{xn[i]}, v{ys[i]}')
            for i in range(4): p(f'v_fma_f32 v{xn[i]}, v{xn[i]}, v{O[4*h+i]}, v{xs[i]}')
            o = 94 + 2 * h
            p(f'v_cvt_pk_bf16_f32 v{o}, v{xn[0]}, v{xn[1]}')
            p(f'v_cvt_pk_bf16_f32 v{o+1}, v{xn[2]}, v{xn[3]}')
            p(raw(f'buffer_store_dwordx2 v[{o}:{o+1}], v{(12 if h == 0 else 16)+r}, s[56:59], 0 offen {OST}'))
    p.label('K_FIN_DONE')


def build(timing=False):
    _silu_rot[0] = 0
    k = gen(timing)
    txt = HEADER
    txt += '; @launch grid=(256,1,1) block=(256,1,1) lds=163840\n'
    txt += '.amdgcn_target "amdgcn-amd-amdhsa--gfx950"\n'
    txt += kernel_head(KNAME) + k.resolve()
    txt += kernel_descriptor(KNAME, 512, 102, 256)
    return txt


if __name__ == '__main__':
    timing = '--timing' in sys.argv
    out = [a for a in sys.argv[1:] if not a.startswith('--')]
    open(out[0] if out else 'cdna_kernels/' + NAME + '.s', 'w').write(build(timing))
```

```python
import re


class Op:
    __slots__ = ("text", "kind", "tag", "cost")

    def __init__(self, text, kind="alu", tag=None, cost=1):
        self.text = text
        self.kind = kind
        self.tag = tag
        self.cost = cost


def alu(t, cost=1):
    return Op(t, "alu", cost=cost)


def trans(t):
    return Op(t, "alu", cost=2)


def mfma(t):
    return Op(t, "mfma")


def lds(t, tag=None):
    return Op(t, "lds", tag)


def vm(t, tag=None):
    return Op(t, "vm", tag)


def wait_lgkm(tag):
    return Op(None, "wait_lgkm", tag)


def wait_vm(tag):
    return Op(None, "wait_vm", tag)


def wait_vm_alt(tag, extra_a, extra_b, cond, label):
    o = Op(None, "wait_vm_alt", tag)
    o.text = (extra_a, extra_b, cond, label)
    return o


def raw(t):
    return Op(t, "raw")


def opaque(t):
    return Op(t, "opaque")


class Prog:
    def __init__(self):
        self.ops = []

    def add(self, x):
        if isinstance(x, (list, tuple)):
            for y in x:
                self.add(y)
        elif isinstance(x, str):
            for line in x.split("\n"):
                line = line.strip()
                if not line:
                    continue
                self.ops.append(classify(line))
        else:
            self.ops.append(x)

    __call__ = add

    def label(self, name):
        self.ops.append(Op(name + ":", "label"))

    def resolve(self):
        out = []
        lq = []
        vq = []
        stack = []
        for op in self.ops:
            if op.kind == "push":
                stack.append((list(lq), list(vq)))
            elif op.kind == "pop":
                lq, vq = stack.pop()
            elif op.kind == "lds":
                lq.append(op.tag)
                out.append("  " + op.text)
            elif op.kind == "vm":
                vq.append(op.tag)
                out.append("  " + op.text)
            elif op.kind == "wait_lgkm":
                tags = op.tag if isinstance(op.tag, (list, tuple, set)) else [op.tag]
                idx = max([i for i, t in enumerate(lq) if t in tags], default=-1)
                if idx < 0:
                    continue
                n = len(lq) - 1 - idx
                n = min(n, 15)
                out.append(f"  s_waitcnt lgkmcnt({n})")
                lq = lq[len(lq) - n:] if n > 0 else []
            elif op.kind == "wait_vm":
                tags = op.tag if isinstance(op.tag, (list, tuple, set)) else [op.tag]
                idx = max([i for i, t in enumerate(vq) if t in tags], default=-1)
                if idx < 0:
                    continue
                n = len(vq) - 1 - idx
                n = min(n, 63)
                out.append(f"  s_waitcnt vmcnt({n})")
                vq = vq[len(vq) - n:] if n > 0 else []
            elif op.kind == "wait_vm_alt":
                tags = op.tag if isinstance(op.tag, (list, tuple, set)) else [op.tag]
                idx = max([i for i, t in enumerate(vq) if t in tags], default=-1)
                assert idx >= 0
                n = len(vq) - 1 - idx
                ea, eb, cond, lab = op.text
                out.append("  " + cond)
                out.append(f"  s_cbranch_scc1 {lab}_A")
                out.append(f"  s_waitcnt vmcnt({min(n + eb, 63)})")
                out.append(f"  s_branch {lab}_E")
                out.append(f"{lab}_A:")
                out.append(f"  s_waitcnt vmcnt({min(n + ea, 63)})")
                out.append(f"{lab}_E:")
                vq = vq[len(vq) - n:] if n > 0 else []
            elif op.kind == "label":
                out.append(op.text)
            elif op.kind == "opaque":
                out.append("  " + op.text)
            else:
                t = op.text
                m = re.match(r"s_waitcnt\s+(.*)", t)
                if m:
                    a = m.group(1)
                    mm = re.search(r"lgkmcnt\((\d+)\)", a)
                    if mm:
                        n = int(mm.group(1))
                        lq = lq[len(lq) - n:] if 0 < n < len(lq) else ([] if n == 0 else lq)
                    mm = re.search(r"vmcnt\((\d+)\)", a)
                    if mm:
                        n = int(mm.group(1))
                        vq = vq[len(vq) - n:] if 0 < n < len(vq) else ([] if n == 0 else vq)
                out.append("  " + t)
        return "\n".join(out) + "\n"


def classify(line):
    if line.endswith(":"):
        return Op(line, "label")
    w = line.split()[0]
    if w.startswith("v_mfma"):
        return mfma(line)
    if w.startswith("ds_"):
        return lds(line)
    if w.startswith("buffer_") or w.startswith("global_"):
        return vm(line)
    if w in ("v_exp_f32", "v_rcp_f32", "v_sqrt_f32", "v_rsq_f32", "v_log_f32"):
        return trans(line)
    return alu(line)


def interleave(mf, fill, start=0, end=None, per_gap_cap=None):
    n = len(mf)
    end = n if end is None else end
    gaps = end - start
    total = sum(max(f.cost, 0) if f.kind not in ("wait_lgkm", "wait_vm") else 1 for f in fill)
    out = []
    fi = 0
    acc = 0
    for k in range(n):
        out.append(mf[k])
        if k < start or k >= end:
            continue
        target = total * (k - start + 1) / gaps
        while fi < len(fill) and (acc < target - 1e-9 or k == end - 1):
            f = fill[fi]
            c = f.cost if f.kind not in ("wait_lgkm", "wait_vm") else 1
            if acc + c > target + 0.5 * c and k != end - 1:
                break
            out.append(f)
            acc += c
            fi += 1
    assert fi == len(fill)
    return out


def merge_streams(a, b):
    ca = sum(x.cost for x in a) or 1
    cb = sum(x.cost for x in b) or 1
    out = []
    i = j = 0
    pa = pb = 0.0
    while i < len(a) or j < len(b):
        fa = pa / ca if i < len(a) else 2.0
        fb = pb / cb if j < len(b) else 2.0
        if fa <= fb:
            out.append(a[i]); pa += a[i].cost; i += 1
        else:
            out.append(b[j]); pb += b[j].cost; j += 1
    return out


def kernel_descriptor(name, vgpr, sgpr, accum, extra=""):
    return f"""
.section .rodata,"a"
.p2align 6
.amdhsa_kernel {name}
  .amdhsa_next_free_vgpr {vgpr}
  .amdhsa_next_free_sgpr {sgpr}
  .amdhsa_accum_offset {accum}
  .amdhsa_group_segment_fixed_size 0
  .amdhsa_kernarg_size 96
  .amdhsa_user_sgpr_count 2
  .amdhsa_user_sgpr_kernarg_segment_ptr 1
  .amdhsa_system_sgpr_workgroup_id_x 1
{extra}.end_amdhsa_kernel
"""


def kernel_head(name):
    return f""".text
.globl {name}
.p2align 8
.type {name},@function
{name}:
"""


def place(mf, fixed, flow=(), lo=0, hi=None):
    n = len(mf)
    hi = n if hi is None else hi
    cost = lambda o: 1 if o.kind in ("wait_lgkm", "wait_vm") else o.cost
    fc = [sum(cost(o) for o in fixed.get(k, [])) for k in range(n)]
    tot = sum(fc[lo:hi]) + sum(cost(o) for o in flow)
    per = tot / max(hi - lo, 1)
    out = list(fixed.get(-1, []))
    fi = 0
    acc = 0.0
    for k in range(n):
        out.append(mf[k])
        out += fixed.get(k, [])
        if lo <= k < hi:
            acc += fc[k]
            target = per * (k - lo + 1)
            while fi < len(flow) and (acc + 0.5 * cost(flow[fi]) <= target or k == hi - 1):
                out.append(flow[fi]); acc += cost(flow[fi]); fi += 1
    assert fi == len(flow)
    return out


def icost(o):
    if o.kind in ("wait_lgkm", "wait_vm"):
        return 4
    if o.kind == "lds":
        return 16 if o.text.startswith("ds_write") else 8
    if o.kind == "vm":
        return 15
    t = o.text or ""
    if t.startswith(("v_exp", "v_rcp", "v_sqrt", "v_rsq", "v_log")):
        return 8
    return 4 * (t.count("\n") + 1)


def is_valu(o):
    return o.kind == "alu" and (o.text or "").startswith("v_")


def place2(mf, fixed, flow=(), lo=0, hi=None, mcyc=16):
    n = len(mf)
    hi = n if hi is None else hi
    fc = [sum(icost(o) for o in fixed.get(k, [])) for k in range(n)]
    tot = sum(fc[lo:hi]) + sum(icost(o) for o in flow)
    per = max(tot / max(hi - lo, 1), 0)
    out = list(fixed.get(-1, []))
    fi = 0
    acc = 0.0
    deferred = []
    flow = list(flow)
    for k in range(n):
        out.append(mf[k])
        items = list(fixed.get(k, []))
        nonv = [o for o in items if not is_valu(o)]
        val = [o for o in items if is_valu(o)]
        if lo <= k < hi:
            nonv = nonv + deferred if k < hi - 1 else nonv
            tail = deferred if k == hi - 1 else []
            acc += fc[k] + sum(icost(o) for o in deferred)
            pre = list(deferred)
            deferred = []
            target = per * (k - lo + 1)
            while fi < len(flow) and (acc + 0.5 * icost(flow[fi]) <= target or k == hi - 1):
                o = flow[fi]; fi += 1
                if is_valu(o):
                    val.append(o); acc += icost(o)
                elif not val:
                    nonv.append(o); acc += icost(o)
                elif k == hi - 1:
                    val.append(o); acc += icost(o)
                else:
                    deferred.append(o)
            if k == hi - 1:
                nonv = tail + nonv
        out += nonv + val
    assert fi == len(flow) and not deferred
    return out
```

```python
import os
import sys
sys.path.insert(0, 'exp')
from asmgen import *

NAME = 'recurrent_scan__ssm_conv_h3__dense_activation_silu__prompt'
KNAME = NAME + '_kernel'
S, D, F = 2048, 576, 4608
NB = S * D * 2
WS_UR = 0
WS_Y = NB
WS_FL = 2 * NB
FL_UR, FL_P, FL_Y = 0, 1024, 1024 + 4096
WS_P = 2 * NB + 65536
WS_END = WS_P + 8 * NB
WS_DBG = WS_END
LOG2E_NEG = 0xbfb8aa3b
HEADER = open('cdna_kernels/' + NAME + '.s.ref').read().split('; Override launch')[0]

ORDER2 = [0, 4, 8, 12, 1, 5, 9, 13, 2, 6, 10, 14, 3, 7, 11, 15, 16, 17]
RING = 73728
SPARE = 147456
LDS_T = SPARE
LDS_ST = SPARE + 12288
LDS_FG = SPARE + 13312
VFW, VFR = 110, 111
ACC1 = 112
BSET = 144
ASET = 216
VW1, VW2, VT = 4, 13, 22
VA0, VA1 = 31, 32
VH0, VH1 = 33, 34
VL16 = 35
VG, VN = 36, 37
VX = 80
STMP = 40
S_W, S_J, S_M = 24, 25, 26
S_SOFF, S_RING, S_W1B, S_W2B, S_SOFF2 = 27, 28, 29, 30, 31
S_NONCE = 94
S_PF2 = 92
S_MI = 23 + 70
PST = os.environ.get('PST', 'sc1')
PLD = os.environ.get('PLD', 'sc1')
KVPF = os.environ.get('KVPF', '1') == '1'
OST = os.environ.get('OST', '')
KV_YOUNGER = (0 if os.environ.get('KVFIRST', '0') != '1' else (2 if os.environ.get('EPF2', '1') == '1' else 1))
PFMODE = os.environ.get('PFMODE', 'A')
NSH = int(os.environ.get('NSH', '1'))
KR, VR, SK = 0, 28, 44
VTW = 84
CONV_STRIDE = 25856
CONV_COPY = 5184
CONV_UR = 4 * CONV_COPY
CONV_YT = 4 * CONV_STRIDE
P0, P1, P2, PU = 112, 132, 152, 172
CACC = 80
SPIN_MAX = 1 << 20

DBG_NOSILU = 'NOSILU' in os.environ


def f32bits(x):
    import struct
    return struct.unpack('<I', struct.pack('<f', x))[0]


def srd(p, s, lo, size):
    p(f's_mov_b32 s{s}, s{lo}')
    p(f's_mov_b32 s{s+1}, s{lo+1}')
    p(f's_mov_b32 s{s+2}, {size}')
    p(f's_mov_b32 s{s+3}, 0x00020000')


def round_bf16(p, dst, src):
    p(f'v_cvt_pk_bf16_f32 v{dst}, v{src}, v{src}')
    p(f'v_lshlrev_b32 v{dst}, 16, v{dst}')


def unpack(p, lo, hi, src):
    if lo == src:
        p(f'v_and_b32 v{hi}, 0xffff0000, v{src}')
        p(f'v_lshlrev_b32 v{lo}, 16, v{src}')
    else:
        p(f'v_lshlrev_b32 v{lo}, 16, v{src}')
        p(f'v_and_b32 v{hi}, 0xffff0000, v{src}')


def round_pairs(p, regs, tmp):
    for i in range(0, len(regs), 2):
        p(f'v_cvt_pk_bf16_f32 v{tmp}, v{regs[i]}, v{regs[i+1]}')
        unpack(p, regs[i], regs[i + 1], tmp)


def silu_inplace(p, regs, tmp):
    n = len(regs)
    for i in range(n): p(f'v_mul_f32 v{tmp[i]}, {hex(LOG2E_NEG)}, v{regs[i]}')
    for i in range(n): p(f'v_exp_f32 v{tmp[i]}, v{tmp[i]}')
    p('s_nop 0')
    for i in range(n): p(f'v_add_f32 v{tmp[i]}, 1.0, v{tmp[i]}')
    for i in range(n): p(f'v_rcp_f32 v{tmp[i]}, v{tmp[i]}')
    p('s_nop 0')
    for i in range(n): p(f'v_mul_f32 v{regs[i]}, v{regs[i]}, v{tmp[i]}')


def acc1(ct, rt):
    b = ACC1 + (ct * 4 + rt) * 4
    return f'v[{b}:{b+3}]'


def acc2(ct, rt):
    b = (ct * 4 + rt) * 4
    return f'a[{b}:{b+3}]'


def soff_reg(idx):
    return S_SOFF if idx & 1 == 0 else S_SOFF2


def dma_pieces(idx, nop=False):
    slot = idx & 1
    so = soff_reg(idx)
    if idx < 18:
        vw, srd_ = VW1, 's[8:11]'
        setup = alu(f's_add_u32 s{so}, s{S_W1B}, {idx * 32 * 9216}')
    else:
        vw, srd_ = VW2, 's[12:15]'
        setup = alu(f's_add_u32 s{so}, s{S_W2B}, {ORDER2[idx-18] * 32 * 1152}')

    def m0(off):
        r = [alu(f's_add_u32 m0, s{S_RING}, {slot * 9216 + off}')]
        if nop: r.append(alu('s_nop 0'))
        return r

    def ld(u, tag):
        off = f' offset:{1024 * (u & 3)}' if (u & 3) and u < 8 else ''
        return [vm(f'buffer_load_dwordx4 v{vw+u}, {srd_}, s{so} offen{off} lds', tag)]
    te, to = f'W{idx}e', f'W{idx}o'
    even = [setup] + m0(8192) + ld(8, te) + m0(0) + ld(0, te) + ld(2, te) + m0(4096) + ld(4, te) + ld(6, te)
    odd = m0(0) + ld(1, to) + ld(3, to) + m0(4096) + ld(5, to) + ld(7, to)
    return even, odd


def dma_ops(idx):
    e, o = dma_pieces(idx, nop=True)
    return e + o


def split_vm(ops, n):
    c = 0
    for i, o in enumerate(ops):
        if o.kind == 'vm':
            c += 1
            if c == n:
                return ops[:i+1], ops[i+1:]
    raise ValueError


def bread_ops(idx):
    slot = idx & 1
    o = slot * 9216
    first, second = [], []
    b = BSET + 36 * slot + 32
    first.append(lds(f'ds_read_b64_tr_b16 a[{b}:{b+1}], v{VT+8} offset:{o}', f'B{idx}a'))
    first.append(lds(f'ds_read_b64_tr_b16 a[{b+2}:{b+3}], v{VT+8} offset:{o+256}', f'B{idx}a'))
    for t in range(8):
        b = BSET + 36 * slot + 4 * t
        first.append(lds(f'ds_read_b64_tr_b16 a[{b}:{b+1}], v{VT+t} offset:{o}', f'B{idx}a'))
        second.append(lds(f'ds_read_b64_tr_b16 a[{b+2}:{b+3}], v{VT+t} offset:{o+1024}', f'B{idx}b'))
    return first, second


def aread_ops(idx):
    s = idx if idx < 18 else ORDER2[idx - 18]
    st = idx & 1
    ops = []
    for rt in range(4):
        b = ASET + 16 * st + 4 * rt
        if idx < 18:
            va = VX + (s & 1) + (2 if rt >= 2 else 0)
        else:
            va = VA0 if rt < 2 else VA1
        ops.append(lds(f'ds_read_b128 a[{b}:{b+3}], v{va} offset:{((rt & 1) * 18 + s) * 1024}', f'A{idx}'))
    return ops


def mfma_ops(idx):
    st = idx & 1
    ops = []
    for ct in range(9):
        for rt in range(4):
            d = acc1(ct, rt) if idx < 18 else acc2(ct, rt)
            wb = BSET + 36 * st + 4 * ct
            xb = ASET + 16 * st + 4 * rt
            c = '0' if idx in (0, 18) else d
            ops.append(mfma(f'v_mfma_f32_16x16x32_bf16 {d}, a[{wb}:{wb+3}], a[{xb}:{xb+3}], {c}'))
    return ops


_silu_rot = [0]


def silu_tile_ops(ct, rt):
    b = ACC1 + (ct * 4 + rt) * 4
    t = STMP + 8 * (_silu_rot[0] % 4)
    _silu_rot[0] += 1
    ops = []
    for i in range(4): ops.append(trans(f'v_exp_f32 v{t+i}, v{b+i}'))
    for i in range(4): ops.append(alu(f'v_add_f32 v{t+i}, 1.0, v{t+i}'))
    for i in range(4): ops.append(trans(f'v_rcp_f32 v{t+i}, v{t+i}'))
    for i in range(4): ops.append(alu(f'v_mul_f32 v{t+i}, v{b+i}, v{t+i}'))
    ops.append(alu(f'v_cvt_pk_bf16_f32 v{t+4}, v{t}, v{t+1}'))
    ops.append(alu(f'v_cvt_pk_bf16_f32 v{t+5}, v{t+2}, v{t+3}'))
    if ct < 8:
        ops.append(lds(f'ds_write_b64 v{VH0}, v[{t+4}:{t+5}] offset:{rt*18432 + (ct >> 1)*1024 + (ct & 1)*512}', 'H'))
    else:
        ops.append(lds(f'ds_write_b64 v{VH1}, v[{t+4}:{t+5}] offset:{rt*18432}', 'H'))
    return ops


def kv_pair_ops(e):
    ops = []
    R = list(range(40, 55))
    for i in range(7): ops.append(alu(f'v_accvgpr_read_b32 v{R[i]}, a{KR + 4*i + e//2}'))
    for i in range(4): ops.append(alu(f'v_accvgpr_read_b32 v{R[7+i]}, a{VR + 4*i + e//2}'))
    for i in range(4): ops.append(alu(f'v_accvgpr_read_b32 v{R[11+i]}, a{SK + 2*e + i}'))
    for hi in range(2):
        def up(dst, src):
            ops.append(alu(f'v_and_b32 v{dst}, 0xffff0000, v{src}' if hi else f'v_lshlrev_b32 v{dst}, 16, v{src}'))
        kf = list(range(55, 62)); vf = list(range(62, 66)); sk = [66, 67, 68, 69]; ks = [70, 71, 72, 73]
        for i in range(7): up(kf[i], R[i])
        for i in range(4): up(vf[i], R[7 + i])
        for i in range(2):
            src = R[11 + 2 * hi + i]
            ops.append(alu(f'v_lshlrev_b32 v{sk[2*i]}, 16, v{src}'))
            ops.append(alu(f'v_and_b32 v{sk[2*i+1]}, 0xffff0000, v{src}'))
        for t in range(4): ops.append(alu(f'v_mul_f32 v{ks[t]}, v{kf[t]}, v{sk[3]}'))
        for jx in (2, 1, 0):
            for t in range(4): ops.append(alu(f'v_fmac_f32 v{ks[t]}, v{kf[3+t-jx]}, v{sk[jx]}'))
        for i in (0, 2):
            ops.append(alu(f'v_cvt_pk_bf16_f32 v74, v{ks[i]}, v{ks[i+1]}'))
            ops.append(alu(f'v_lshlrev_b32 v{ks[i]}, 16, v74'))
            ops.append(alu(f'v_and_b32 v{ks[i+1]}, 0xffff0000, v74'))
        for t in range(4): ops.append(alu(f'v_mul_f32 v{ks[t]}, v{ks[t]}, v{vf[t]}'))
        o = 76 + 2 * hi
        ops.append(alu(f'v_cvt_pk_bf16_f32 v{o}, v{ks[3]}, v{ks[2]}'))
        ops.append(alu(f'v_cvt_pk_bf16_f32 v{o+1}, v{ks[1]}, v{ks[0]}'))
        ops.append(lds(f'ds_write_b64 v{VTW}, v[{o}:{o+1}] offset:{144*(e+hi)}', 'T'))
    return ops


def ur_addr_ops():
    ops = []
    ops.append(alu(f's_mul_i32 s95, s{S_J}, {72*4096}'))
    ops.append(alu(f's_lshl_b32 s35, s{S_M}, 7'))
    ops.append(alu('s_sub_u32 s95, s95, s35'))
    ops.append(alu(f's_add_u32 s95, s95, {WS_UR + 1984*2}'))
    for r in range(3):
        ops.append(alu(f'v_add_u32 v60, {256*r}, v0'))
        if r == 2: ops.append(alu('v_min_u32 v60, 575, v60'))
        ops.append(alu('v_lshrrev_b32 v61, 3, v60'))
        ops.append(alu('v_and_b32 v62, 7, v60'))
        ops.append(alu(f'v_mul_u32_u24 v{98+r}, 144, v61'))
        ops.append(alu(f'v_lshl_add_u32 v{98+r}, v62, 4, v{98+r}'))
        ops.append(alu(f'v_add_u32 v{98+r}, {LDS_T}, v{98+r}'))
        ops.append(alu(f'v_lshlrev_b32 v{101+r}, 12, v61'))
        ops.append(alu(f'v_lshl_add_u32 v{101+r}, v62, 4, v{101+r}'))
    return ops


def silu_group_tiles(g):
    cts = [2 * g, 2 * g + 1] if g < 4 else [8]
    return [(ct, rt) for ct in cts for rt in range(4)]


RT = bool(os.environ.get('RT'))


def rts(p, n):
    if RT: p(raw(f's_memrealtime s[{68+2*n}:{69+2*n}]'))


class Stamps:
    def __init__(self, on): self.on = on
    def __call__(self, p, n):
        if self.on: p(raw(f's_memtime s[{68+2*n}:{69+2*n}]'))


_lab = [0]


def poll(p, vdst, vaddr, soff, name):
    _lab[0] += 1
    L = f'POLL{_lab[0]}_{name}'
    p(f's_mov_b32 s47, {SPIN_MAX}')
    p.label(L)
    p(raw(f'buffer_load_dword v{vdst}, v{vaddr}, s[16:19], {soff} offen sc1'))
    p('s_waitcnt vmcnt(0)')
    p(f'v_cmp_ne_u32 vcc, s{S_NONCE}, v{vdst}')
    p('s_nop 3')
    p('s_cmp_eq_u64 vcc, 0')
    p(f's_cbranch_scc1 {L}_X')
    p('s_sub_u32 s47, s47, 1')
    p(f's_cbranch_scc1 {L}_X')
    p('s_sleep 1')
    p(f's_branch {L}')
    p.label(f'{L}_X')


def nonce_check(p, sfx):
    p('s_nop 0')
    p(f'v_readfirstlane_b32 s{S_NONCE}, v89')
    p(f's_cmp_lg_u32 s{S_NONCE}, 0')
    p(f's_cbranch_scc1 K_HAVE_NONCE{sfx}')
    p(f's_mov_b32 s34, {SPIN_MAX}')
    p.label(f'K_NONCE_SPIN{sfx}')
    p('v_mov_b32 v89, 0')
    p(opaque('buffer_load_dword v89, v89, s[44:47], 0 offen sc1'))
    p(opaque('s_waitcnt vmcnt(0)'))
    p(f'v_readfirstlane_b32 s{S_NONCE}, v89')
    p('s_sub_u32 s34, s34, 1')
    p(f's_cbranch_scc1 K_HAVE_NONCE{sfx}')
    p(f's_cmp_lg_u32 s{S_NONCE}, 0')
    p(f's_cbranch_scc1 K_HAVE_NONCE{sfx}')
    p('s_sleep 1')
    p(f's_branch K_NONCE_SPIN{sfx}')
    p.label(f'K_HAVE_NONCE{sfx}')


def publish_ur(p):
    p(f's_cmp_lg_u32 s{S_W}, 0')
    p('s_cbranch_scc1 K_NOFL1')
    p(f's_lshl_b32 s34, s{S_J}, 7')
    p(f's_lshl_b32 s35, s{S_M}, 2')
    p('s_add_u32 s34, s34, s35')
    p(f's_add_u32 s34, s34, {WS_FL + FL_UR}')
    p(f'v_mov_b32 v38, s{S_NONCE}')
    p('v_mov_b32 v39, 0')
    p('s_mov_b64 exec, 1')
    p(raw('buffer_store_dword v38, v39, s[16:19], s34 offen sc1'))
    p('s_mov_b64 exec, -1')
    p.label('K_NOFL1')


KA, VA_, SA = 0, 44, 76


def kv_addr_ops():
    T = []
    A = lambda t: T.append(alu(t))
    A('s_sub_u32 s100, s2, 144')
    A('v_mul_u32_u24 v40, 911, v0')
    A('v_lshrrev_b32 v40, 16, v40')
    A('v_mul_u32_u24 v41, 72, v40')
    A('v_sub_u32 v41, v0, v41')
    A('v_mul_u32_u24 v42, 112, v40')
    A('v_add_u32 v42, s100, v42')
    A('v_cmp_lt_u32 vcc, 255, v42')
    A('v_mov_b32 v43, s100')
    A('v_mul_u32_u24 v44, 7282, v41')
    A('v_cndmask_b32 v42, v42, v43, vcc')
    A('v_cndmask_b32 v40, v40, 0, vcc')
    A('v_lshrrev_b32 v43, 16, v44')
    A('v_mul_u32_u24 v44, 9, v43')
    A('v_sub_u32 v44, v41, v44')
    A('v_lshrrev_b32 v45, 3, v42')
    A('v_lshlrev_b32 v45, 6, v45')
    A('v_lshl_add_u32 v45, v43, 3, v45')
    A('v_and_b32 v46, 7, v42')
    A('v_mul_u32_u24 v46, 144, v46')
    A('v_lshl_add_u32 v46, v44, 4, v46')
    A('v_mul_u32_u24 v47, 1152, v45')
    A('v_add_u32 v47, v47, v46')
    A('v_add_u32 v48, 4608, v47')
    A('v_bfrev_b32 v49, 1')
    for i in range(3):
        A(f'v_add_u32 v{50+i}, {(1152*(i-3)) & 0xffffffff}, v47')
        A(f'v_cmp_gt_u32 vcc, {3-i}, v45')
        A(f'v_mov_b32 v53, v53')
        A(f'v_mov_b32 v53, v53')
        A(f'v_cndmask_b32 v{50+i}, v{50+i}, v49, vcc')
    A('v_lshlrev_b32 v46, 2, v46')
    A('v_mul_u32_u24 v99, 10368, v40')
    A('v_mul_u32_u24 v53, 1152, v44')
    A('v_add_u32 v99, v99, v53')
    A('v_lshlrev_b32 v53, 4, v43')
    A('v_sub_u32 v99, v99, v53')
    A('v_add_u32 v99, 112, v99')
    for r in range(3):
        A(f'v_add_u32 v53, {256*r}, v0')
        if r == 2: A('v_min_u32 v53, 575, v53')
        A('v_lshrrev_b32 v54, 3, v53')
        A('v_and_b32 v53, 7, v53')
        A(f'v_mul_u32_u24 v{100+r}, 144, v54')
        A(f'v_lshl_add_u32 v{100+r}, v53, 4, v{100+r}')
        A(f'v_lshlrev_b32 v{103+r}, 12, v54')
        A(f'v_lshl_add_u32 v{103+r}, v53, 4, v{103+r}')
    return T


def kv_srd_text():
    L = []
    for s_, lo, size in ((56, 6, NB), (60, 40, NB), (64, 42, D * 8)):
        L += [f's_mov_b32 s{s_}, s{lo}', f's_mov_b32 s{s_+1}, s{lo+1}', f's_mov_b32 s{s_+2}, {size}', f's_mov_b32 s{s_+3}, 0x00020000']
    return L


def kv_load_list():
    L = []
    for i in range(3):
        L.append(f'buffer_load_dwordx4 a[{KA+4*i}:{KA+4*i+3}], v{50+i}, s[56:59], 0 offen')
    for i in range(8):
        o = f' offset:{1152*(i&3)}' if i & 3 else ''
        L.append(f'buffer_load_dwordx4 a[{KA+12+4*i}:{KA+12+4*i+3}], v{47 + (i>>2)}, s[56:59], 0 offen{o}')
    for i in range(8):
        o = f' offset:{1152*(i&3)}' if i & 3 else ''
        L.append(f'buffer_load_dwordx4 a[{VA_+4*i}:{VA_+4*i+3}], v{47 + (i>>2)}, s[60:63], 0 offen{o} nt')
    for i in range(4):
        o = f' offset:{16*i}' if i else ''
        L.append(f'buffer_load_dwordx4 a[{SA+4*i}:{SA+4*i+3}], v46, s[64:67], 0 offen{o}')
    return L


def kv_load_block(n):
    L = kv_load_list()[3*n:3*n+3]
    t = ['s_cmp_lt_u32 s2, 144', f's_cbranch_scc1 KVL{n}'] + L
    return Op('\n  '.join(t) + f'\nKVL{n}:', 'opaque')


def gen_kvprep(p):
    p(opaque(f's_waitcnt vmcnt({27 + KV_YOUNGER})'))
    R = list(range(55, 78))
    for e in range(0, 8, 2):
        for i in range(11): p(f'v_accvgpr_read_b32 v{R[i]}, a{KA + 4*i + e//2}')
        for i in range(8): p(f'v_accvgpr_read_b32 v{R[11+i]}, a{VA_ + 4*i + e//2}')
        for i in range(4): p(f'v_accvgpr_read_b32 v{R[19+i]}, a{SA + 2*e + i}')
        for hi in range(2):
            sk = [40, 41, 42, 43]; ks = list(range(184, 192)); o = 196 if hi else 192
            for i in range(2):
                src = R[19 + 2 * hi + i]
                if hi:
                    p(f'v_lshlrev_b32 v{sk[2*i]}, 16, v{src}')
                    p(f'v_and_b32 v{sk[2*i+1]}, 0xffff0000, v{src}')
                else:
                    p(f'v_and_b32 v{sk[2*i]}, 0xffff, v{src}')
                    p(f'v_lshrrev_b32 v{sk[2*i+1]}, 16, v{src}')
            for t in range(8): p(f'v_dot2_f32_bf16 v{ks[t]}, v{R[t]}, v{sk[3]}, 0')
            for jx in (2, 1, 0):
                for t in range(8): p(f'v_dot2_f32_bf16 v{ks[t]}, v{R[3+t-jx]}, v{sk[jx]}, v{ks[t]}')
            for t in range(8):
                p(f'v_and_b32 v{44+t}, 0xffff0000, v{R[11+t]}' if hi else f'v_lshlrev_b32 v{44+t}, 16, v{R[11+t]}')
            for t in range(8): p(f'v_mul_f32 v{ks[t]}, v{ks[t]}, v{44+t}')
            for q in range(4):
                p(f'v_cvt_pk_bf16_f32 v{o+q}, v{ks[7-2*q]}, v{ks[6-2*q]}')
            p(f'ds_write_b128 v99, v[{o}:{o+3}] offset:{144*(e+hi)}')
    p('s_waitcnt lgkmcnt(0)')
    p('s_barrier')
    for k in range(3):
        if k == 2:
            p('s_cmp_ge_u32 s2, 176')
            p('s_cbranch_scc1 KV_NO3')
        p(f's_add_u32 s101, s100, {112*k}')
        p('s_and_b32 s34, s101, 7')
        p(f's_mul_i32 s34, s34, {72*4096}')
        p('s_lshr_b32 s35, s101, 3')
        p('s_lshl_b32 s35, s35, 7')
        p('s_sub_u32 s34, s34, s35')
        p(f's_add_u32 s34, s34, {WS_UR + 1984*2}')
        for r in range(3):
            b = 55 + 1 + 4 * r + 12 * (k & 1)
            p(lds(f'ds_read_b128 v[{b}:{b+3}], v{100+r} offset:{10368*k}', f'T{k}{r}'))
        for r in range(3):
            b = 55 + 1 + 4 * r + 12 * (k & 1)
            p(wait_lgkm(f'T{k}{r}'))
            p(vm(f'buffer_store_dwordx4 v[{b}:{b+3}], v{103+r}, s[16:19], s34 offen sc1', 'UR'))
    p.label('KV_NO3')


def kv_flags(p):
    p('s_cmp_lt_u32 s2, 144')
    p('s_cbranch_scc1 KV_DONE')
    p(f's_cmp_lg_u32 s{S_W}, 0')
    p('s_cbranch_scc1 KV_DONE')
    p('v_mul_u32_u24 v38, 112, v2')
    p('v_add_u32 v38, s100, v38')
    p('v_cmp_lt_u32 vcc, 255, v38')
    p('v_mov_b32 v39, s100')
    p('s_nop 0')
    p('v_cndmask_b32 v38, v38, v39, vcc')
    p('v_and_b32 v39, 7, v38')
    p('v_lshlrev_b32 v39, 7, v39')
    p('v_lshrrev_b32 v38, 3, v38')
    p('v_lshl_add_u32 v38, v38, 2, v39')
    p(f'v_mov_b32 v39, s{S_NONCE}')
    p(f's_mov_b32 s34, {WS_FL + FL_UR}')
    p('s_mov_b64 exec, 7')
    p(raw('buffer_store_dword v39, v38, s[16:19], s34 offen sc1'))
    p('s_mov_b64 exec, -1')
    p.label('KV_DONE')


def gen(timing=False):
    p = Prog()
    st = Stamps(timing)
    p('s_cmp_ge_u32 s2, 256')
    p('s_cbranch_scc1 K_END')
    st(p, 0)
    if timing: p(raw('s_memrealtime s[96:97]'))
    p('s_load_dwordx4 s[4:7], s[0:1], 0')
    p('s_load_dwordx4 s[40:43], s[0:1], 16')
    p('s_load_dwordx4 s[36:39], s[0:1], 32')
    p('s_load_dwordx4 s[44:47], s[0:1], 56')
    p('s_load_dwordx4 s[48:51], s[0:1], 72')
    p('s_load_dwordx2 s[32:33], s[0:1], 88')
    p('s_getpc_b64 s[84:85]')
    p.label('K_PC')
    p('v_lshrrev_b32 v1, 6, v0')
    p('v_and_b32 v2, 63, v0')
    p('s_lshr_b32 s86, s2, 3')
    p('s_lshl_b32 s86, s86, 2')
    p('v_add_u32 v3, s86, v1')
    p('s_mov_b32 s87, (K_CODE_END - K_PC + 8191) / 8192')
    p('v_cvt_f32_u32 v4, v3')
    p('v_cvt_f32_u32 v5, s87')
    p('v_rcp_f32 v5, v5')
    p('v_add_f32 v4, 0.5, v4')
    p('v_mul_f32 v4, v4, v5')
    p('v_cvt_u32_f32 v4, v4')
    p('v_mul_lo_u32 v4, v4, s87')
    p('v_sub_u32 v3, v3, v4')
    p('v_lshlrev_b32 v3, 13, v3')
    p('v_lshl_add_u32 v3, v2, 7, v3')
    p('v_min_u32 v3, K_CODE_END - K_PC - 4, v3')
    p(raw('global_load_dword v98, v3, s[84:85]'))
    p('s_nop 0')
    p(f'v_readfirstlane_b32 s{S_W}, v1')
    lg = {1: 0, 2: 1, 4: 2}[NSH]
    p('s_and_b32 s34, s2, 7')
    p('s_lshr_b32 s35, s2, 3')
    p(f's_lshr_b32 s{S_MI}, s35, {lg}')
    if NSH == 1:
        p(f's_mov_b32 s{S_J}, s34')
        p(f's_mov_b32 s{S_M}, s35')
    else:
        p(f's_lshr_b32 s{S_J}, s34, {lg}')
        p(f's_lshl_b32 s{S_J}, s{S_J}, {lg}')
        p(f's_and_b32 s35, s35, {NSH-1}')
        p(f's_add_u32 s{S_J}, s{S_J}, s35')
        p(f's_and_b32 s34, s34, {NSH-1}')
        p(f's_mul_i32 s{S_M}, s34, {32//NSH}')
        p(f's_add_u32 s{S_M}, s{S_M}, s{S_MI}')
    p(f'v_lshlrev_b32 v{VL16}, 4, v2')
    p(f'v_lshrrev_b32 v{VG}, 4, v2')
    p(f'v_and_b32 v{VN}, 15, v2')
    p('v_and_b32 v106, 7, v2')
    p('v_lshrrev_b32 v107, 3, v2')
    p(f's_lshl_b32 s34, s{S_W}, 4')
    p('v_add_u32 v109, s34, v107')
    p('v_mul_u32_u24 v109, 1152, v109')
    p('v_lshl_add_u32 v109, v106, 4, v109')
    p(f's_mul_i32 s34, s{S_M}, {64*1152}')

    def voffsets(vw, stride):
        p(f'v_lshlrev_b32 v70, 1, v{VG}')
        p(f'v_xor_b32 v70, v{VN}, v70')
        p('v_xor_b32 v71, 8, v70')
        p(f's_lshl_b32 s95, s{S_W}, 8')
        p('v_lshl_add_u32 v70, v70, 4, s95')
        p('v_lshl_add_u32 v71, v71, 4, s95')
        p(f's_mov_b32 s35, {stride}')
        p(f'v_mul_lo_u32 v72, v{VG}, s35')
        p('v_add_u32 v70, v70, v72')
        p('v_add_u32 v71, v71, v72')
        for u in range(8):
            var = 70 if ((u >> 1) & 1) == 0 else 71
            c = 4 * u * stride - 1024 * (u & 3)
            p(f'v_add_u32 v{vw+u}, {c}, v{var}' if c else f'v_mov_b32 v{vw+u}, v{var}')
        p('v_lshrrev_b32 v73, 1, v2')
        p('v_and_b32 v74, 0x13, v73')
        p('v_bfe_u32 v75, v73, 2, 1')
        p('v_lshl_or_b32 v74, v75, 3, v74')
        p('v_bfe_u32 v75, v73, 3, 1')
        p('v_lshl_or_b32 v74, v75, 2, v74')
        p('v_mul_lo_u32 v74, v74, s35')
        p('v_and_b32 v75, 1, v2')
        p('v_lshl_add_u32 v74, v75, 4, v74')
        p(f's_lshl_b32 s95, s{S_W}, 5')
        p('s_add_u32 s95, s95, 1024')
        p(f'v_add_u32 v{vw+8}, s95, v74')

    voffsets(VW1, 9216)
    p(f's_mul_i32 s{S_W1B}, s{S_J}, 1152')
    p(f's_mul_i32 s{S_W2B}, s{S_J}, {576*1152}')
    p(f's_mul_i32 s{S_RING}, s{S_W}, 18432')
    p(f's_add_u32 s{S_RING}, s{S_RING}, {RING}')
    ROWS = 18 * NSH if PFMODE != 'B' else 32
    NPF = 9 * ROWS
    PFR = (NPF + 255) // 256
    for r in range(PFR):
        p(f'v_add_u32 v58, {256*r}, v0')
        p(f'v_min_u32 v58, {NPF-1}, v58')
        p('v_mul_u32_u24 v55, 7282, v58')
        p('v_lshrrev_b32 v55, 16, v55')
        p('v_mul_u32_u24 v56, 9, v55')
        p('v_sub_u32 v56, v58, v56')
        p(f's_mul_i32 s35, s{S_MI}, {ROWS}')
        p('v_add_u32 v55, s35, v55')
        p('v_mul_u32_u24 v55, 9216, v55')
        p(f'v_lshl_add_u32 v{92+r}, v56, 7, v55')
        p(f'v_lshlrev_b32 v{95+r}, 7, v58')
    p('s_mul_i32 s35, s35, 1152')
    p(f's_add_u32 s{S_PF2}, s35, s{S_W2B}')
    p(kv_addr_ops())
    p('s_waitcnt lgkmcnt(0)')
    st(p, 1)
    srd(p, 8, 44, D * F * 2)
    srd(p, 12, 46, D * F * 2)
    srd(p, 44, 50, 256)
    p('v_mov_b32 v89, 0')
    p(f's_or_b32 s35, s2, s{S_W}')
    p('s_cmp_lg_u32 s35, 0')
    p('s_cbranch_scc1 K_NONONCE')
    p(raw('s_memrealtime s[100:101]'))
    p(opaque('s_waitcnt lgkmcnt(0)'))
    p('s_or_b32 s100, s100, 1')
    p('v_mov_b32 v60, s100')
    p('s_mov_b64 exec, 1')
    p(raw('buffer_store_dword v60, v89, s[44:47], 0 offen sc1'))
    p('s_mov_b64 exec, -1')
    p.label('K_NONONCE')
    p('\n'.join(kv_srd_text()))
    if PFMODE in 'CD':
        for r in range(PFR):
            p(vm(f'buffer_load_dword v98, v{92+r}, s[8:11], s{S_W1B} offen', 'PF'))
        if PFMODE == 'C':
            for r in range(PFR):
                p(vm(f'buffer_load_dword v98, v{95+r}, s[12:15], s{S_PF2} offen', 'PF'))
    p('s_cmp_lt_u32 s2, 144')
    p('s_cbranch_scc1 K_NOKVL')
    def early_pf():
        for r in range(PFR):
            p(raw(f'buffer_load_dword v98, v{92+r}, s[8:11], s{S_W1B} offen'))
        if os.environ.get('EPF2', '1') == '1':
            for r in range(PFR):
                p(raw(f'buffer_load_dword v98, v{95+r}, s[12:15], s{S_PF2} offen'))
    KVFIRST = os.environ.get('KVFIRST', '0') == '1'
    if PFMODE == 'A' and not KVFIRST: early_pf()
    for t in kv_load_list(): p(raw(t))
    if PFMODE == 'A' and KVFIRST: early_pf()
    p.label('K_NOKVL')
    p(dma_ops(0))
    srd(p, 52, 4, NB)
    XR = 112
    for ps in range(2):
        if ps: p('s_add_u32 s34, s34, 9216')
        for jj in range(9):
            o = f' offset:{128*jj}' if jj else ''
            b = XR + 36 * ps + 4 * jj
            p(vm(f'buffer_load_dwordx4 v[{b}:{b+3}], v109, s[52:55], s34 offen{o}', f'X{ps}'))
    srd(p, 16, 32, WS_END + (65536 if timing else 0))
    srd(p, 20, 36, D * S * 2)
    voffsets(VW2, 1152)
    p(f'v_lshrrev_b32 v70, 2, v{VN}')
    p('v_and_b32 v71, 3, v2')
    p(f'v_lshl_add_u32 v72, v{VG}, 3, v70')
    p('v_lshlrev_b32 v72, 8, v72')
    p('v_lshlrev_b32 v73, 3, v71')
    p('v_add_u32 v72, v72, v73')
    p(f'v_add_u32 v72, s{S_RING}, v72')
    p(f'v_and_b32 v74, 1, v{VG}')
    p('v_lshlrev_b32 v74, 3, v74')
    p('v_lshl_add_u32 v74, v70, 1, v74')
    for t in range(8):
        p(f'v_xor_b32 v75, {2*t}, v74')
        p(f'v_lshl_add_u32 v{VT+t}, v75, 4, v72')
    p(f'v_lshrrev_b32 v75, 1, v{VG}')
    p('v_lshlrev_b32 v75, 4, v75')
    p(f'v_and_b32 v76, 1, v{VG}')
    p('v_lshl_add_u32 v75, v76, 2, v75')
    p('v_add_u32 v75, v75, v70')
    p('v_lshl_add_u32 v75, v75, 5, v73')
    p(f's_add_u32 s35, s{S_RING}, 8192')
    p(f'v_add_u32 v{VT+8}, s35, v75')
    p(f'v_mov_b32 v{VA0}, v{VL16}')
    p(f'v_add_u32 v{VA1}, 36864, v{VL16}')
    p(f'v_lshlrev_b32 v70, 1, v{VG}')
    p(f'v_xor_b32 v71, v{VN}, v70')
    p(f'v_lshl_add_u32 v71, v{VG}, 4, v71')
    p(f'v_lshlrev_b32 v{VX}, 4, v71')
    p(f'v_xor_b32 v{VX+1}, 16, v{VX}')
    p(f'v_add_u32 v{VX+2}, 36864, v{VX}')
    p(f'v_add_u32 v{VX+3}, 36864, v{VX+1}')
    p(f'v_lshlrev_b32 v75, 4, v{VN}')
    p(f'v_lshrrev_b32 v76, 1, v{VG}')
    p('v_lshl_add_u32 v75, v76, 8, v75')
    p(f'v_and_b32 v76, 1, v{VG}')
    p('v_lshl_add_u32 v75, v76, 3, v75')
    p(f's_lshl_b32 s35, s{S_W}, 12')
    p(f'v_add_u32 v{VH0}, s35, v75')
    p(f's_lshr_b32 s35, s{S_W}, 1')
    p('s_lshl_b32 s35, s35, 10')
    p(f's_and_b32 s34, s{S_W}, 1')
    p('s_lshl_b32 s34, s34, 9')
    p('s_add_u32 s35, s35, s34')
    p('s_add_u32 s35, s35, 16384')
    p(f'v_add_u32 v{VH1}, s35, v75')
    p('v_and_b32 v60, 3, v106')
    p('v_lshrrev_b32 v61, 2, v106')
    p('v_lshl_add_u32 v90, v60, 1, v61')
    p('v_xor_b32 v90, v107, v90')
    p('v_lshlrev_b32 v90, 4, v90')
    p('v_lshl_add_u32 v90, v60, 8, v90')
    p('v_lshl_add_u32 v90, v61, 10, v90')
    p(f's_mul_i32 s34, s{S_W}, 18432')
    p('v_add_u32 v90, s34, v90')
    p(f's_lshl_b32 s34, s{S_W}, 7')
    p(f's_add_u32 s34, s34, {LDS_ST}')
    p('v_lshl_add_u32 v91, v107, 3, s34')
    p(f'v_add_u32 v{VFR}, {LDS_FG}, v{VL16}')
    p(f's_lshl_b32 s34, s{S_W}, 2')
    p(f'v_add_u32 v{VFW}, s34, v{VFR}')
    p('v_mov_b32 v78, 0')
    p(f'ds_write_b32 v{VFW}, v78')
    st(p, 2)
    p('s_cmp_lt_u32 s2, 144')
    p('s_cbranch_scc1 K_NOKV')
    p.ops.append(Op(None, 'push'))
    gen_kvprep(p)
    p('s_waitcnt lgkmcnt(0)')
    p('s_barrier')
    p.ops.append(Op(None, 'pop'))
    p.label('K_NOKV')
    st(p, 3)
    for ps in range(2):
        b0 = XR + 36 * ps
        if ps == 1:
            p(dma_ops(1))
            if PFMODE == 'B':
                p('s_cmp_ge_u32 s2, 144')
                p('s_cbranch_scc1 K_NOPF')
            mk = vm if PFMODE != 'B' else (lambda t, tag: raw(t))
            if PFMODE in 'AB':
                for r in range(PFR):
                    p(mk(f'buffer_load_dword v98, v{92+r}, s[8:11], s{S_W1B} offen', 'PF'))
            if PFMODE in 'ABD':
                for r in range(PFR):
                    p(mk(f'buffer_load_dword v98, v{95+r}, s[12:15], s{S_PF2} offen', 'PF'))
            if PFMODE == 'B':
                p.label('K_NOPF')
            p(vm('buffer_load_dword v89, v89, s[44:47], 0 offen sc1', 'NONCE'))
            st(p, 4)
        p(wait_vm(f'X{ps}'))
        p('s_mov_b32 s35, 0x3f803f80')
        p('v_mov_b32 v64, 0'); p('v_mov_b32 v65, 0'); p('v_mov_b32 v66, 0'); p('v_mov_b32 v67, 0')
        for i in range(36):
            a = 64 + (i & 1)
            p(f'v_dot2_f32_bf16 v{a}, v{b0+i}, s35, v{a}')
            p(f'v_dot2_f32_bf16 v{a+2}, v{b0+i}, v{b0+i}, v{a+2}')
        p('s_nop 2')
        p('v_add_f32 v64, v64, v65')
        p('v_add_f32 v66, v66, v67')
        for ctl in ('quad_perm:[1,0,3,2]', 'quad_perm:[2,3,0,1]', 'row_half_mirror'):
            p('s_nop 1')
            p(f'v_add_f32_dpp v64, v64, v64 {ctl} row_mask:0xf bank_mask:0xf')
            p(f'v_add_f32_dpp v66, v66, v66 {ctl} row_mask:0xf bank_mask:0xf')
        p(f'v_mul_f32 v64, {hex(f32bits(1.0/576))}, v64')
        p(f'v_mul_f32 v66, {hex(f32bits(1.0/576))}, v66')
        p('v_fma_f32 v66, -v64, v64, v66')
        p('v_max_f32 v66, 0, v66')
        round_bf16(p, 66, 66)
        p(f'v_add_f32 v66, {hex(f32bits(1e-5))}, v66')
        round_bf16(p, 66, 66)
        p('v_sqrt_f32 v66, v66')
        p('s_nop 0')
        round_bf16(p, 66, 66)
        p('v_rcp_f32 v68, v66')
        round_bf16(p, 64, 64)
        p('v_mul_f32 v69, v64, v68')
        p('v_sub_f32 v69, 0, v69')
        p(f'v_mul_f32 v74, {hex(LOG2E_NEG)}, v68')
        p(f'v_mul_f32 v75, {hex(LOG2E_NEG)}, v69')
        for jj in range(9):
            for i in range(4):
                r = b0 + 4 * jj + i
                t0 = 70 + 2 * (i & 1)
                p(f'v_lshlrev_b32 v{t0}, 16, v{r}')
                p(f'v_and_b32 v{t0+1}, 0xffff0000, v{r}')
                p(f'v_fma_f32 v{t0}, v{t0}, v74, v75')
                p(f'v_fma_f32 v{t0+1}, v{t0+1}, v74, v75')
                p(f'v_cvt_pk_bf16_f32 v{r}, v{t0}, v{t0+1}')
            p(f'ds_write_b128 v90, v[{b0+4*jj}:{b0+4*jj+3}] offset:{jj*2048 + ps*128}')
        p('v_cmp_eq_u32 vcc, 0, v106')
        p('s_and_saveexec_b64 s[34:35], vcc')
        p(f'ds_write_b64 v91, v[68:69] offset:{64*ps}')
        p('s_mov_b64 exec, s[34:35]')
    st(p, 5)
    rts(p, 0)
    p('s_waitcnt lgkmcnt(0)')
    p('s_barrier')
    p(aread_ops(0))
    p(wait_vm(['W0e', 'W0o']))
    b1, b2 = bread_ops(0)
    p(b1); p(b2)
    p(wait_lgkm(['A0', 'B0a', 'B0b']))
    p(dma_pieces(2, nop=True)[0])
    p(split_vm(dma_pieces(2, nop=True)[1], 2)[0])
    st(p, 6)
    rts(p, 1)

    def put(d, gap, ops):
        d.setdefault(gap, []).extend(ops if isinstance(ops, list) else [ops])

    def place_dma(d, ops, gaps):
        gi = 0
        pend = []
        for o in ops:
            if o.kind == 'vm':
                g = gaps[gi]; gi += 1
                if pend:
                    put(d, g - 1, pend); pend = []
                put(d, g, o)
            else:
                pend.append(o)
        assert not pend

    SPLIT = {1: [3, 3, 2, 0], 2: [3, 3, 2, 0], 3: [3, 3, 2, 0], 4: [2, 2, 0, 0]}
    for idx in range(36):
        nxt = idx + 1
        mf = mfma_ops(idx)
        fx = {}
        if timing:
            sp = 82 + 2 * (idx % 6)
            if idx >= 3:
                so = 82 + 2 * ((idx - 3) % 6)
                p(raw(f'v_writelane_b32 v88, s{so}, {idx-3}'))
            p(raw(f's_memtime s[{sp}:{sp+1}]'))
            if idx == 4:
                for n in range(7): p(raw(f'v_writelane_b32 v88, s{68+2*n}, {40+n}'))
        qpos = (idx - 18) % 4 if idx >= 18 else None
        V = []
        late = False
        if idx == 17:
            late = True
        elif 18 <= idx < 34:
            g = (idx - 18) // 4 + 1
            tiles = silu_group_tiles(g)
            lo_ = sum(SPLIT[g][:qpos])
            for (ct, rt) in tiles[lo_:lo_ + SPLIT[g][qpos]]:
                V += silu_tile_ops(ct, rt)
            late = (qpos == 3)
            if lo_ + SPLIT[g][qpos] == len(tiles) and SPLIT[g][qpos] > 0:
                V += [alu(f'v_mov_b32 v78, {g}'), lds(f'ds_write_b32 v{VFW}, v78', 'HF')]
        if DBG_NOSILU: V = []
        if idx == 32:
            V = V + conv_flag_ops()
        if idx + 2 < 36:
            place_dma(fx, split_vm(dma_pieces(idx + 2)[1], 2)[1], [1, 5])
        if nxt < 36:
            b1, b2 = bread_ops(nxt)
            put(fx, -1, wait_vm(f'W{nxt}e'))
            for g_, o in zip([0, 0, 2, 2, 3, 3, 4, 4, 6, 6], b1):
                put(fx, g_, o)
            put(fx, 7, wait_vm(f'W{nxt}o'))
            for g_, o in zip([7, 7, 8, 8, 10, 10, 11, 11], b2):
                put(fx, g_, o)
            put(fx, 8, wait_lgkm(f'B{nxt}a'))
            put(fx, 16, wait_lgkm(f'B{nxt}b'))
            if not late:
                for g_, o in zip([12, 14, 15, 16], aread_ops(nxt)):
                    put(fx, g_, o)
                put(fx, 35, wait_lgkm(f'A{nxt}'))
        if idx + 3 < 36:
            ev, od = dma_pieces(idx + 3)
            place_dma(fx, ev, [9, 13, 17, 21, 25])
            place_dma(fx, split_vm(od, 2)[0], [29, 33])
        if idx == 17:
            put(fx, 12, alu('s_barrier'))
            put(fx, 13, [alu('s_lshl_b32 s40, s2, 2'), alu(f's_add_u32 s40, s40, s{S_W}'), alu('s_min_u32 s40, s40, 575'), alu('s_lshl_b32 s41, s40, 12')])
            put(fx, 14, [alu('v_and_b32 v79, 31, v2'), alu('v_lshlrev_b32 v79, 7, v79')])
            put(fx, 34, vm('buffer_load_dword v98, v79, s[20:23], s41 offen', 'PF'))
            sil = []
            for (ct, rt) in silu_group_tiles(0):
                sil += silu_tile_ops(ct, rt)
            nsil = 23 * 4
            p(place2(mf, fx, sil[:nsil], 13, 36))
            p(sil[nsil:])
            p(raw('s_waitcnt vmcnt(9)'))
            p(wait_lgkm('H')); p('s_barrier')
            kv_flags(p)
            p(aread_ops(18)); p(wait_lgkm('A18'))
            continue
        if late:
            g = (idx - 18) // 4 + 1
            put(fx, 18, lds(f'ds_read_b128 v[72:75], v{VFR}', f'FR{idx}'))
            chk = ['v_min3_u32 v72, v72, v73, v74', 'v_min_u32 v72, v72, v75', 's_nop 0', 'v_readfirstlane_b32 s34, v72', 's_nop 1',
                   f's_cmp_ge_u32 s34, {g}', f's_cbranch_scc1 FG{idx}_OK', f'FG{idx}_SPIN:', f'ds_read_b128 v[72:75], v{VFR}', 's_waitcnt lgkmcnt(0)',
                   'v_min3_u32 v72, v72, v73, v74', 'v_min_u32 v72, v72, v75', 's_nop 0', 'v_readfirstlane_b32 s34, v72', 's_nop 1',
                   f's_cmp_lt_u32 s34, {g}', f's_cbranch_scc1 FG{idx}_SPIN', f'FG{idx}_OK:']
            put(fx, 24, [wait_lgkm(f'FR{idx}'), Op('\n  '.join(chk), 'opaque')])
            for g_, o in zip([26, 27, 28, 30], aread_ops(nxt)):
                put(fx, g_, o)
            put(fx, 35, wait_lgkm(f'A{nxt}'))
            p(place2(mf, fx, V, 0, 18))
            continue
        if idx == 34:
            conv_check(p)
        extra = []
        if idx in (34, 35):
            cp = conv_prefetch_ops()
            c1, c2 = split_vm(cp, 9)
            extra = c1 if idx == 34 else c2
        if extra:
            p(place2(mf, fx, extra, 2, 36))
        else:
            p(place2(mf, fx, V, 0, 36))
        if idx == 9:
            p(wait_vm('NONCE'))
            nonce_check(p, 'M')
    st(p, 7)
    rts(p, 2)
    if timing:
        p('s_waitcnt lgkmcnt(0)')
        for idx in range(33, 36):
            so = 82 + 2 * (idx % 6)
            p(raw(f'v_writelane_b32 v88, s{so}, {idx}'))
        p(raw('v_writelane_b32 v88, s82, 36'))
        p('v_accvgpr_write_b32 a255, v88')
    p(f's_mul_i32 s31, s{S_J}, {NB}')
    p(f's_lshl_b32 s34, s{S_M}, 2')
    p(f's_add_u32 s34, s34, s{S_W}')
    p('s_mul_i32 s34, s34, 18432')
    p('s_add_u32 s31, s31, s34')
    p(f's_add_u32 s31, s31, {WS_P}')
    p('s_cmp_lt_u32 s2, 144')
    p('s_cbranch_scc1 K_CONV')
    p.ops.append(Op(None, 'push'))
    p('s_nop 7')
    p(partial_store_ops())
    p.ops.append(Op(None, 'pop'))
    if timing: p(raw('s_memtime s[70:71]'))
    p('s_branch K_NOCONV')
    p.label('K_CONV')
    gen_conv(p, timing)
    p.label('K_NOCONV')
    p('s_waitcnt vmcnt(0) lgkmcnt(0)')
    p('s_barrier')
    p(f's_cmp_lg_u32 s{S_W}, 0')
    p('s_cbranch_scc1 K_NOFL2')
    p(f's_lshl_b32 s34, s{S_M}, 7')
    p(f's_lshl_b32 s35, s{S_J}, 2')
    p('s_add_u32 s34, s34, s35')
    p(f's_add_u32 s34, s34, {WS_FL + FL_P}')
    p(f'v_mov_b32 v38, s{S_NONCE}')
    p('v_mov_b32 v39, 0')
    p('s_mov_b64 exec, 1')
    p(raw('buffer_store_dword v38, v39, s[16:19], s34 offen sc1'))
    p('s_cmp_ge_u32 s2, 144')
    p('s_cbranch_scc1 K_NOFL2Y')
    p('s_lshl_b32 s34, s2, 2')
    p(f's_add_u32 s34, s34, {WS_FL + FL_Y}')
    p(raw('buffer_store_dword v38, v39, s[16:19], s34 offen sc1'))
    p.label('K_NOFL2Y')
    p('s_mov_b64 exec, -1')
    p.label('K_NOFL2')
    if timing:
        p(raw('s_memtime s[72:73]'))
        p(raw('s_memrealtime s[78:79]'))
    rts(p, 3)
    gen_final(p, timing)
    rts(p, 5)
    if timing:
        p('s_waitcnt vmcnt(0) lgkmcnt(0)')
        p(raw('s_memtime s[76:77]'))
        p(raw('s_memrealtime s[98:99]'))
        p('s_waitcnt lgkmcnt(0)')
        p('v_mov_b32 v4, s96'); p('v_mov_b32 v5, s78'); p('v_mov_b32 v6, s80'); p('v_mov_b32 v7, s98')
        p('v_mov_b32 v8, 0')
        p('s_lshl_b32 s34, s2, 4')
        p(f's_add_u32 s34, s34, {WS_DBG + 4096}')
        p(f's_cmp_lg_u32 s{S_W}, {os.environ.get("TW", "0")}')
        p('s_cbranch_scc1 K_END')
        p('s_mov_b64 exec, 1')
        p('buffer_store_dwordx4 v[4:7], v8, s[16:19], s34 offen')
        p('s_mov_b64 exec, -1')
        p('s_mov_b32 s52, 0')
        p('s_cmp_eq_u32 s2, 0')
        p('s_cbranch_scc1 K_STAMP')
        p('s_mov_b32 s52, 512')
        p('s_cmp_eq_u32 s2, 200')
        p('s_cbranch_scc0 K_END')
        p.label('K_STAMP')
        p(f's_add_u32 s52, s52, {WS_DBG}')
        p('v_accvgpr_read_b32 v3, a255')
        p('s_nop 1')
        p('v_subrev_u32 v3, s68, v3')
        p('v_and_b32 v4, 63, v0')
        p('v_lshlrev_b32 v4, 2, v4')
        p('buffer_store_dword v3, v4, s[16:19], s52 offen')
        for n in range(1, 13):
            p(f's_sub_u32 s53, s{68+2*n}, s68')
            p('v_mov_b32 v1, s53')
            p(f'v_mov_b32 v2, {256+4*n}')
            p('buffer_store_dword v1, v2, s[16:19], s52 offen')
    if RT:
        p('s_waitcnt vmcnt(0) lgkmcnt(0)')
        p(f's_cmp_lg_u32 s{S_W}, 0')
        p('s_cbranch_scc1 K_END')
        p('s_mov_b32 s52, 16')
        p('s_cmp_eq_u32 s2, 0')
        p('s_cbranch_scc1 K_RT')
        p('s_mov_b32 s52, 40')
        p('s_cmp_eq_u32 s2, 200')
        p('s_cbranch_scc0 K_END')
        p.label('K_RT')
        srd(p, 44, 50, 256)
        p('s_mov_b64 exec, 1')
        for n in range(6):
            p(f's_sub_u32 s53, s{68+2*n}, s{S_NONCE}')
            p('v_mov_b32 v4, s53'); p(f'v_mov_b32 v5, {4*n}')
            p('buffer_store_dword v4, v5, s[44:47], s52 offen')
        p('s_mov_b64 exec, -1')
    if os.environ.get('SPAN'):
        p('s_waitcnt vmcnt(0) lgkmcnt(0)')
        p(raw('s_memrealtime s[98:99]'))
        p('s_waitcnt lgkmcnt(0)')
        p(f's_sub_u32 s98, s98, s{S_NONCE}')
        srd(p, 44, 50, 256)
        p('v_mov_b32 v4, s98'); p('v_mov_b32 v5, 8')
        p('s_mov_b64 exec, 1')
        p('buffer_atomic_umax v4, v5, s[44:47], 0 offen')
        p('s_mov_b64 exec, -1')
    p.label('K_END')
    p('s_endpgm')
    p.label('K_CODE_END')
    return p


def partial_store_ops():
    ops = []
    k = 0
    for pr in range(2):
        for ct in range(9):
            t = STMP + 12 * (k % 3)
            for hh in range(2):
                b = (ct * 4 + 2 * pr + hh) * 4
                for i in range(4):
                    ops.append(alu(f'v_accvgpr_read_b32 v{t+4*hh+i}, a{b+i}'))
            q = t + 8
            ops.append(alu(f'v_cvt_pk_bf16_f32 v{q}, v{t}, v{t+1}'))
            ops.append(alu(f'v_cvt_pk_bf16_f32 v{q+1}, v{t+2}, v{t+3}'))
            ops.append(alu(f'v_cvt_pk_bf16_f32 v{q+2}, v{t+4}, v{t+5}'))
            ops.append(alu(f'v_cvt_pk_bf16_f32 v{q+3}, v{t+6}, v{t+7}'))
            if k % 4 == 0:
                ops.append(alu(f's_add_u32 s35, s31, {k*1024}'))
            off = f' offset:{1024*(k & 3)}' if k & 3 else ''
            ops.append(vm(f'buffer_store_dwordx4 v[{q}:{q+3}], v{VL16}, s[16:19], s35 offen{off} {PST}', 'P'))
            k += 1
    return ops


def conv_flag_ops():
    ops = []
    ops.append(alu('s_mul_i32 s42, s2, 3641'))
    ops.append(alu('s_lshr_b32 s42, s42, 16'))
    ops.append(alu('s_lshl_b32 s42, s42, 7'))
    ops.append(alu(f's_add_u32 s42, s42, {WS_FL + FL_UR}'))
    ops.append(alu('s_lshl_b32 s40, s2, 2'))
    ops.append(alu(f's_add_u32 s40, s40, s{S_W}'))
    ops.append(alu('s_min_u32 s40, s40, 575'))
    ops.append(alu('s_lshl_b32 s41, s40, 12'))
    ops.append(alu('v_and_b32 v86, 31, v2'))
    ops.append(alu('v_lshlrev_b32 v86, 2, v86'))
    ops.append(vm('buffer_load_dword v87, v86, s[16:19], s42 offen sc1', 'URF'))
    return ops


def conv_check(p):
    p(wait_vm('URF'))
    p('s_cmp_ge_u32 s2, 144')
    p('s_cbranch_scc1 K_UR_OK')
    p(f'v_cmp_ne_u32 vcc, s{S_NONCE}, v87')
    p('s_nop 3')
    p('s_cmp_eq_u64 vcc, 0')
    p('s_cbranch_scc1 K_UR_OK')
    p.ops.append(Op(None, 'push'))
    poll(p, 87, 86, 's42', 'UR')
    p.ops.append(Op(None, 'pop'))
    p.label('K_UR_OK')


def conv_prefetch_ops():
    ops = []
    ops.append(alu(f's_add_u32 s42, s41, {WS_UR}'))
    for q in range(4):
        off = f' offset:{1024*q}' if q else ''
        ops.append(vm(f'buffer_load_dwordx4 v[{PU+4*q}:{PU+4*q+3}], v{VL16}, s[16:19], s42 offen{off} sc1', 'CU'))
    ops.append(alu(f'v_add_u32 v38, s41, v{VL16}'))
    ops.append(alu('v_subrev_u32 v39, 32, v38'))
    ops.append(alu('v_max_i32 v39, 0, v39'))
    ops.append(alu('v_add_u32 v38, 992, v38'))
    for d, base in ((0, P0), (4, P1), (8, P2)):
        ops.append(vm(f'buffer_load_dwordx4 v[{base}:{base+3}], v39, s[20:23], 0 offen offset:{d}', 'CP'))
        for q in range(1, 5):
            ops.append(vm(f'buffer_load_dwordx4 v[{base+4*q}:{base+4*q+3}], v38, s[20:23], 0 offen offset:{1024*(q-1)+d}', 'CP'))
    return ops


CA, CB = 144, 188
VQA, VQB = 76, 77


def gen_conv(p, timing):
    p('s_and_b32 s43, s40, 0xfffe')
    p('s_lshl_b32 s43, s43, 1')
    p('s_load_dword s44, s[38:39], s43')
    p('s_barrier')
    p(f's_mul_i32 s45, s{S_W}, {CONV_STRIDE}')
    p(wait_vm('CP'))
    p(f'v_readlane_b32 s46, v{P0}, 2')
    p(f'v_readlane_b32 s47, v{P0+1}, 2')
    p('s_mov_b64 exec, 3')
    for base in (P0, P1, P2):
        for i in range(4):
            p(f'v_mov_b32 v{base+i}, 0')
    p('s_mov_b64 exec, -1')
    p(f'v_writelane_b32 v{P1+3}, s46, 1')
    p(f'v_writelane_b32 v{P2+2}, s46, 1')
    p(f'v_writelane_b32 v{P2+3}, s47, 1')
    p(f'v_add_u32 v38, s45, v{VL16}')
    T = 40
    for q in range(5):
        p(f'ds_write_b128 v38, v[{P0+4*q}:{P0+4*q+3}] offset:{1024*q}')
        t = T + 8 * (q % 2)
        for i in range(4):
            p(f'v_alignbit_b32 v{t+i}, v{P1+4*q+i}, v{P0+4*q+i}, 16')
        p(f'ds_write_b128 v38, v[{P1+4*q}:{P1+4*q+3}] offset:{2*CONV_COPY + 1024*q}')
        for i in range(4):
            p(f'v_alignbit_b32 v{t+4+i}, v{P2+4*q+i}, v{P1+4*q+i}, 16')
        p(f'ds_write_b128 v38, v[{t}:{t+3}] offset:{CONV_COPY + 1024*q}')
        p(f'ds_write_b128 v38, v[{t+4}:{t+7}] offset:{3*CONV_COPY + 1024*q}')
    for i in range(4):
        p(f'v_mov_b32 v{60+i}, 0')
    p(f'ds_write_b128 v38, v[60:63] offset:{CONV_UR + 4096}')
    p(f'v_add_u32 v39, 1, v{VN}')
    p(f'v_and_b32 v{VQA}, 3, v39')
    p(f'v_mul_u32_u24 v{VQA}, {CONV_COPY}, v{VQA}')
    p('v_and_b32 v57, 0x1c, v39')
    p(f'v_lshl_add_u32 v{VQA}, v57, 1, v{VQA}')
    p(f'v_lshl_add_u32 v{VQA}, v{VG}, 4, v{VQA}')
    p(f'v_add_u32 v{VQA}, s45, v{VQA}')
    p(f'v_lshlrev_b32 v{VQB}, 5, v{VN}')
    p(f'v_lshlrev_b32 v58, 4, v{VG}')
    p(f'v_sub_u32 v{VQB}, v58, v{VQB}')
    p(f's_add_u32 s46, s45, {CONV_UR + 4064 - 3584}')
    p(f'v_add_u32 v{VQB}, s46, v{VQB}')
    p(wait_vm('CU'))
    for q in range(4):
        p(f'ds_write_b128 v38, v[{PU+4*q}:{PU+4*q+3}] offset:{CONV_UR + 1024*q}')
    p('s_waitcnt lgkmcnt(0)')
    if timing: p(raw('s_memtime s[70:71]'))

    def reads(r):
        st_ = r & 1
        ops = []
        for k in range(8):
            a = CA + 32 * st_ + 4 * k
            b = CB + 32 * st_ + 4 * k
            ops.append(lds(f'ds_read_b64 a[{a}:{a+1}], v{VQA} offset:{512*k + 64*r}', f'C{r}'))
            ops.append(lds(f'ds_read_b64 a[{a+2}:{a+3}], v{VQA} offset:{512*k + 64*r + 8}', f'C{r}'))
            ops.append(lds(f'ds_read_b128 v[{b}:{b+3}], v{VQB} offset:{512*(7-k) + 64*r}', f'C{r}'))
        return ops

    pst = partial_store_ops()
    per = (len(pst) + 5) // 6
    p(reads(0))
    for r in range(8):
        st_ = r & 1
        mf = []
        for nt in range(8):
            for ap in range(nt + 1):
                a = CA + 32 * st_ + 4 * ap
                b = CB + 32 * st_ + 4 * (nt - ap)
                d = CACC + 4 * nt
                c = '0' if (r == 0 and ap == 0) else f'v[{d}:{d+3}]'
                mf.append((nt, ap, mfma(f'v_mfma_f32_16x16x32_bf16 v[{d}:{d+3}], a[{a}:{a+3}], v[{b}:{b+3}], {c}')))
        mf.sort(key=lambda x: (x[1], x[0]))
        mf = [x[2] for x in mf]
        p(wait_lgkm(f'C{r}'))
        fx = {}
        if r < 7:
            for i, o in enumerate(reads(r + 1)):
                fx.setdefault(i, []).append(o)
        fl = pst[r * per:(r + 1) * per]
        if timing and r in (1, 3, 5): p(raw(f's_memtime s[{84 + (r-1)}:{85 + (r-1)}]'))
        p(place2(mf, fx, fl, 0, 36))
    if timing: p(raw('s_memtime s[90:91]'))
    p('s_waitcnt lgkmcnt(0)')
    p('s_and_b32 s43, s40, 1')
    p('s_lshl_b32 s43, s43, 4')
    p('s_lshr_b32 s44, s44, s43')
    p('s_lshl_b32 s44, s44, 16')
    p(f'v_lshlrev_b32 v58, 5, v{VN}')
    p(f'v_lshl_add_u32 v58, v{VG}, 3, v58')
    p(f's_add_u32 s46, s45, {CONV_UR + 4088 - 512*7}')
    p('v_sub_u32 v59, s46, v58')
    for nt in range(8):
        p(lds(f'ds_read_b64 v[{112+2*nt}:{113+2*nt}], v59 offset:{512*(7-nt)}', 'U'))
    p(f's_mul_i32 s46, s{S_W}, 4160')
    p(f's_add_u32 s46, s46, {CONV_YT}')
    p('v_add_u32 v59, s46, v58')
    p('s_nop 7')
    p(wait_lgkm('U'))
    for nt in range(8):
        d = CACC + 4 * nt
        u0, u1 = 112 + 2 * nt, 113 + 2 * nt
        t = [64, 65, 66, 67]
        p(f'v_and_b32 v{t[0]}, 0xffff0000, v{u1}')
        p(f'v_lshlrev_b32 v{t[1]}, 16, v{u1}')
        p(f'v_and_b32 v{t[2]}, 0xffff0000, v{u0}')
        p(f'v_lshlrev_b32 v{t[3]}, 16, v{u0}')
        for i in range(4): p(f'v_fma_f32 v{d+i}, v{t[i]}, s44, v{d+i}')
        o = 68 + 2 * (nt % 2)
        p(f'v_cvt_pk_bf16_f32 v{o}, v{d}, v{d+1}')
        p(f'v_cvt_pk_bf16_f32 v{o+1}, v{d+2}, v{d+3}')
        p(f'ds_write_b64 v59, v[{o}:{o+1}] offset:{512*nt}')
    p(f'v_lshrrev_b32 v58, 2, v{VN}')
    p('v_mul_u32_u24 v58, 4160, v58')
    p('v_and_b32 v59, 3, v2')
    p('v_lshl_add_u32 v58, v59, 3, v58')
    p(f'v_lshl_add_u32 v58, v{VG}, 5, v58')
    p(f's_lshl_b32 s46, s{S_W}, 10')
    p(f's_add_u32 s46, s46, {CONV_YT}')
    p('v_add_u32 v58, s46, v58')
    p('v_lshlrev_b32 v59, 3, v2')
    p('s_lshl_b32 s46, s2, 14')
    p(f's_lshl_b32 s47, s{S_W}, 12')
    p('s_add_u32 s46, s46, s47')
    p(f's_add_u32 s46, s46, {WS_Y}')
    p('s_waitcnt lgkmcnt(0)')
    p('s_barrier')
    for k in range(8):
        p(lds(f'ds_read_b64_tr_b16 v[{112+2*k}:{113+2*k}], v58 offset:{128*k}', f'YT{k}'))
    for k in range(8):
        p(wait_lgkm(f'YT{k}'))
        p(f'buffer_store_dwordx2 v[{112+2*k}:{113+2*k}], v59, s[16:19], s46 offen offset:{512*k} sc1')
    if timing: p(raw('s_memtime s[92:93]'))


def gen_final(p, timing):
    srd(p, 52, 4, NB)
    srd(p, 56, 48, NB)
    p(f's_lshr_b32 s60, s{S_J}, 1')
    p(f's_and_b32 s61, s{S_J}, 1')
    p(f's_lshl_b32 s62, s{S_M}, 7')
    p(f's_add_u32 s62, s62, {FL_P}')
    p('v_lshlrev_b32 v40, 2, v2')
    p('v_add_u32 v41, s62, v40')
    p('s_lshl_b32 s63, s60, 7')
    p(f's_add_u32 s63, s63, {FL_Y - 32}')
    p('v_add_u32 v42, s63, v40')
    p('s_lshl_b32 s63, s60, 4')
    p(f's_add_u32 s63, s63, {FL_Y + 512 - 160}')
    p('v_add_u32 v43, s63, v40')
    p('v_cmp_gt_u32 vcc, 8, v2')
    p('s_nop 1')
    p('v_cndmask_b32 v42, v42, v41, vcc')
    p('v_cmp_lt_u32 vcc, 39, v2')
    p('s_nop 1')
    p('v_cndmask_b32 v42, v42, v43, vcc')
    p('v_mov_b32 v43, s62')
    p('v_cmp_lt_u32 vcc, 43, v2')
    p('s_nop 1')
    p('v_cndmask_b32 v42, v42, v43, vcc')
    p(f's_mov_b32 s63, {WS_FL}')
    p(f's_lshl_b32 s34, s{S_M}, 6')
    p('s_lshl_b32 s35, s61, 5')
    p('s_add_u32 s34, s34, s35')
    p(f'v_add_u32 v6, s34, v{VN}')
    p('s_lshl_b32 s35, s61, 8')
    p(f's_add_u32 s35, s35, {LDS_ST}')
    p(f'v_lshl_add_u32 v7, v{VN}, 3, s35')
    p(lds('ds_read_b64 v[60:61], v7', 'ST'))
    p(lds('ds_read_b64 v[62:63], v7 offset:128', 'ST'))
    p(f's_lshl_b32 s34, s{S_M}, 3')
    p(f's_add_u32 s34, s34, s{S_J}')
    p('s_mul_i32 s34, s34, 9216')
    p(f's_add_u32 s34, s34, {WS_P}')
    NR = 3
    XA, YA, PA = 112, 124, 136
    for r in range(NR):
        p(f's_add_u32 s{64+r}, s{S_W}, {4*r}')
        p(f's_min_u32 s{64+r}, s{64+r}, 8')
        p('s_lshl_b32 s35, s60, 7')
        p(f's_lshl_b32 s40, s{64+r}, 4')
        p('s_add_u32 s35, s35, s40')
        p('s_lshl_b32 s40, s60, 4')
        p('s_add_u32 s40, s40, 512')
        p(f's_cmp_lt_u32 s{64+r}, 8')
        p('s_cselect_b32 s35, s35, s40')
        p(f'v_lshl_add_u32 v{8+r}, v{VG}, 2, s35')
        p(f'v_mul_u32_u24 v{12+r}, 1152, v6')
        p(f'v_lshl_add_u32 v{12+r}, v{8+r}, 1, v{12+r}')
        p(f'v_add_u32 v{16+r}, {16*1152}, v{12+r}')
        p(vm(f'buffer_load_dwordx2 v[{XA+4*r}:{XA+4*r+1}], v{12+r}, s[52:55], 0 offen', f'FX{r}'))
        p(vm(f'buffer_load_dwordx2 v[{XA+4*r+2}:{XA+4*r+3}], v{16+r}, s[52:55], 0 offen', f'FX{r}'))
        p(f'v_lshrrev_b32 v{20+r}, 2, v{8+r}')
        p(f'v_lshlrev_b32 v{20+r}, 14, v{20+r}')
        p(f'v_lshl_add_u32 v{20+r}, v6, 3, v{20+r}')
    p(f's_cmp_lg_u32 s{S_W}, 0')
    p('s_cbranch_scc1 K_FIN_GO')
    p.ops.append(Op(None, 'push'))
    poll(p, 44, 42, 's63', 'FIN')
    p.ops.append(Op(None, 'pop'))
    p.label('K_FIN_GO')
    p('s_barrier')
    rts(p, 4)
    if timing:
        p(raw('s_memtime s[74:75]'))
        p(raw('s_memrealtime s[80:81]'))
    p(f's_mov_b32 s41, {WS_Y}')
    for r in range(NR):
        p(f's_lshl_b32 s35, s{64+r}, 10')
        p('s_add_u32 s35, s35, s34')
        for j in range(8):
            b = PA + 32 * r + 4 * j
            p(vm(f'buffer_load_dwordx4 v[{b}:{b+3}], v{VL16}, s[16:19], s35 offen {PLD}', f'FP{r}_{j}'))
            if j != 7:
                p(f's_add_u32 s35, s35, {NB}')
        p(vm(f'buffer_load_dwordx2 v[{YA+4*r}:{YA+4*r+1}], v{20+r}, s[16:19], s41 offen sc1', f'FY{r}'))
        p(vm(f'buffer_load_dwordx2 v[{YA+4*r+2}:{YA+4*r+3}], v{20+r}, s[16:19], s41 offen offset:128 sc1', f'FY{r}'))
        if r == 1:
            p(f's_cmp_lg_u32 s{S_W}, 0')
            p('s_cbranch_scc1 K_FIN_L2')
            p.ops.append(Op(None, 'push'))
        if r == 2:
            p.ops.append(Op(None, 'pop'))
            p.label('K_FIN_L2')
    p('s_mov_b32 s40, 0x00003f80')
    p('s_mov_b32 s41, 0x3f800000')
    p(wait_lgkm('ST'))
    for i in range(4): p(f'v_mul_f32 v{60+i}, {hex(f32bits(-0.6931471805599453))}, v{60+i}')
    O = list(range(64, 72))
    for r in range(NR):
        if r == 2:
            p(f's_cmp_lg_u32 s{S_W}, 0')
            p('s_cbranch_scc1 K_FIN_DONE')
            p(opaque('s_waitcnt vmcnt(0)'))
        b0 = PA + 32 * r
        p(wait_vm(f'FP{r}_0'))
        for k in range(4):
            unpack(p, O[2*k], O[2*k+1], b0 + k)
        for j in range(1, 8):
            p(wait_vm(f'FP{r}_{j}'))
            for k in range(4):
                p(f'v_dot2_f32_bf16 v{O[2*k]}, v{b0+4*j+k}, s40, v{O[2*k]}')
                p(f'v_dot2_f32_bf16 v{O[2*k+1]}, v{b0+4*j+k}, s41, v{O[2*k+1]}')
        p('s_nop 2')
        T_ = list(range(74, 82))
        for i in range(8): p(f'v_exp_f32 v{T_[i]}, v{O[i]}')
        p('s_nop 0')
        for i in range(8): p(f'v_add_f32 v{T_[i]}, 1.0, v{T_[i]}')
        for i in range(8): p(f'v_rcp_f32 v{T_[i]}, v{T_[i]}')
        p('s_nop 0')
        for i in range(8): p(f'v_mul_f32 v{O[i]}, v{O[i]}, v{T_[i]}')
        p(wait_vm([f'FY{r}', f'FX{r}']))
        for h in range(2):
            xs = [82, 83, 84, 85]; ys = [86, 87, 88, 89]; xn = [90, 91, 92, 93]
            unpack(p, xs[0], xs[1], XA + 4 * r + 2 * h); unpack(p, xs[2], xs[3], XA + 4 * r + 2 * h + 1)
            unpack(p, ys[0], ys[1], YA + 4 * r + 2 * h); unpack(p, ys[2], ys[3], YA + 4 * r + 2 * h + 1)
            for i in range(4): p(f'v_fma_f32 v{xn[i]}, v{xs[i]}, v{60+2*h}, v{61+2*h}')
            for i in range(4): p(f'v_mul_f32 v{xn[i]}, v{xn[i]}, v{ys[i]}')
            for i in range(4): p(f'v_fma_f32 v{xn[i]}, v{xn[i]}, v{O[4*h+i]}, v{xs[i]}')
            o = 94 + 2 * h
            p(f'v_cvt_pk_bf16_f32 v{o}, v{xn[0]}, v{xn[1]}')
            p(f'v_cvt_pk_bf16_f32 v{o+1}, v{xn[2]}, v{xn[3]}')
            p(raw(f'buffer_store_dwordx2 v[{o}:{o+1}], v{(12 if h == 0 else 16)+r}, s[56:59], 0 offen {OST}'))
    p.label('K_FIN_DONE')


def build(timing=False):
    _silu_rot[0] = 0
    k = gen(timing)
    txt = HEADER
    txt += '; @launch grid=(256,1,1) block=(256,1,1) lds=163840\n'
    txt += '.amdgcn_target "amdgcn-amd-amdhsa--gfx950"\n'
    txt += kernel_head(KNAME) + k.resolve()
    txt += kernel_descriptor(KNAME, 512, 102, 256)
    return txt


if __name__ == '__main__':
    timing = '--timing' in sys.argv
    out = [a for a in sys.argv[1:] if not a.startswith('--')]
    open(out[0] if out else 'cdna_kernels/' + NAME + '.s', 'w').write(build(timing))
```

```python
import os
import sys
sys.path.insert(0, 'exp')
from asmgen import *

NAME = 'recurrent_scan__ssm_conv_h3__dense_activation_silu__prompt'
KNAME = NAME + '_kernel'
S, D, F = 2048, 576, 4608
NB = S * D * 2
WS_UR = 0
WS_Y = NB
WS_FL = 2 * NB
FL_UR, FL_P, FL_Y = 0, 1024, 1024 + 4096
WS_P = 2 * NB + 65536
WS_END = WS_P + 8 * NB
WS_DBG = WS_END
LOG2E_NEG = 0xbfb8aa3b
HEADER = open('cdna_kernels/' + NAME + '.s.ref').read().split('; Override launch')[0]

ORDER2 = [0, 4, 8, 12, 1, 5, 9, 13, 2, 6, 10, 14, 3, 7, 11, 15, 16, 17]
RING = 73728
SPARE = 147456
LDS_T = SPARE
LDS_ST = SPARE + 12288
LDS_FG = SPARE + 13312
VFW, VFR = 110, 111
ACC1 = 112
BSET = 144
ASET = 216
VW1, VW2, VT = 4, 13, 22
VA0, VA1 = 31, 32
VH0, VH1 = 33, 34
VL16 = 35
VG, VN = 36, 37
VX = 80
STMP = 40
S_W, S_J, S_M = 24, 25, 26
S_SOFF, S_RING, S_W1B, S_W2B, S_SOFF2 = 27, 28, 29, 30, 31
S_NONCE = 94
S_PF2 = 92
S_MI = 23 + 70
PST = os.environ.get('PST', 'sc1')
PLD = os.environ.get('PLD', 'sc1')
KVPF = os.environ.get('KVPF', '1') == '1'
OST = os.environ.get('OST', '')
KV_YOUNGER = (0 if os.environ.get('KVFIRST', '0') != '1' else (2 if os.environ.get('EPF2', '1') == '1' else 1))
PFMODE = os.environ.get('PFMODE', 'A')
NSH = int(os.environ.get('NSH', '1'))
KR, VR, SK = 0, 28, 44
VTW = 84
CONV_STRIDE = 25856
CONV_COPY = 5184
CONV_UR = 4 * CONV_COPY
CONV_YT = 4 * CONV_STRIDE
P0, P1, P2, PU = 112, 132, 152, 172
CACC = 80
SPIN_MAX = 1 << 20

DBG_NOSILU = 'NOSILU' in os.environ


def f32bits(x):
    import struct
    return struct.unpack('<I', struct.pack('<f', x))[0]


def srd(p, s, lo, size):
    p(f's_mov_b32 s{s}, s{lo}')
    p(f's_mov_b32 s{s+1}, s{lo+1}')
    p(f's_mov_b32 s{s+2}, {size}')
    p(f's_mov_b32 s{s+3}, 0x00020000')


def round_bf16(p, dst, src):
    p(f'v_cvt_pk_bf16_f32 v{dst}, v{src}, v{src}')
    p(f'v_lshlrev_b32 v{dst}, 16, v{dst}')


def unpack(p, lo, hi, src):
    if lo == src:
        p(f'v_and_b32 v{hi}, 0xffff0000, v{src}')
        p(f'v_lshlrev_b32 v{lo}, 16, v{src}')
    else:
        p(f'v_lshlrev_b32 v{lo}, 16, v{src}')
        p(f'v_and_b32 v{hi}, 0xffff0000, v{src}')


def round_pairs(p, regs, tmp):
    for i in range(0, len(regs), 2):
        p(f'v_cvt_pk_bf16_f32 v{tmp}, v{regs[i]}, v{regs[i+1]}')
        unpack(p, regs[i], regs[i + 1], tmp)


def silu_inplace(p, regs, tmp):
    n = len(regs)
    for i in range(n): p(f'v_mul_f32 v{tmp[i]}, {hex(LOG2E_NEG)}, v{regs[i]}')
    for i in range(n): p(f'v_exp_f32 v{tmp[i]}, v{tmp[i]}')
    p('s_nop 0')
    for i in range(n): p(f'v_add_f32 v{tmp[i]}, 1.0, v{tmp[i]}')
    for i in range(n): p(f'v_rcp_f32 v{tmp[i]}, v{tmp[i]}')
    p('s_nop 0')
    for i in range(n): p(f'v_mul_f32 v{regs[i]}, v{regs[i]}, v{tmp[i]}')


def acc1(ct, rt):
    b = ACC1 + (ct * 4 + rt) * 4
    return f'v[{b}:{b+3}]'


def acc2(ct, rt):
    b = (ct * 4 + rt) * 4
    return f'a[{b}:{b+3}]'


def soff_reg(idx):
    return S_SOFF if idx & 1 == 0 else S_SOFF2


def dma_pieces(idx, nop=False):
    slot = idx & 1
    so = soff_reg(idx)
    if idx < 18:
        vw, srd_ = VW1, 's[8:11]'
        setup = alu(f's_add_u32 s{so}, s{S_W1B}, {idx * 32 * 9216}')
    else:
        vw, srd_ = VW2, 's[12:15]'
        setup = alu(f's_add_u32 s{so}, s{S_W2B}, {ORDER2[idx-18] * 32 * 1152}')

    def m0(off):
        r = [alu(f's_add_u32 m0, s{S_RING}, {slot * 9216 + off}')]
        if nop: r.append(alu('s_nop 0'))
        return r

    def ld(u, tag):
        off = f' offset:{1024 * (u & 3)}' if (u & 3) and u < 8 else ''
        return [vm(f'buffer_load_dwordx4 v{vw+u}, {srd_}, s{so} offen{off} lds', tag)]
    te, to = f'W{idx}e', f'W{idx}o'
    even = [setup] + m0(8192) + ld(8, te) + m0(0) + ld(0, te) + ld(2, te) + m0(4096) + ld(4, te) + ld(6, te)
    odd = m0(0) + ld(1, to) + ld(3, to) + m0(4096) + ld(5, to) + ld(7, to)
    return even, odd


def dma_ops(idx):
    e, o = dma_pieces(idx, nop=True)
    return e + o


def split_vm(ops, n):
    c = 0
    for i, o in enumerate(ops):
        if o.kind == 'vm':
            c += 1
            if c == n:
                return ops[:i+1], ops[i+1:]
    raise ValueError


def bread_ops(idx):
    slot = idx & 1
    o = slot * 9216
    first, second = [], []
    b = BSET + 36 * slot + 32
    first.append(lds(f'ds_read_b64_tr_b16 a[{b}:{b+1}], v{VT+8} offset:{o}', f'B{idx}a'))
    first.append(lds(f'ds_read_b64_tr_b16 a[{b+2}:{b+3}], v{VT+8} offset:{o+256}', f'B{idx}a'))
    for t in range(8):
        b = BSET + 36 * slot + 4 * t
        first.append(lds(f'ds_read_b64_tr_b16 a[{b}:{b+1}], v{VT+t} offset:{o}', f'B{idx}a'))
        second.append(lds(f'ds_read_b64_tr_b16 a[{b+2}:{b+3}], v{VT+t} offset:{o+1024}', f'B{idx}b'))
    return first, second


def aread_ops(idx):
    s = idx if idx < 18 else ORDER2[idx - 18]
    st = idx & 1
    ops = []
    for rt in range(4):
        b = ASET + 16 * st + 4 * rt
        if idx < 18:
            va = VX + (s & 1) + (2 if rt >= 2 else 0)
        else:
            va = VA0 if rt < 2 else VA1
        ops.append(lds(f'ds_read_b128 a[{b}:{b+3}], v{va} offset:{((rt & 1) * 18 + s) * 1024}', f'A{idx}'))
    return ops


def mfma_ops(idx):
    st = idx & 1
    ops = []
    for ct in range(9):
        for rt in range(4):
            d = acc1(ct, rt) if idx < 18 else acc2(ct, rt)
            wb = BSET + 36 * st + 4 * ct
            xb = ASET + 16 * st + 4 * rt
            c = '0' if idx in (0, 18) else d
            ops.append(mfma(f'v_mfma_f32_16x16x32_bf16 {d}, a[{wb}:{wb+3}], a[{xb}:{xb+3}], {c}'))
    return ops


_silu_rot = [0]


def silu_tile_ops(ct, rt):
    b = ACC1 + (ct * 4 + rt) * 4
    t = STMP + 8 * (_silu_rot[0] % 4)
    _silu_rot[0] += 1
    ops = []
    for i in range(4): ops.append(trans(f'v_exp_f32 v{t+i}, v{b+i}'))
    for i in range(4): ops.append(alu(f'v_add_f32 v{t+i}, 1.0, v{t+i}'))
    for i in range(4): ops.append(trans(f'v_rcp_f32 v{t+i}, v{t+i}'))
    for i in range(4): ops.append(alu(f'v_mul_f32 v{t+i}, v{b+i}, v{t+i}'))
    ops.append(alu(f'v_cvt_pk_bf16_f32 v{t+4}, v{t}, v{t+1}'))
    ops.append(alu(f'v_cvt_pk_bf16_f32 v{t+5}, v{t+2}, v{t+3}'))
    if ct < 8:
        ops.append(lds(f'ds_write_b64 v{VH0}, v[{t+4}:{t+5}] offset:{rt*18432 + (ct >> 1)*1024 + (ct & 1)*512}', 'H'))
    else:
        ops.append(lds(f'ds_write_b64 v{VH1}, v[{t+4}:{t+5}] offset:{rt*18432}', 'H'))
    return ops


def kv_pair_ops(e):
    ops = []
    R = list(range(40, 55))
    for i in range(7): ops.append(alu(f'v_accvgpr_read_b32 v{R[i]}, a{KR + 4*i + e//2}'))
    for i in range(4): ops.append(alu(f'v_accvgpr_read_b32 v{R[7+i]}, a{VR + 4*i + e//2}'))
    for i in range(4): ops.append(alu(f'v_accvgpr_read_b32 v{R[11+i]}, a{SK + 2*e + i}'))
    for hi in range(2):
        def up(dst, src):
            ops.append(alu(f'v_and_b32 v{dst}, 0xffff0000, v{src}' if hi else f'v_lshlrev_b32 v{dst}, 16, v{src}'))
        kf = list(range(55, 62)); vf = list(range(62, 66)); sk = [66, 67, 68, 69]; ks = [70, 71, 72, 73]
        for i in range(7): up(kf[i], R[i])
        for i in range(4): up(vf[i], R[7 + i])
        for i in range(2):
            src = R[11 + 2 * hi + i]
            ops.append(alu(f'v_lshlrev_b32 v{sk[2*i]}, 16, v{src}'))
            ops.append(alu(f'v_and_b32 v{sk[2*i+1]}, 0xffff0000, v{src}'))
        for t in range(4): ops.append(alu(f'v_mul_f32 v{ks[t]}, v{kf[t]}, v{sk[3]}'))
        for jx in (2, 1, 0):
            for t in range(4): ops.append(alu(f'v_fmac_f32 v{ks[t]}, v{kf[3+t-jx]}, v{sk[jx]}'))
        for i in (0, 2):
            ops.append(alu(f'v_cvt_pk_bf16_f32 v74, v{ks[i]}, v{ks[i+1]}'))
            ops.append(alu(f'v_lshlrev_b32 v{ks[i]}, 16, v74'))
            ops.append(alu(f'v_and_b32 v{ks[i+1]}, 0xffff0000, v74'))
        for t in range(4): ops.append(alu(f'v_mul_f32 v{ks[t]}, v{ks[t]}, v{vf[t]}'))
        o = 76 + 2 * hi
        ops.append(alu(f'v_cvt_pk_bf16_f32 v{o}, v{ks[3]}, v{ks[2]}'))
        ops.append(alu(f'v_cvt_pk_bf16_f32 v{o+1}, v{ks[1]}, v{ks[0]}'))
        ops.append(lds(f'ds_write_b64 v{VTW}, v[{o}:{o+1}] offset:{144*(e+hi)}', 'T'))
    return ops


def ur_addr_ops():
    ops = []
    ops.append(alu(f's_mul_i32 s95, s{S_J}, {72*4096}'))
    ops.append(alu(f's_lshl_b32 s35, s{S_M}, 7'))
    ops.append(alu('s_sub_u32 s95, s95, s35'))
    ops.append(alu(f's_add_u32 s95, s95, {WS_UR + 1984*2}'))
    for r in range(3):
        ops.append(alu(f'v_add_u32 v60, {256*r}, v0'))
        if r == 2: ops.append(alu('v_min_u32 v60, 575, v60'))
        ops.append(alu('v_lshrrev_b32 v61, 3, v60'))
        ops.append(alu('v_and_b32 v62, 7, v60'))
        ops.append(alu(f'v_mul_u32_u24 v{98+r}, 144, v61'))
        ops.append(alu(f'v_lshl_add_u32 v{98+r}, v62, 4, v{98+r}'))
        ops.append(alu(f'v_add_u32 v{98+r}, {LDS_T}, v{98+r}'))
        ops.append(alu(f'v_lshlrev_b32 v{101+r}, 12, v61'))
        ops.append(alu(f'v_lshl_add_u32 v{101+r}, v62, 4, v{101+r}'))
    return ops


def silu_group_tiles(g):
    cts = [2 * g, 2 * g + 1] if g < 4 else [8]
    return [(ct, rt) for ct in cts for rt in range(4)]


RT = bool(os.environ.get('RT'))


def rts(p, n):
    if RT: p(raw(f's_memrealtime s[{68+2*n}:{69+2*n}]'))


class Stamps:
    def __init__(self, on): self.on = on
    def __call__(self, p, n):
        if self.on: p(raw(f's_memtime s[{68+2*n}:{69+2*n}]'))


_lab = [0]


def poll(p, vdst, vaddr, soff, name):
    _lab[0] += 1
    L = f'POLL{_lab[0]}_{name}'
    p(f's_mov_b32 s47, {SPIN_MAX}')
    p.label(L)
    p(raw(f'buffer_load_dword v{vdst}, v{vaddr}, s[16:19], {soff} offen sc1'))
    p('s_waitcnt vmcnt(0)')
    p(f'v_cmp_ne_u32 vcc, s{S_NONCE}, v{vdst}')
    p('s_nop 3')
    p('s_cmp_eq_u64 vcc, 0')
    p(f's_cbranch_scc1 {L}_X')
    p('s_sub_u32 s47, s47, 1')
    p(f's_cbranch_scc1 {L}_X')
    p('s_sleep 1')
    p(f's_branch {L}')
    p.label(f'{L}_X')


def nonce_check(p, sfx):
    p('s_nop 0')
    p(f'v_readfirstlane_b32 s{S_NONCE}, v89')
    p(f's_cmp_lg_u32 s{S_NONCE}, 0')
    p(f's_cbranch_scc1 K_HAVE_NONCE{sfx}')
    p(f's_mov_b32 s34, {SPIN_MAX}')
    p.label(f'K_NONCE_SPIN{sfx}')
    p('v_mov_b32 v89, 0')
    p(opaque('buffer_load_dword v89, v89, s[44:47], 0 offen sc1'))
    p(opaque('s_waitcnt vmcnt(0)'))
    p(f'v_readfirstlane_b32 s{S_NONCE}, v89')
    p('s_sub_u32 s34, s34, 1')
    p(f's_cbranch_scc1 K_HAVE_NONCE{sfx}')
    p(f's_cmp_lg_u32 s{S_NONCE}, 0')
    p(f's_cbranch_scc1 K_HAVE_NONCE{sfx}')
    p('s_sleep 1')
    p(f's_branch K_NONCE_SPIN{sfx}')
    p.label(f'K_HAVE_NONCE{sfx}')


def publish_ur(p):
    p(f's_cmp_lg_u32 s{S_W}, 0')
    p('s_cbranch_scc1 K_NOFL1')
    p(f's_lshl_b32 s34, s{S_J}, 7')
    p(f's_lshl_b32 s35, s{S_M}, 2')
    p('s_add_u32 s34, s34, s35')
    p(f's_add_u32 s34, s34, {WS_FL + FL_UR}')
    p(f'v_mov_b32 v38, s{S_NONCE}')
    p('v_mov_b32 v39, 0')
    p('s_mov_b64 exec, 1')
    p(raw('buffer_store_dword v38, v39, s[16:19], s34 offen sc1'))
    p('s_mov_b64 exec, -1')
    p.label('K_NOFL1')


KA, VA_, SA = 0, 44, 76


def kv_addr_ops():
    T = []
    A = lambda t: T.append(alu(t))
    A('s_sub_u32 s100, s2, 144')
    A('v_mul_u32_u24 v40, 911, v0')
    A('v_lshrrev_b32 v40, 16, v40')
    A('v_mul_u32_u24 v41, 72, v40')
    A('v_sub_u32 v41, v0, v41')
    A('v_mul_u32_u24 v42, 112, v40')
    A('v_add_u32 v42, s100, v42')
    A('v_cmp_lt_u32 vcc, 255, v42')
    A('v_mov_b32 v43, s100')
    A('v_mul_u32_u24 v44, 7282, v41')
    A('v_cndmask_b32 v42, v42, v43, vcc')
    A('v_cndmask_b32 v40, v40, 0, vcc')
    A('v_lshrrev_b32 v43, 16, v44')
    A('v_mul_u32_u24 v44, 9, v43')
    A('v_sub_u32 v44, v41, v44')
    A('v_lshrrev_b32 v45, 3, v42')
    A('v_lshlrev_b32 v45, 6, v45')
    A('v_lshl_add_u32 v45, v43, 3, v45')
    A('v_and_b32 v46, 7, v42')
    A('v_mul_u32_u24 v46, 144, v46')
    A('v_lshl_add_u32 v46, v44, 4, v46')
    A('v_mul_u32_u24 v47, 1152, v45')
    A('v_add_u32 v47, v47, v46')
    A('v_add_u32 v48, 4608, v47')
    A('v_bfrev_b32 v49, 1')
    for i in range(3):
        A(f'v_add_u32 v{50+i}, {(1152*(i-3)) & 0xffffffff}, v47')
        A(f'v_cmp_gt_u32 vcc, {3-i}, v45')
        A(f'v_mov_b32 v53, v53')
        A(f'v_mov_b32 v53, v53')
        A(f'v_cndmask_b32 v{50+i}, v{50+i}, v49, vcc')
    A('v_lshlrev_b32 v46, 2, v46')
    A('v_mul_u32_u24 v99, 10368, v40')
    A('v_mul_u32_u24 v53, 1152, v44')
    A('v_add_u32 v99, v99, v53')
    A('v_lshlrev_b32 v53, 4, v43')
    A('v_sub_u32 v99, v99, v53')
    A('v_add_u32 v99, 112, v99')
    for r in range(3):
        A(f'v_add_u32 v53, {256*r}, v0')
        if r == 2: A('v_min_u32 v53, 575, v53')
        A('v_lshrrev_b32 v54, 3, v53')
        A('v_and_b32 v53, 7, v53')
        A(f'v_mul_u32_u24 v{100+r}, 144, v54')
        A(f'v_lshl_add_u32 v{100+r}, v53, 4, v{100+r}')
        A(f'v_lshlrev_b32 v{103+r}, 12, v54')
        A(f'v_lshl_add_u32 v{103+r}, v53, 4, v{103+r}')
    return T


def kv_srd_text():
    L = []
    for s_, lo, size in ((56, 6, NB), (60, 40, NB), (64, 42, D * 8)):
        L += [f's_mov_b32 s{s_}, s{lo}', f's_mov_b32 s{s_+1}, s{lo+1}', f's_mov_b32 s{s_+2}, {size}', f's_mov_b32 s{s_+3}, 0x00020000']
    return L


def kv_load_list():
    L = []
    for i in range(3):
        L.append(f'buffer_load_dwordx4 a[{KA+4*i}:{KA+4*i+3}], v{50+i}, s[56:59], 0 offen')
    for i in range(8):
        o = f' offset:{1152*(i&3)}' if i & 3 else ''
        L.append(f'buffer_load_dwordx4 a[{KA+12+4*i}:{KA+12+4*i+3}], v{47 + (i>>2)}, s[56:59], 0 offen{o}')
    for i in range(8):
        o = f' offset:{1152*(i&3)}' if i & 3 else ''
        L.append(f'buffer_load_dwordx4 a[{VA_+4*i}:{VA_+4*i+3}], v{47 + (i>>2)}, s[60:63], 0 offen{o} nt')
    for i in range(4):
        o = f' offset:{16*i}' if i else ''
        L.append(f'buffer_load_dwordx4 a[{SA+4*i}:{SA+4*i+3}], v46, s[64:67], 0 offen{o}')
    return L


def kv_load_block(n):
    L = kv_load_list()[3*n:3*n+3]
    t = ['s_cmp_lt_u32 s2, 144', f's_cbranch_scc1 KVL{n}'] + L
    return Op('\n  '.join(t) + f'\nKVL{n}:', 'opaque')


def gen_kvprep(p):
    p(opaque(f's_waitcnt vmcnt({27 + KV_YOUNGER})'))
    R = list(range(55, 78))
    for e in range(0, 8, 2):
        for i in range(11): p(f'v_accvgpr_read_b32 v{R[i]}, a{KA + 4*i + e//2}')
        for i in range(8): p(f'v_accvgpr_read_b32 v{R[11+i]}, a{VA_ + 4*i + e//2}')
        for i in range(4): p(f'v_accvgpr_read_b32 v{R[19+i]}, a{SA + 2*e + i}')
        for hi in range(2):
            sk = [40, 41, 42, 43]; ks = list(range(184, 192)); o = 196 if hi else 192
            for i in range(2):
                src = R[19 + 2 * hi + i]
                if hi:
                    p(f'v_lshlrev_b32 v{sk[2*i]}, 16, v{src}')
                    p(f'v_and_b32 v{sk[2*i+1]}, 0xffff0000, v{src}')
                else:
                    p(f'v_and_b32 v{sk[2*i]}, 0xffff, v{src}')
                    p(f'v_lshrrev_b32 v{sk[2*i+1]}, 16, v{src}')
            for t in range(8): p(f'v_dot2_f32_bf16 v{ks[t]}, v{R[t]}, v{sk[3]}, 0')
            for jx in (2, 1, 0):
                for t in range(8): p(f'v_dot2_f32_bf16 v{ks[t]}, v{R[3+t-jx]}, v{sk[jx]}, v{ks[t]}')
            for t in range(8):
                p(f'v_and_b32 v{44+t}, 0xffff0000, v{R[11+t]}' if hi else f'v_lshlrev_b32 v{44+t}, 16, v{R[11+t]}')
            for t in range(8): p(f'v_mul_f32 v{ks[t]}, v{ks[t]}, v{44+t}')
            for q in range(4):
                p(f'v_cvt_pk_bf16_f32 v{o+q}, v{ks[7-2*q]}, v{ks[6-2*q]}')
            p(f'ds_write_b128 v99, v[{o}:{o+3}] offset:{144*(e+hi)}')
    p('s_waitcnt lgkmcnt(0)')
    p('s_barrier')
    for k in range(3):
        if k == 2:
            p('s_cmp_ge_u32 s2, 176')
            p('s_cbranch_scc1 KV_NO3')
        p(f's_add_u32 s101, s100, {112*k}')
        p('s_and_b32 s34, s101, 7')
        p(f's_mul_i32 s34, s34, {72*4096}')
        p('s_lshr_b32 s35, s101, 3')
        p('s_lshl_b32 s35, s35, 7')
        p('s_sub_u32 s34, s34, s35')
        p(f's_add_u32 s34, s34, {WS_UR + 1984*2}')
        for r in range(3):
            b = 55 + 1 + 4 * r + 12 * (k & 1)
            p(lds(f'ds_read_b128 v[{b}:{b+3}], v{100+r} offset:{10368*k}', f'T{k}{r}'))
        for r in range(3):
            b = 55 + 1 + 4 * r + 12 * (k & 1)
            p(wait_lgkm(f'T{k}{r}'))
            p(vm(f'buffer_store_dwordx4 v[{b}:{b+3}], v{103+r}, s[16:19], s34 offen sc1', 'UR'))
    p.label('KV_NO3')


def kv_flags(p):
    p('s_cmp_lt_u32 s2, 144')
    p('s_cbranch_scc1 KV_DONE')
    p(f's_cmp_lg_u32 s{S_W}, 0')
    p('s_cbranch_scc1 KV_DONE')
    p('v_mul_u32_u24 v38, 112, v2')
    p('v_add_u32 v38, s100, v38')
    p('v_cmp_lt_u32 vcc, 255, v38')
    p('v_mov_b32 v39, s100')
    p('s_nop 0')
    p('v_cndmask_b32 v38, v38, v39, vcc')
    p('v_and_b32 v39, 7, v38')
    p('v_lshlrev_b32 v39, 7, v39')
    p('v_lshrrev_b32 v38, 3, v38')
    p('v_lshl_add_u32 v38, v38, 2, v39')
    p(f'v_mov_b32 v39, s{S_NONCE}')
    p(f's_mov_b32 s34, {WS_FL + FL_UR}')
    p('s_mov_b64 exec, 7')
    p(raw('buffer_store_dword v39, v38, s[16:19], s34 offen sc1'))
    p('s_mov_b64 exec, -1')
    p.label('KV_DONE')


def gen(timing=False):
    p = Prog()
    st = Stamps(timing)
    p('s_cmp_ge_u32 s2, 256')
    p('s_cbranch_scc1 K_END')
    st(p, 0)
    if timing: p(raw('s_memrealtime s[96:97]'))
    p('s_load_dwordx4 s[4:7], s[0:1], 0')
    p('s_load_dwordx4 s[40:43], s[0:1], 16')
    p('s_load_dwordx4 s[36:39], s[0:1], 32')
    p('s_load_dwordx4 s[44:47], s[0:1], 56')
    p('s_load_dwordx4 s[48:51], s[0:1], 72')
    p('s_load_dwordx2 s[32:33], s[0:1], 88')
    p('s_getpc_b64 s[84:85]')
    p.label('K_PC')
    p('v_lshrrev_b32 v1, 6, v0')
    p('v_and_b32 v2, 63, v0')
    p('s_lshr_b32 s86, s2, 3')
    p('s_lshl_b32 s86, s86, 2')
    p('v_add_u32 v3, s86, v1')
    p('s_mov_b32 s87, (K_CODE_END - K_PC + 8191) / 8192')
    p('v_cvt_f32_u32 v4, v3')
    p('v_cvt_f32_u32 v5, s87')
    p('v_rcp_f32 v5, v5')
    p('v_add_f32 v4, 0.5, v4')
    p('v_mul_f32 v4, v4, v5')
    p('v_cvt_u32_f32 v4, v4')
    p('v_mul_lo_u32 v4, v4, s87')
    p('v_sub_u32 v3, v3, v4')
    p('v_lshlrev_b32 v3, 13, v3')
    p('v_lshl_add_u32 v3, v2, 7, v3')
    p('v_min_u32 v3, K_CODE_END - K_PC - 4, v3')
    p(raw('global_load_dword v98, v3, s[84:85]'))
    p('s_nop 0')
    p(f'v_readfirstlane_b32 s{S_W}, v1')
    lg = {1: 0, 2: 1, 4: 2}[NSH]
    p('s_and_b32 s34, s2, 7')
    p('s_lshr_b32 s35, s2, 3')
    p(f's_lshr_b32 s{S_MI}, s35, {lg}')
    if NSH == 1:
        p(f's_mov_b32 s{S_J}, s34')
        p(f's_mov_b32 s{S_M}, s35')
    else:
        p(f's_lshr_b32 s{S_J}, s34, {lg}')
        p(f's_lshl_b32 s{S_J}, s{S_J}, {lg}')
        p(f's_and_b32 s35, s35, {NSH-1}')
        p(f's_add_u32 s{S_J}, s{S_J}, s35')
        p(f's_and_b32 s34, s34, {NSH-1}')
        p(f's_mul_i32 s{S_M}, s34, {32//NSH}')
        p(f's_add_u32 s{S_M}, s{S_M}, s{S_MI}')
    p(f'v_lshlrev_b32 v{VL16}, 4, v2')
    p(f'v_lshrrev_b32 v{VG}, 4, v2')
    p(f'v_and_b32 v{VN}, 15, v2')
    p('v_and_b32 v106, 7, v2')
    p('v_lshrrev_b32 v107, 3, v2')
    p(f's_lshl_b32 s34, s{S_W}, 4')
    p('v_add_u32 v109, s34, v107')
    p('v_mul_u32_u24 v109, 1152, v109')
    p('v_lshl_add_u32 v109, v106, 4, v109')
    p(f's_mul_i32 s34, s{S_M}, {64*1152}')

    def voffsets(vw, stride):
        p(f'v_lshlrev_b32 v70, 1, v{VG}')
        p(f'v_xor_b32 v70, v{VN}, v70')
        p('v_xor_b32 v71, 8, v70')
        p(f's_lshl_b32 s95, s{S_W}, 8')
        p('v_lshl_add_u32 v70, v70, 4, s95')
        p('v_lshl_add_u32 v71, v71, 4, s95')
        p(f's_mov_b32 s35, {stride}')
        p(f'v_mul_lo_u32 v72, v{VG}, s35')
        p('v_add_u32 v70, v70, v72')
        p('v_add_u32 v71, v71, v72')
        for u in range(8):
            var = 70 if ((u >> 1) & 1) == 0 else 71
            c = 4 * u * stride - 1024 * (u & 3)
            p(f'v_add_u32 v{vw+u}, {c}, v{var}' if c else f'v_mov_b32 v{vw+u}, v{var}')
        p('v_lshrrev_b32 v73, 1, v2')
        p('v_and_b32 v74, 0x13, v73')
        p('v_bfe_u32 v75, v73, 2, 1')
        p('v_lshl_or_b32 v74, v75, 3, v74')
        p('v_bfe_u32 v75, v73, 3, 1')
        p('v_lshl_or_b32 v74, v75, 2, v74')
        p('v_mul_lo_u32 v74, v74, s35')
        p('v_and_b32 v75, 1, v2')
        p('v_lshl_add_u32 v74, v75, 4, v74')
        p(f's_lshl_b32 s95, s{S_W}, 5')
        p('s_add_u32 s95, s95, 1024')
        p(f'v_add_u32 v{vw+8}, s95, v74')

    voffsets(VW1, 9216)
    p(f's_mul_i32 s{S_W1B}, s{S_J}, 1152')
    p(f's_mul_i32 s{S_W2B}, s{S_J}, {576*1152}')
    p(f's_mul_i32 s{S_RING}, s{S_W}, 18432')
    p(f's_add_u32 s{S_RING}, s{S_RING}, {RING}')
    ROWS = 18 * NSH if PFMODE != 'B' else 32
    NPF = 9 * ROWS
    PFR = (NPF + 255) // 256
    for r in range(PFR):
        p(f'v_add_u32 v58, {256*r}, v0')
        p(f'v_min_u32 v58, {NPF-1}, v58')
        p('v_mul_u32_u24 v55, 7282, v58')
        p('v_lshrrev_b32 v55, 16, v55')
        p('v_mul_u32_u24 v56, 9, v55')
        p('v_sub_u32 v56, v58, v56')
        p(f's_mul_i32 s35, s{S_MI}, {ROWS}')
        p('v_add_u32 v55, s35, v55')
        p('v_mul_u32_u24 v55, 9216, v55')
        p(f'v_lshl_add_u32 v{92+r}, v56, 7, v55')
        p(f'v_lshlrev_b32 v{95+r}, 7, v58')
    p('s_mul_i32 s35, s35, 1152')
    p(f's_add_u32 s{S_PF2}, s35, s{S_W2B}')
    p(kv_addr_ops())
    p('s_waitcnt lgkmcnt(0)')
    st(p, 1)
    srd(p, 8, 44, D * F * 2)
    srd(p, 12, 46, D * F * 2)
    srd(p, 44, 50, 256)
    p('v_mov_b32 v89, 0')
    p(f's_or_b32 s35, s2, s{S_W}')
    p('s_cmp_lg_u32 s35, 0')
    p('s_cbranch_scc1 K_NONONCE')
    p(raw('s_memrealtime s[100:101]'))
    p(opaque('s_waitcnt lgkmcnt(0)'))
    p('s_or_b32 s100, s100, 1')
    p('v_mov_b32 v60, s100')
    p('s_mov_b64 exec, 1')
    p(raw('buffer_store_dword v60, v89, s[44:47], 0 offen sc1'))
    p('s_mov_b64 exec, -1')
    p.label('K_NONONCE')
    p('\n'.join(kv_srd_text()))
    if PFMODE in 'CD':
        for r in range(PFR):
            p(vm(f'buffer_load_dword v98, v{92+r}, s[8:11], s{S_W1B} offen', 'PF'))
        if PFMODE == 'C':
            for r in range(PFR):
                p(vm(f'buffer_load_dword v98, v{95+r}, s[12:15], s{S_PF2} offen', 'PF'))
    p('s_cmp_lt_u32 s2, 144')
    p('s_cbranch_scc1 K_NOKVL')
    def early_pf():
        for r in range(PFR):
            p(raw(f'buffer_load_dword v98, v{92+r}, s[8:11], s{S_W1B} offen'))
        if os.environ.get('EPF2', '1') == '1':
            for r in range(PFR):
                p(raw(f'buffer_load_dword v98, v{95+r}, s[12:15], s{S_PF2} offen'))
    KVFIRST = os.environ.get('KVFIRST', '0') == '1'
    if PFMODE == 'A' and not KVFIRST: early_pf()
    for t in kv_load_list(): p(raw(t))
    if PFMODE == 'A' and KVFIRST: early_pf()
    p.label('K_NOKVL')
    p(dma_ops(0))
    srd(p, 52, 4, NB)
    XR = 112
    for ps in range(2):
        if ps: p('s_add_u32 s34, s34, 9216')
        for jj in range(9):
            o = f' offset:{128*jj}' if jj else ''
            b = XR + 36 * ps + 4 * jj
            p(vm(f'buffer_load_dwordx4 v[{b}:{b+3}], v109, s[52:55], s34 offen{o}', f'X{ps}'))
    srd(p, 16, 32, WS_END + (65536 if timing else 0))
    srd(p, 20, 36, D * S * 2)
    voffsets(VW2, 1152)
    p(f'v_lshrrev_b32 v70, 2, v{VN}')
    p('v_and_b32 v71, 3, v2')
    p(f'v_lshl_add_u32 v72, v{VG}, 3, v70')
    p('v_lshlrev_b32 v72, 8, v72')
    p('v_lshlrev_b32 v73, 3, v71')
    p('v_add_u32 v72, v72, v73')
    p(f'v_add_u32 v72, s{S_RING}, v72')
    p(f'v_and_b32 v74, 1, v{VG}')
    p('v_lshlrev_b32 v74, 3, v74')
    p('v_lshl_add_u32 v74, v70, 1, v74')
    for t in range(8):
        p(f'v_xor_b32 v75, {2*t}, v74')
        p(f'v_lshl_add_u32 v{VT+t}, v75, 4, v72')
    p(f'v_lshrrev_b32 v75, 1, v{VG}')
    p('v_lshlrev_b32 v75, 4, v75')
    p(f'v_and_b32 v76, 1, v{VG}')
    p('v_lshl_add_u32 v75, v76, 2, v75')
    p('v_add_u32 v75, v75, v70')
    p('v_lshl_add_u32 v75, v75, 5, v73')
    p(f's_add_u32 s35, s{S_RING}, 8192')
    p(f'v_add_u32 v{VT+8}, s35, v75')
    p(f'v_mov_b32 v{VA0}, v{VL16}')
    p(f'v_add_u32 v{VA1}, 36864, v{VL16}')
    p(f'v_lshlrev_b32 v70, 1, v{VG}')
    p(f'v_xor_b32 v71, v{VN}, v70')
    p(f'v_lshl_add_u32 v71, v{VG}, 4, v71')
    p(f'v_lshlrev_b32 v{VX}, 4, v71')
    p(f'v_xor_b32 v{VX+1}, 16, v{VX}')
    p(f'v_add_u32 v{VX+2}, 36864, v{VX}')
    p(f'v_add_u32 v{VX+3}, 36864, v{VX+1}')
    p(f'v_lshlrev_b32 v75, 4, v{VN}')
    p(f'v_lshrrev_b32 v76, 1, v{VG}')
    p('v_lshl_add_u32 v75, v76, 8, v75')
    p(f'v_and_b32 v76, 1, v{VG}')
    p('v_lshl_add_u32 v75, v76, 3, v75')
    p(f's_lshl_b32 s35, s{S_W}, 12')
    p(f'v_add_u32 v{VH0}, s35, v75')
    p(f's_lshr_b32 s35, s{S_W}, 1')
    p('s_lshl_b32 s35, s35, 10')
    p(f's_and_b32 s34, s{S_W}, 1')
    p('s_lshl_b32 s34, s34, 9')
    p('s_add_u32 s35, s35, s34')
    p('s_add_u32 s35, s35, 16384')
    p(f'v_add_u32 v{VH1}, s35, v75')
    p('v_and_b32 v60, 3, v106')
    p('v_lshrrev_b32 v61, 2, v106')
    p('v_lshl_add_u32 v90, v60, 1, v61')
    p('v_xor_b32 v90, v107, v90')
    p('v_lshlrev_b32 v90, 4, v90')
    p('v_lshl_add_u32 v90, v60, 8, v90')
    p('v_lshl_add_u32 v90, v61, 10, v90')
    p(f's_mul_i32 s34, s{S_W}, 18432')
    p('v_add_u32 v90, s34, v90')
    p(f's_lshl_b32 s34, s{S_W}, 7')
    p(f's_add_u32 s34, s34, {LDS_ST}')
    p('v_lshl_add_u32 v91, v107, 3, s34')
    p(f'v_add_u32 v{VFR}, {LDS_FG}, v{VL16}')
    p(f's_lshl_b32 s34, s{S_W}, 2')
    p(f'v_add_u32 v{VFW}, s34, v{VFR}')
    p('v_mov_b32 v78, 0')
    p(f'ds_write_b32 v{VFW}, v78')
    st(p, 2)
    p('s_cmp_lt_u32 s2, 144')
    p('s_cbranch_scc1 K_NOKV')
    p.ops.append(Op(None, 'push'))
    gen_kvprep(p)
    p('s_waitcnt lgkmcnt(0)')
    p('s_barrier')
    p.ops.append(Op(None, 'pop'))
    p.label('K_NOKV')
    st(p, 3)
    for ps in range(2):
        b0 = XR + 36 * ps
        if ps == 1:
            p(dma_ops(1))
            if PFMODE == 'B':
                p('s_cmp_ge_u32 s2, 144')
                p('s_cbranch_scc1 K_NOPF')
            mk = vm if PFMODE != 'B' else (lambda t, tag: raw(t))
            if PFMODE in 'AB':
                for r in range(PFR):
                    p(mk(f'buffer_load_dword v98, v{92+r}, s[8:11], s{S_W1B} offen', 'PF'))
            if PFMODE in 'ABD':
                for r in range(PFR):
                    p(mk(f'buffer_load_dword v98, v{95+r}, s[12:15], s{S_PF2} offen', 'PF'))
            if PFMODE == 'B':
                p.label('K_NOPF')
            p(vm('buffer_load_dword v89, v89, s[44:47], 0 offen sc1', 'NONCE'))
            st(p, 4)
        p(wait_vm(f'X{ps}'))
        p('s_mov_b32 s35, 0x3f803f80')
        p('v_mov_b32 v64, 0'); p('v_mov_b32 v65, 0'); p('v_mov_b32 v66, 0'); p('v_mov_b32 v67, 0')
        for i in range(36):
            a = 64 + (i & 1)
            p(f'v_dot2_f32_bf16 v{a}, v{b0+i}, s35, v{a}')
            p(f'v_dot2_f32_bf16 v{a+2}, v{b0+i}, v{b0+i}, v{a+2}')
        p('s_nop 2')
        p('v_add_f32 v64, v64, v65')
        p('v_add_f32 v66, v66, v67')
        for ctl in ('quad_perm:[1,0,3,2]', 'quad_perm:[2,3,0,1]', 'row_half_mirror'):
            p('s_nop 1')
            p(f'v_add_f32_dpp v64, v64, v64 {ctl} row_mask:0xf bank_mask:0xf')
            p(f'v_add_f32_dpp v66, v66, v66 {ctl} row_mask:0xf bank_mask:0xf')
        p(f'v_mul_f32 v64, {hex(f32bits(1.0/576))}, v64')
        p(f'v_mul_f32 v66, {hex(f32bits(1.0/576))}, v66')
        p('v_fma_f32 v66, -v64, v64, v66')
        p('v_max_f32 v66, 0, v66')
        round_bf16(p, 66, 66)
        p(f'v_add_f32 v66, {hex(f32bits(1e-5))}, v66')
        round_bf16(p, 66, 66)
        p('v_sqrt_f32 v66, v66')
        p('s_nop 0')
        round_bf16(p, 66, 66)
        p('v_rcp_f32 v68, v66')
        round_bf16(p, 64, 64)
        p('v_mul_f32 v69, v64, v68')
        p('v_sub_f32 v69, 0, v69')
        p(f'v_mul_f32 v74, {hex(LOG2E_NEG)}, v68')
        p(f'v_mul_f32 v75, {hex(LOG2E_NEG)}, v69')
        for jj in range(9):
            for i in range(4):
                r = b0 + 4 * jj + i
                t0 = 70 + 2 * (i & 1)
                p(f'v_lshlrev_b32 v{t0}, 16, v{r}')
                p(f'v_and_b32 v{t0+1}, 0xffff0000, v{r}')
                p(f'v_fma_f32 v{t0}, v{t0}, v74, v75')
                p(f'v_fma_f32 v{t0+1}, v{t0+1}, v74, v75')
                p(f'v_cvt_pk_bf16_f32 v{r}, v{t0}, v{t0+1}')
            p(f'ds_write_b128 v90, v[{b0+4*jj}:{b0+4*jj+3}] offset:{jj*2048 + ps*128}')
        p('v_cmp_eq_u32 vcc, 0, v106')
        p('s_and_saveexec_b64 s[34:35], vcc')
        p(f'ds_write_b64 v91, v[68:69] offset:{64*ps}')
        p('s_mov_b64 exec, s[34:35]')
    st(p, 5)
    rts(p, 0)
    p('s_waitcnt lgkmcnt(0)')
    p('s_barrier')
    p(aread_ops(0))
    p(wait_vm(['W0e', 'W0o']))
    b1, b2 = bread_ops(0)
    p(b1); p(b2)
    p(wait_lgkm(['A0', 'B0a', 'B0b']))
    p(dma_pieces(2, nop=True)[0])
    p(split_vm(dma_pieces(2, nop=True)[1], 2)[0])
    st(p, 6)
    rts(p, 1)

    def put(d, gap, ops):
        d.setdefault(gap, []).extend(ops if isinstance(ops, list) else [ops])

    def place_dma(d, ops, gaps):
        gi = 0
        pend = []
        for o in ops:
            if o.kind == 'vm':
                g = gaps[gi]; gi += 1
                if pend:
                    put(d, g - 1, pend); pend = []
                put(d, g, o)
            else:
                pend.append(o)
        assert not pend

    SPLIT = {1: [3, 3, 2, 0], 2: [3, 3, 2, 0], 3: [3, 3, 2, 0], 4: [2, 2, 0, 0]}
    for idx in range(36):
        nxt = idx + 1
        mf = mfma_ops(idx)
        fx = {}
        if timing:
            sp = 82 + 2 * (idx % 6)
            if idx >= 3:
                so = 82 + 2 * ((idx - 3) % 6)
                p(raw(f'v_writelane_b32 v88, s{so}, {idx-3}'))
            p(raw(f's_memtime s[{sp}:{sp+1}]'))
            if idx == 4:
                for n in range(7): p(raw(f'v_writelane_b32 v88, s{68+2*n}, {40+n}'))
        qpos = (idx - 18) % 4 if idx >= 18 else None
        V = []
        late = False
        if idx == 17:
            late = True
        elif 18 <= idx < 34:
            g = (idx - 18) // 4 + 1
            tiles = silu_group_tiles(g)
            lo_ = sum(SPLIT[g][:qpos])
            for (ct, rt) in tiles[lo_:lo_ + SPLIT[g][qpos]]:
                V += silu_tile_ops(ct, rt)
            late = (qpos == 3)
            if lo_ + SPLIT[g][qpos] == len(tiles) and SPLIT[g][qpos] > 0:
                V += [alu(f'v_mov_b32 v78, {g}'), lds(f'ds_write_b32 v{VFW}, v78', 'HF')]
        if DBG_NOSILU: V = []
        if idx == 32:
            V = V + conv_flag_ops()
        if idx + 2 < 36:
            place_dma(fx, split_vm(dma_pieces(idx + 2)[1], 2)[1], [1, 5])
        if nxt < 36:
            b1, b2 = bread_ops(nxt)
            put(fx, -1, wait_vm(f'W{nxt}e'))
            for g_, o in zip([0, 0, 2, 2, 3, 3, 4, 4, 6, 6], b1):
                put(fx, g_, o)
            put(fx, 7, wait_vm(f'W{nxt}o'))
            for g_, o in zip([7, 7, 8, 8, 10, 10, 11, 11], b2):
                put(fx, g_, o)
            put(fx, 8, wait_lgkm(f'B{nxt}a'))
            put(fx, 16, wait_lgkm(f'B{nxt}b'))
            if not late:
                for g_, o in zip([12, 14, 15, 16], aread_ops(nxt)):
                    put(fx, g_, o)
                put(fx, 35, wait_lgkm(f'A{nxt}'))
        if idx + 3 < 36:
            ev, od = dma_pieces(idx + 3)
            place_dma(fx, ev, [9, 13, 17, 21, 25])
            place_dma(fx, split_vm(od, 2)[0], [29, 33])
        if idx == 17:
            put(fx, 12, alu('s_barrier'))
            put(fx, 13, [alu('s_lshl_b32 s40, s2, 2'), alu(f's_add_u32 s40, s40, s{S_W}'), alu('s_min_u32 s40, s40, 575'), alu('s_lshl_b32 s41, s40, 12')])
            put(fx, 14, [alu('v_and_b32 v79, 31, v2'), alu('v_lshlrev_b32 v79, 7, v79')])
            put(fx, 34, vm('buffer_load_dword v98, v79, s[20:23], s41 offen', 'PF'))
            sil = []
            for (ct, rt) in silu_group_tiles(0):
                sil += silu_tile_ops(ct, rt)
            nsil = 23 * 4
            p(place2(mf, fx, sil[:nsil], 13, 36))
            p(sil[nsil:])
            p(raw('s_waitcnt vmcnt(9)'))
            p(wait_lgkm('H')); p('s_barrier')
            kv_flags(p)
            p(aread_ops(18)); p(wait_lgkm('A18'))
            continue
        if late:
            g = (idx - 18) // 4 + 1
            put(fx, 18, lds(f'ds_read_b128 v[72:75], v{VFR}', f'FR{idx}'))
            chk = ['v_min3_u32 v72, v72, v73, v74', 'v_min_u32 v72, v72, v75', 's_nop 0', 'v_readfirstlane_b32 s34, v72', 's_nop 1',
                   f's_cmp_ge_u32 s34, {g}', f's_cbranch_scc1 FG{idx}_OK', f'FG{idx}_SPIN:', f'ds_read_b128 v[72:75], v{VFR}', 's_waitcnt lgkmcnt(0)',
                   'v_min3_u32 v72, v72, v73, v74', 'v_min_u32 v72, v72, v75', 's_nop 0', 'v_readfirstlane_b32 s34, v72', 's_nop 1',
                   f's_cmp_lt_u32 s34, {g}', f's_cbranch_scc1 FG{idx}_SPIN', f'FG{idx}_OK:']
            put(fx, 24, [wait_lgkm(f'FR{idx}'), Op('\n  '.join(chk), 'opaque')])
            for g_, o in zip([26, 27, 28, 30], aread_ops(nxt)):
                put(fx, g_, o)
            put(fx, 35, wait_lgkm(f'A{nxt}'))
            p(place2(mf, fx, V, 0, 18))
            continue
        if idx == 34:
            conv_check(p)
        extra = []
        if idx in (34, 35):
            cp = conv_prefetch_ops()
            c1, c2 = split_vm(cp, 9)
            extra = c1 if idx == 34 else c2
        if extra:
            p(place2(mf, fx, extra, 2, 36))
        else:
            p(place2(mf, fx, V, 0, 36))
        if idx == 9:
            p(wait_vm('NONCE'))
            nonce_check(p, 'M')
    st(p, 7)
    rts(p, 2)
    if timing:
        p('s_waitcnt lgkmcnt(0)')
        for idx in range(33, 36):
            so = 82 + 2 * (idx % 6)
            p(raw(f'v_writelane_b32 v88, s{so}, {idx}'))
        p(raw('v_writelane_b32 v88, s82, 36'))
        p('v_accvgpr_write_b32 a255, v88')
    p(f's_mul_i32 s31, s{S_J}, {NB}')
    p(f's_lshl_b32 s34, s{S_M}, 2')
    p(f's_add_u32 s34, s34, s{S_W}')
    p('s_mul_i32 s34, s34, 18432')
    p('s_add_u32 s31, s31, s34')
    p(f's_add_u32 s31, s31, {WS_P}')
    p('s_cmp_lt_u32 s2, 144')
    p('s_cbranch_scc1 K_CONV')
    p.ops.append(Op(None, 'push'))
    p('s_nop 7')
    p(partial_store_ops())
    p.ops.append(Op(None, 'pop'))
    if timing: p(raw('s_memtime s[70:71]'))
    p('s_branch K_NOCONV')
    p.label('K_CONV')
    gen_conv(p, timing)
    p.label('K_NOCONV')
    p('s_waitcnt vmcnt(0) lgkmcnt(0)')
    p('s_barrier')
    p(f's_cmp_lg_u32 s{S_W}, 0')
    p('s_cbranch_scc1 K_NOFL2')
    p(f's_lshl_b32 s34, s{S_M}, 7')
    p(f's_lshl_b32 s35, s{S_J}, 2')
    p('s_add_u32 s34, s34, s35')
    p(f's_add_u32 s34, s34, {WS_FL + FL_P}')
    p(f'v_mov_b32 v38, s{S_NONCE}')
    p('v_mov_b32 v39, 0')
    p('s_mov_b64 exec, 1')
    p(raw('buffer_store_dword v38, v39, s[16:19], s34 offen sc1'))
    p('s_cmp_ge_u32 s2, 144')
    p('s_cbranch_scc1 K_NOFL2Y')
    p('s_lshl_b32 s34, s2, 2')
    p(f's_add_u32 s34, s34, {WS_FL + FL_Y}')
    p(raw('buffer_store_dword v38, v39, s[16:19], s34 offen sc1'))
    p.label('K_NOFL2Y')
    p('s_mov_b64 exec, -1')
    p.label('K_NOFL2')
    if timing:
        p(raw('s_memtime s[72:73]'))
        p(raw('s_memrealtime s[78:79]'))
    rts(p, 3)
    gen_final(p, timing)
    rts(p, 5)
    if timing:
        p('s_waitcnt vmcnt(0) lgkmcnt(0)')
        p(raw('s_memtime s[76:77]'))
        p(raw('s_memrealtime s[98:99]'))
        p('s_waitcnt lgkmcnt(0)')
        p('v_mov_b32 v4, s96'); p('v_mov_b32 v5, s78'); p('v_mov_b32 v6, s80'); p('v_mov_b32 v7, s98')
        p('v_mov_b32 v8, 0')
        p('s_lshl_b32 s34, s2, 4')
        p(f's_add_u32 s34, s34, {WS_DBG + 4096}')
        p(f's_cmp_lg_u32 s{S_W}, {os.environ.get("TW", "0")}')
        p('s_cbranch_scc1 K_END')
        p('s_mov_b64 exec, 1')
        p('buffer_store_dwordx4 v[4:7], v8, s[16:19], s34 offen')
        p('s_mov_b64 exec, -1')
        p('s_mov_b32 s52, 0')
        p('s_cmp_eq_u32 s2, 0')
        p('s_cbranch_scc1 K_STAMP')
        p('s_mov_b32 s52, 512')
        p('s_cmp_eq_u32 s2, 200')
        p('s_cbranch_scc0 K_END')
        p.label('K_STAMP')
        p(f's_add_u32 s52, s52, {WS_DBG}')
        p('v_accvgpr_read_b32 v3, a255')
        p('s_nop 1')
        p('v_subrev_u32 v3, s68, v3')
        p('v_and_b32 v4, 63, v0')
        p('v_lshlrev_b32 v4, 2, v4')
        p('buffer_store_dword v3, v4, s[16:19], s52 offen')
        for n in range(1, 13):
            p(f's_sub_u32 s53, s{68+2*n}, s68')
            p('v_mov_b32 v1, s53')
            p(f'v_mov_b32 v2, {256+4*n}')
            p('buffer_store_dword v1, v2, s[16:19], s52 offen')
    if RT:
        p('s_waitcnt vmcnt(0) lgkmcnt(0)')
        p(f's_cmp_lg_u32 s{S_W}, 0')
        p('s_cbranch_scc1 K_END')
        p('s_mov_b32 s52, 16')
        p('s_cmp_eq_u32 s2, 0')
        p('s_cbranch_scc1 K_RT')
        p('s_mov_b32 s52, 40')
        p('s_cmp_eq_u32 s2, 200')
        p('s_cbranch_scc0 K_END')
        p.label('K_RT')
        srd(p, 44, 50, 256)
        p('s_mov_b64 exec, 1')
        for n in range(6):
            p(f's_sub_u32 s53, s{68+2*n}, s{S_NONCE}')
            p('v_mov_b32 v4, s53'); p(f'v_mov_b32 v5, {4*n}')
            p('buffer_store_dword v4, v5, s[44:47], s52 offen')
        p('s_mov_b64 exec, -1')
    if os.environ.get('SPAN'):
        p('s_waitcnt vmcnt(0) lgkmcnt(0)')
        p(raw('s_memrealtime s[98:99]'))
        p('s_waitcnt lgkmcnt(0)')
        p(f's_sub_u32 s98, s98, s{S_NONCE}')
        srd(p, 44, 50, 256)
        p('v_mov_b32 v4, s98'); p('v_mov_b32 v5, 8')
        p('s_mov_b64 exec, 1')
        p('buffer_atomic_umax v4, v5, s[44:47], 0 offen')
        p('s_mov_b64 exec, -1')
    p.label('K_END')
    p('s_endpgm')
    p.label('K_CODE_END')
    return p


def partial_store_ops():
    ops = []
    k = 0
    for pr in range(2):
        for ct in range(9):
            t = STMP + 12 * (k % 3)
            for hh in range(2):
                b = (ct * 4 + 2 * pr + hh) * 4
                for i in range(4):
                    ops.append(alu(f'v_accvgpr_read_b32 v{t+4*hh+i}, a{b+i}'))
            q = t + 8
            ops.append(alu(f'v_cvt_pk_bf16_f32 v{q}, v{t}, v{t+1}'))
            ops.append(alu(f'v_cvt_pk_bf16_f32 v{q+1}, v{t+2}, v{t+3}'))
            ops.append(alu(f'v_cvt_pk_bf16_f32 v{q+2}, v{t+4}, v{t+5}'))
            ops.append(alu(f'v_cvt_pk_bf16_f32 v{q+3}, v{t+6}, v{t+7}'))
            if k % 4 == 0:
                ops.append(alu(f's_add_u32 s35, s31, {k*1024}'))
            off = f' offset:{1024*(k & 3)}' if k & 3 else ''
            ops.append(vm(f'buffer_store_dwordx4 v[{q}:{q+3}], v{VL16}, s[16:19], s35 offen{off} {PST}', 'P'))
            k += 1
    return ops


def conv_flag_ops():
    ops = []
    ops.append(alu('s_mul_i32 s42, s2, 3641'))
    ops.append(alu('s_lshr_b32 s42, s42, 16'))
    ops.append(alu('s_lshl_b32 s42, s42, 7'))
    ops.append(alu(f's_add_u32 s42, s42, {WS_FL + FL_UR}'))
    ops.append(alu('s_lshl_b32 s40, s2, 2'))
    ops.append(alu(f's_add_u32 s40, s40, s{S_W}'))
    ops.append(alu('s_min_u32 s40, s40, 575'))
    ops.append(alu('s_lshl_b32 s41, s40, 12'))
    ops.append(alu('v_and_b32 v86, 31, v2'))
    ops.append(alu('v_lshlrev_b32 v86, 2, v86'))
    ops.append(vm('buffer_load_dword v87, v86, s[16:19], s42 offen sc1', 'URF'))
    return ops


def conv_check(p):
    p(wait_vm('URF'))
    p('s_cmp_ge_u32 s2, 144')
    p('s_cbranch_scc1 K_UR_OK')
    p(f'v_cmp_ne_u32 vcc, s{S_NONCE}, v87')
    p('s_nop 3')
    p('s_cmp_eq_u64 vcc, 0')
    p('s_cbranch_scc1 K_UR_OK')
    p.ops.append(Op(None, 'push'))
    poll(p, 87, 86, 's42', 'UR')
    p.ops.append(Op(None, 'pop'))
    p.label('K_UR_OK')


def conv_prefetch_ops():
    ops = []
    ops.append(alu(f's_add_u32 s42, s41, {WS_UR}'))
    for q in range(4):
        off = f' offset:{1024*q}' if q else ''
        ops.append(vm(f'buffer_load_dwordx4 v[{PU+4*q}:{PU+4*q+3}], v{VL16}, s[16:19], s42 offen{off} sc1', 'CU'))
    ops.append(alu(f'v_add_u32 v38, s41, v{VL16}'))
    ops.append(alu('v_subrev_u32 v39, 32, v38'))
    ops.append(alu('v_max_i32 v39, 0, v39'))
    ops.append(alu('v_add_u32 v38, 992, v38'))
    for d, base in ((0, P0), (4, P1), (8, P2)):
        ops.append(vm(f'buffer_load_dwordx4 v[{base}:{base+3}], v39, s[20:23], 0 offen offset:{d}', 'CP'))
        for q in range(1, 5):
            ops.append(vm(f'buffer_load_dwordx4 v[{base+4*q}:{base+4*q+3}], v38, s[20:23], 0 offen offset:{1024*(q-1)+d}', 'CP'))
    return ops


CA, CB = 144, 188
VQA, VQB = 76, 77


def gen_conv(p, timing):
    p('s_and_b32 s43, s40, 0xfffe')
    p('s_lshl_b32 s43, s43, 1')
    p('s_load_dword s44, s[38:39], s43')
    p('s_barrier')
    p(f's_mul_i32 s45, s{S_W}, {CONV_STRIDE}')
    p(wait_vm('CP'))
    p(f'v_readlane_b32 s46, v{P0}, 2')
    p(f'v_readlane_b32 s47, v{P0+1}, 2')
    p('s_mov_b64 exec, 3')
    for base in (P0, P1, P2):
        for i in range(4):
            p(f'v_mov_b32 v{base+i}, 0')
    p('s_mov_b64 exec, -1')
    p(f'v_writelane_b32 v{P1+3}, s46, 1')
    p(f'v_writelane_b32 v{P2+2}, s46, 1')
    p(f'v_writelane_b32 v{P2+3}, s47, 1')
    p(f'v_add_u32 v38, s45, v{VL16}')
    T = 40
    for q in range(5):
        p(f'ds_write_b128 v38, v[{P0+4*q}:{P0+4*q+3}] offset:{1024*q}')
        t = T + 8 * (q % 2)
        for i in range(4):
            p(f'v_alignbit_b32 v{t+i}, v{P1+4*q+i}, v{P0+4*q+i}, 16')
        p(f'ds_write_b128 v38, v[{P1+4*q}:{P1+4*q+3}] offset:{2*CONV_COPY + 1024*q}')
        for i in range(4):
            p(f'v_alignbit_b32 v{t+4+i}, v{P2+4*q+i}, v{P1+4*q+i}, 16')
        p(f'ds_write_b128 v38, v[{t}:{t+3}] offset:{CONV_COPY + 1024*q}')
        p(f'ds_write_b128 v38, v[{t+4}:{t+7}] offset:{3*CONV_COPY + 1024*q}')
    for i in range(4):
        p(f'v_mov_b32 v{60+i}, 0')
    p(f'ds_write_b128 v38, v[60:63] offset:{CONV_UR + 4096}')
    p(f'v_add_u32 v39, 1, v{VN}')
    p(f'v_and_b32 v{VQA}, 3, v39')
    p(f'v_mul_u32_u24 v{VQA}, {CONV_COPY}, v{VQA}')
    p('v_and_b32 v57, 0x1c, v39')
    p(f'v_lshl_add_u32 v{VQA}, v57, 1, v{VQA}')
    p(f'v_lshl_add_u32 v{VQA}, v{VG}, 4, v{VQA}')
    p(f'v_add_u32 v{VQA}, s45, v{VQA}')
    p(f'v_lshlrev_b32 v{VQB}, 5, v{VN}')
    p(f'v_lshlrev_b32 v58, 4, v{VG}')
    p(f'v_sub_u32 v{VQB}, v58, v{VQB}')
    p(f's_add_u32 s46, s45, {CONV_UR + 4064 - 3584}')
    p(f'v_add_u32 v{VQB}, s46, v{VQB}')
    p(wait_vm('CU'))
    for q in range(4):
        p(f'ds_write_b128 v38, v[{PU+4*q}:{PU+4*q+3}] offset:{CONV_UR + 1024*q}')
    p('s_waitcnt lgkmcnt(0)')
    if timing: p(raw('s_memtime s[70:71]'))

    def reads(r):
        st_ = r & 1
        ops = []
        for k in range(8):
            a = CA + 32 * st_ + 4 * k
            b = CB + 32 * st_ + 4 * k
            ops.append(lds(f'ds_read_b64 a[{a}:{a+1}], v{VQA} offset:{512*k + 64*r}', f'C{r}'))
            ops.append(lds(f'ds_read_b64 a[{a+2}:{a+3}], v{VQA} offset:{512*k + 64*r + 8}', f'C{r}'))
            ops.append(lds(f'ds_read_b128 v[{b}:{b+3}], v{VQB} offset:{512*(7-k) + 64*r}', f'C{r}'))
        return ops

    pst = partial_store_ops()
    per = (len(pst) + 5) // 6
    p(reads(0))
    for r in range(8):
        st_ = r & 1
        mf = []
        for nt in range(8):
            for ap in range(nt + 1):
                a = CA + 32 * st_ + 4 * ap
                b = CB + 32 * st_ + 4 * (nt - ap)
                d = CACC + 4 * nt
                c = '0' if (r == 0 and ap == 0) else f'v[{d}:{d+3}]'
                mf.append((nt, ap, mfma(f'v_mfma_f32_16x16x32_bf16 v[{d}:{d+3}], a[{a}:{a+3}], v[{b}:{b+3}], {c}')))
        mf.sort(key=lambda x: (x[1], x[0]))
        mf = [x[2] for x in mf]
        p(wait_lgkm(f'C{r}'))
        fx = {}
        if r < 7:
            for i, o in enumerate(reads(r + 1)):
                fx.setdefault(i, []).append(o)
        fl = pst[r * per:(r + 1) * per]
        if timing and r in (1, 3, 5): p(raw(f's_memtime s[{84 + (r-1)}:{85 + (r-1)}]'))
        p(place2(mf, fx, fl, 0, 36))
    if timing: p(raw('s_memtime s[90:91]'))
    p('s_waitcnt lgkmcnt(0)')
    p('s_and_b32 s43, s40, 1')
    p('s_lshl_b32 s43, s43, 4')
    p('s_lshr_b32 s44, s44, s43')
    p('s_lshl_b32 s44, s44, 16')
    p(f'v_lshlrev_b32 v58, 5, v{VN}')
    p(f'v_lshl_add_u32 v58, v{VG}, 3, v58')
    p(f's_add_u32 s46, s45, {CONV_UR + 4088 - 512*7}')
    p('v_sub_u32 v59, s46, v58')
    for nt in range(8):
        p(lds(f'ds_read_b64 v[{112+2*nt}:{113+2*nt}], v59 offset:{512*(7-nt)}', 'U'))
    p(f's_mul_i32 s46, s{S_W}, 4160')
    p(f's_add_u32 s46, s46, {CONV_YT}')
    p('v_add_u32 v59, s46, v58')
    p('s_nop 7')
    p(wait_lgkm('U'))
    for nt in range(8):
        d = CACC + 4 * nt
        u0, u1 = 112 + 2 * nt, 113 + 2 * nt
        t = [64, 65, 66, 67]
        p(f'v_and_b32 v{t[0]}, 0xffff0000, v{u1}')
        p(f'v_lshlrev_b32 v{t[1]}, 16, v{u1}')
        p(f'v_and_b32 v{t[2]}, 0xffff0000, v{u0}')
        p(f'v_lshlrev_b32 v{t[3]}, 16, v{u0}')
        for i in range(4): p(f'v_fma_f32 v{d+i}, v{t[i]}, s44, v{d+i}')
        o = 68 + 2 * (nt % 2)
        p(f'v_cvt_pk_bf16_f32 v{o}, v{d}, v{d+1}')
        p(f'v_cvt_pk_bf16_f32 v{o+1}, v{d+2}, v{d+3}')
        p(f'ds_write_b64 v59, v[{o}:{o+1}] offset:{512*nt}')
    p(f'v_lshrrev_b32 v58, 2, v{VN}')
    p('v_mul_u32_u24 v58, 4160, v58')
    p('v_and_b32 v59, 3, v2')
    p('v_lshl_add_u32 v58, v59, 3, v58')
    p(f'v_lshl_add_u32 v58, v{VG}, 5, v58')
    p(f's_lshl_b32 s46, s{S_W}, 10')
    p(f's_add_u32 s46, s46, {CONV_YT}')
    p('v_add_u32 v58, s46, v58')
    p('v_lshlrev_b32 v59, 3, v2')
    p('s_lshl_b32 s46, s2, 14')
    p(f's_lshl_b32 s47, s{S_W}, 12')
    p('s_add_u32 s46, s46, s47')
    p(f's_add_u32 s46, s46, {WS_Y}')
    p('s_waitcnt lgkmcnt(0)')
    p('s_barrier')
    for k in range(8):
        p(lds(f'ds_read_b64_tr_b16 v[{112+2*k}:{113+2*k}], v58 offset:{128*k}', f'YT{k}'))
    for k in range(8):
        p(wait_lgkm(f'YT{k}'))
        p(f'buffer_store_dwordx2 v[{112+2*k}:{113+2*k}], v59, s[16:19], s46 offen offset:{512*k} sc1')
    if timing: p(raw('s_memtime s[92:93]'))


def T8(i):
    return 74 + i


def gen_final(p, timing):
    srd(p, 52, 4, NB)
    srd(p, 56, 48, NB)
    p(f's_lshr_b32 s60, s{S_J}, 1')
    p(f's_and_b32 s61, s{S_J}, 1')
    p(f's_lshl_b32 s62, s{S_M}, 7')
    p(f's_add_u32 s62, s62, {FL_P}')
    p('v_lshlrev_b32 v40, 2, v2')
    p('v_add_u32 v41, s62, v40')
    p('s_lshl_b32 s63, s60, 7')
    p(f's_add_u32 s63, s63, {FL_Y - 32}')
    p('v_add_u32 v42, s63, v40')
    p('s_lshl_b32 s63, s60, 4')
    p(f's_add_u32 s63, s63, {FL_Y + 512 - 160}')
    p('v_add_u32 v43, s63, v40')
    p('v_cmp_gt_u32 vcc, 8, v2')
    p('s_nop 1')
    p('v_cndmask_b32 v42, v42, v41, vcc')
    p('v_cmp_lt_u32 vcc, 39, v2')
    p('s_nop 1')
    p('v_cndmask_b32 v42, v42, v43, vcc')
    p('v_mov_b32 v43, s62')
    p('v_cmp_lt_u32 vcc, 43, v2')
    p('s_nop 1')
    p('v_cndmask_b32 v42, v42, v43, vcc')
    p(f's_mov_b32 s63, {WS_FL}')
    p(f's_lshl_b32 s34, s{S_M}, 6')
    p('s_lshl_b32 s35, s61, 5')
    p('s_add_u32 s34, s34, s35')
    p(f'v_add_u32 v6, s34, v{VN}')
    p('s_lshl_b32 s35, s61, 8')
    p(f's_add_u32 s35, s35, {LDS_ST}')
    p(f'v_lshl_add_u32 v7, v{VN}, 3, s35')
    p(lds('ds_read_b64 v[60:61], v7', 'ST'))
    p(lds('ds_read_b64 v[62:63], v7 offset:128', 'ST'))
    p(f's_lshl_b32 s34, s{S_M}, 3')
    p(f's_add_u32 s34, s34, s{S_J}')
    p('s_mul_i32 s34, s34, 9216')
    p(f's_add_u32 s34, s34, {WS_P}')
    NR = 3
    XA, YA, PA = 112, 124, 136
    for r in range(NR):
        p(f's_add_u32 s{64+r}, s{S_W}, {4*r}')
        p(f's_min_u32 s{64+r}, s{64+r}, 8')
        p('s_lshl_b32 s35, s60, 7')
        p(f's_lshl_b32 s40, s{64+r}, 4')
        p('s_add_u32 s35, s35, s40')
        p('s_lshl_b32 s40, s60, 4')
        p('s_add_u32 s40, s40, 512')
        p(f's_cmp_lt_u32 s{64+r}, 8')
        p('s_cselect_b32 s35, s35, s40')
        p(f'v_lshl_add_u32 v{8+r}, v{VG}, 2, s35')
        p(f'v_mul_u32_u24 v{12+r}, 1152, v6')
        p(f'v_lshl_add_u32 v{12+r}, v{8+r}, 1, v{12+r}')
        p(f'v_add_u32 v{16+r}, {16*1152}, v{12+r}')
        p(vm(f'buffer_load_dwordx2 v[{XA+4*r}:{XA+4*r+1}], v{12+r}, s[52:55], 0 offen', f'FX{r}'))
        p(vm(f'buffer_load_dwordx2 v[{XA+4*r+2}:{XA+4*r+3}], v{16+r}, s[52:55], 0 offen', f'FX{r}'))
        p(f'v_lshrrev_b32 v{20+r}, 2, v{8+r}')
        p(f'v_lshlrev_b32 v{20+r}, 14, v{20+r}')
        p(f'v_lshl_add_u32 v{20+r}, v6, 3, v{20+r}')
    p(f's_cmp_lg_u32 s{S_W}, 0')
    p('s_cbranch_scc1 K_FIN_GO')
    p.ops.append(Op(None, 'push'))
    poll(p, 44, 42, 's63', 'FIN')
    p.ops.append(Op(None, 'pop'))
    p.label('K_FIN_GO')
    p('s_barrier')
    rts(p, 4)
    if timing:
        p(raw('s_memtime s[74:75]'))
        p(raw('s_memrealtime s[80:81]'))
    p(f's_mov_b32 s41, {WS_Y}')
    p(f's_lshl_b32 s35, s{S_W}, 1')
    p(f's_mul_i32 s35, s35, {NB}')
    p('s_add_u32 s35, s35, s34')
    p('s_add_u32 s35, s35, 8192')
    p(vm(f'buffer_load_dwordx4 v[200:203], v{VL16}, s[16:19], s35 offen {PLD}', 'U8a'))
    p(f's_add_u32 s35, s35, {NB}')
    p(vm(f'buffer_load_dwordx4 v[204:207], v{VL16}, s[16:19], s35 offen {PLD}', 'U8b'))
    for r in range(2):
        p(f's_lshl_b32 s35, s{64+r}, 10')
        p('s_add_u32 s35, s35, s34')
        for j in range(8):
            b = PA + 32 * r + 4 * j
            p(vm(f'buffer_load_dwordx4 v[{b}:{b+3}], v{VL16}, s[16:19], s35 offen {PLD}', f'FP{r}_{j}'))
            if j != 7:
                p(f's_add_u32 s35, s35, {NB}')
        p(vm(f'buffer_load_dwordx2 v[{YA+4*r}:{YA+4*r+1}], v{20+r}, s[16:19], s41 offen sc1', f'FY{r}'))
        p(vm(f'buffer_load_dwordx2 v[{YA+4*r+2}:{YA+4*r+3}], v{20+r}, s[16:19], s41 offen offset:128 sc1', f'FY{r}'))
    p(f's_cmp_lg_u32 s{S_W}, 3')
    p('s_cbranch_scc1 K_FIN_L2')
    p(raw(f'buffer_load_dwordx2 v[{YA+8}:{YA+9}], v22, s[16:19], s41 offen sc1'))
    p(raw(f'buffer_load_dwordx2 v[{YA+10}:{YA+11}], v22, s[16:19], s41 offen offset:128 sc1'))
    p.label('K_FIN_L2')
    p('s_mov_b32 s40, 0x00003f80')
    p('s_mov_b32 s41, 0x3f800000')
    p(wait_lgkm('ST'))
    for i in range(4): p(f'v_mul_f32 v{60+i}, {hex(f32bits(-0.6931471805599453))}, v{60+i}')
    O = list(range(64, 72))
    p(f's_lshl_b32 s35, s{S_W}, 11')
    p(f'v_add_u32 v23, s35, v{VL16}')
    p(wait_vm('U8a'))
    for k in range(4):
        unpack(p, 208 + 2*k, 209 + 2*k, 200 + k)
    p(wait_vm('U8b'))
    for k in range(4):
        p(f'v_dot2_f32_bf16 v{208+2*k}, v{204+k}, s40, v{208+2*k}')
        p(f'v_dot2_f32_bf16 v{209+2*k}, v{204+k}, s41, v{209+2*k}')
    p('s_nop 2')
    p('ds_write_b128 v23, v[208:211]')
    p('ds_write_b128 v23, v[212:215] offset:1024')

    def finish(r):
        T_ = list(range(74, 82))
        for i in range(8): p(f'v_exp_f32 v{T_[i]}, v{O[i]}')
        p('s_nop 0')
        for i in range(8): p(f'v_add_f32 v{T_[i]}, 1.0, v{T_[i]}')
        for i in range(8): p(f'v_rcp_f32 v{T_[i]}, v{T_[i]}')
        p('s_nop 0')
        for i in range(8): p(f'v_mul_f32 v{O[i]}, v{O[i]}, v{T_[i]}')
        if r < 2: p(wait_vm([f'FY{r}', f'FX{r}']))
        for h in range(2):
            xs = [82, 83, 84, 85]; ys = [86, 87, 88, 89]; xn = [90, 91, 92, 93]
            unpack(p, xs[0], xs[1], XA + 4 * r + 2 * h); unpack(p, xs[2], xs[3], XA + 4 * r + 2 * h + 1)
            unpack(p, ys[0], ys[1], YA + 4 * r + 2 * h); unpack(p, ys[2], ys[3], YA + 4 * r + 2 * h + 1)
            for i in range(4): p(f'v_fma_f32 v{xn[i]}, v{xs[i]}, v{60+2*h}, v{61+2*h}')
            for i in range(4): p(f'v_mul_f32 v{xn[i]}, v{xn[i]}, v{ys[i]}')
            for i in range(4): p(f'v_fma_f32 v{xn[i]}, v{xn[i]}, v{O[4*h+i]}, v{xs[i]}')
            o = 94 + 2 * h
            p(f'v_cvt_pk_bf16_f32 v{o}, v{xn[0]}, v{xn[1]}')
            p(f'v_cvt_pk_bf16_f32 v{o+1}, v{xn[2]}, v{xn[3]}')
            p(raw(f'buffer_store_dwordx2 v[{o}:{o+1}], v{(12 if h == 0 else 16)+r}, s[56:59], 0 offen {OST}'))

    for r in range(2):
        b0 = PA + 32 * r
        p(wait_vm(f'FP{r}_0'))
        for k in range(4):
            unpack(p, O[2*k], O[2*k+1], b0 + k)
        for j in range(1, 8):
            p(wait_vm(f'FP{r}_{j}'))
            for k in range(4):
                p(f'v_dot2_f32_bf16 v{O[2*k]}, v{b0+4*j+k}, s40, v{O[2*k]}')
                p(f'v_dot2_f32_bf16 v{O[2*k+1]}, v{b0+4*j+k}, s41, v{O[2*k+1]}')
        p('s_nop 2')
        finish(r)
    p('s_waitcnt lgkmcnt(0)')
    p('s_barrier')
    p(f's_cmp_lg_u32 s{S_W}, 3')
    p('s_cbranch_scc1 K_FIN_DONE')
    for w_ in range(4):
        p(f'ds_read_b128 v[{136+8*w_}:{139+8*w_}], v{VL16} offset:{2048*w_}')
        p(f'ds_read_b128 v[{140+8*w_}:{143+8*w_}], v{VL16} offset:{2048*w_+1024}')
    p('s_waitcnt vmcnt(0) lgkmcnt(0)')
    for i in range(8):
        p(f'v_add_f32 v{O[i]}, v{136+i}, v{144+i}')
        p(f'v_add_f32 v{T8(i)}, v{152+i}, v{160+i}')
    for i in range(8):
        p(f'v_add_f32 v{O[i]}, v{O[i]}, v{T8(i)}')
    finish(2)
    p.label('K_FIN_DONE')


def build(timing=False):
    _silu_rot[0] = 0
    k = gen(timing)
    txt = HEADER
    txt += '; @launch grid=(256,1,1) block=(256,1,1) lds=163840\n'
    txt += '.amdgcn_target "amdgcn-amd-amdhsa--gfx950"\n'
    txt += kernel_head(KNAME) + k.resolve()
    txt += kernel_descriptor(KNAME, 512, 102, 256)
    return txt


if __name__ == '__main__':
    timing = '--timing' in sys.argv
    out = [a for a in sys.argv[1:] if not a.startswith('--')]
    open(out[0] if out else 'cdna_kernels/' + NAME + '.s', 'w').write(build(timing))
```
